```python
import torch

def _softmax(x, axis=-1):
    return torch.softmax(x, dim=axis)
def _gelu(x):
    return torch.nn.functional.gelu(x, approximate="tanh")
def _silu(x):
    return torch.nn.functional.silu(x)
def _sigmoid(x):
    return torch.sigmoid(x)
def _layernorm(x, axis=-1, eps=1e-5):
    m = x.mean(dim=axis, keepdim=True)
    v = x.var(dim=axis, keepdim=True, unbiased=False)
    return (x - m) / torch.sqrt(v + eps)
def _scatter_add(tgt, idx, src, axis=0):
    return tgt.clone().index_add_(axis, idx, src)
def _segment_sum(src, seg, n):
    out = torch.zeros((n,) + src.shape[1:], dtype=src.dtype)
    return out.index_add_(0, seg, src)
def _pad(x, pw):
    flat = tuple(v for pair in reversed(pw) for v in pair)
    return torch.nn.functional.pad(x, flat)

kernel_name = 'interleave_layers__grouped_kv_mqa__dense_activation_silu__prompt'

def setup_inputs():

    _w = (lambda a: (lambda t: t.to(torch.bfloat16) if t.is_floating_point() else t)(torch.as_tensor(a)))
    def _A_setup():
        B, S, D, H = 1, 2048, 512, 32
        Dh = D // H
        return {
            "x": _w((lambda *s: torch.randn(*s, dtype=torch.bfloat16) * 0.05)(B, S, D)),
            "wq": _w((lambda *s: torch.randn(*s, dtype=torch.bfloat16) * 0.05)(D, H * Dh)),
            "wk": _w((lambda *s: torch.randn(*s, dtype=torch.bfloat16) * 0.05)(D, Dh)),
            "wv": _w((lambda *s: torch.randn(*s, dtype=torch.bfloat16) * 0.05)(D, Dh)),
            "wo": _w((lambda *s: torch.randn(*s, dtype=torch.bfloat16) * 0.05)(H * Dh, D)),
        }
    _A_in = _A_setup()

    def _B_setup():
        B, S, D, F = 1, 2048, 512, 1376
        return {
            "x": _w((lambda *s: torch.randn(*s, dtype=torch.bfloat16) * 0.05)(B, S, D)),
            "w1": _w((lambda *s: torch.randn(*s, dtype=torch.bfloat16) * 1.6)(D, F) * (D ** -0.5)),
            "w2": _w((lambda *s: torch.randn(*s, dtype=torch.bfloat16) * 0.2)(F, D) * (F ** -0.5)),
        }
    _B_in = _B_setup()

    return {
        "A_x": _A_in["x"],
        "A_wq": _A_in["wq"],
        "A_wk": _A_in["wk"],
        "A_wv": _A_in["wv"],
        "A_wo": _A_in["wo"],
        "B_x": _B_in["x"],
        "B_w1": _B_in["w1"],
        "B_w2": _B_in["w2"],
    }

def reference(A_x, A_wq, A_wk, A_wv, A_wo, B_x, B_w1, B_w2):
    def _A_ref(x, wq, wk, wv, wo):
        B, S, D = x.shape
        H = 32
        Dh = D // H
        q = (lambda x, *d: x.permute(*d))((x @ wq).reshape(B, S, H, Dh), 0, 2, 1, 3)
        k = x @ wk
        v = x @ wv
        scores = torch.einsum("bhqd,bkd->bhqk", q, k) * (Dh ** -0.5)
        p = _softmax(scores, axis=-1)
        o = torch.einsum("bhqk,bkd->bhqd", p, v)
        return (lambda x, *d: x.permute(*d))(o, 0, 2, 1, 3).reshape(B, S, H * Dh) @ wo

    def _B_ref(x, w1, w2):
        h = torch.einsum("bsd,df->bsf", x, w1)
        h = _silu(h)
        out = torch.einsum("bsf,fd->bsd", h, w2)
        return out

    x = A_x
    x = x + _A_ref(_layernorm(x, axis=-1), A_wq, A_wk, A_wv, A_wo)
    x = x + _B_ref(_layernorm(x, axis=-1), B_w1, B_w2)
    x = x + _A_ref(_layernorm(x, axis=-1), A_wq, A_wk, A_wv, A_wo)
    x = x + _B_ref(_layernorm(x, axis=-1), B_w1, B_w2)
    return x
```

```python
import re

REG_RE = re.compile(r'^(-|abs\(|\|)?([vas])(?:(\d+)|\[(\d+):(\d+)\])(\)|\|)?$')
TRANS = ('v_exp_f32', 'v_log_f32', 'v_rcp_f32', 'v_rsq_f32', 'v_sqrt_f32', 'v_sin_f32', 'v_cos_f32')

def regs(tok):
    tok = tok.strip()
    if tok in ('vcc', 'vcc_lo', 'vcc_hi'): return {('s', 'vcc')}
    if tok in ('exec', 'exec_lo', 'exec_hi'): return {('s', 'exec')}
    if tok == 'm0': return {('s', 'm0')}
    m = REG_RE.match(tok)
    if not m: return set()
    k = m.group(2)
    if m.group(3) is not None: return {(k, int(m.group(3)))}
    return {(k, i) for i in range(int(m.group(4)), int(m.group(5)) + 1)}

def split_ops(s):
    out, depth, cur = [], 0, ''
    for ch in s:
        if ch in '[(': depth += 1
        if ch in '])': depth -= 1
        if ch == ',' and depth == 0:
            out.append(cur.strip()); cur = ''
        else: cur += ch
    if cur.strip(): out.append(cur.strip())
    return out

class Ins:
    def __init__(self, text):
        self.text = text
        body = text.split(';')[0].strip()
        self.label = body.endswith(':')
        self.directive = body.startswith('.') or body == ''
        self.mn = ''; self.cls = 'other'; self.rd = set(); self.wr = set()
        self.A = self.B = self.C = self.D = set(); self.passes = 0; self.states = 1
        self.wide_store = set()
        if self.label or self.directive:
            self.states = 0; self.cls = 'label' if self.label else 'dir'; return
        parts = body.split(None, 1)
        mn = self.mn = parts[0]
        rest = parts[1] if len(parts) > 1 else ''
        ops = split_ops(rest)
        mods = ''
        if ops:
            l = ops[-1].split(None, 1)
            ops[-1] = l[0]; mods = l[1] if len(l) > 1 else ''
        self.mods = mods
        R = [regs(o) for o in ops]
        U = lambda xs: set().union(*xs) if xs else set()
        base = re.sub(r'_(e32|e64|dpp|sdwa)$', '', mn)
        if mn == 's_nop':
            self.cls = 'nop'; self.states = int(ops[0], 0) + 1
        elif mn.startswith('v_mfma'):
            self.cls = 'mfma'
            self.D, self.A, self.B, self.C = R[0], R[1], R[2], R[3]
            self.passes = 8 if '32x32' in mn else 4
            self.rd = self.A | self.B | self.C; self.wr = self.D
        elif mn.startswith('v_'):
            self.cls = 'valu'
            self.trans = base in TRANS
            self.perm = base.startswith('v_permlane')
            self.dpp = mn.endswith('_dpp') or 'row_' in mods or 'quad_perm' in mods
            self.rdlane = base in ('v_readfirstlane_b32', 'v_readlane_b32')
            self.dot = base.startswith('v_dot')
            if self.perm:
                self.rd = R[0] | R[1]; self.wr = R[0] | R[1]
            elif base in ('v_add_co_u32', 'v_sub_co_u32', 'v_addc_co_u32', 'v_subb_co_u32'):
                self.wr = R[0] | R[1]; self.rd = U(R[2:])
            else:
                self.wr = R[0]; self.rd = U(R[1:])
                if base in ('v_fmac_f32', 'v_dot2c_f32_bf16', 'v_pk_fmac_f16') or self.dpp: self.rd |= R[0]
                if base == 'v_cndmask_b32' and len(R) == 3: self.rd |= {('s', 'vcc')}
        elif mn.startswith('ds_read') or mn.startswith('ds_bpermute') or mn.startswith('ds_swizzle'):
            self.cls = 'dsr'; self.wr = R[0]; self.rd = U(R[1:])
        elif mn.startswith('ds_write'):
            self.cls = 'dsw'; self.rd = U(R)
        elif mn.startswith('buffer_load') or mn.startswith('global_load'):
            if 'lds' in mods.split() or '_lds_' in mn:
                self.cls = 'dma'; self.rd = U(R) | {('s', 'm0')}
            else:
                self.cls = 'vld'; self.wr = R[0]; self.rd = U(R[1:])
        elif mn.startswith('buffer_store'):
            self.cls = 'vst'; self.rd = U(R)
            if mn.endswith('x4') or mn.endswith('x3'): self.wide_store = R[0]
        elif mn.startswith('global_store'):
            self.cls = 'vst'; self.rd = U(R)
            if mn.endswith('x4') or mn.endswith('x3'): self.wide_store = R[1]
        elif mn.startswith('s_cbranch') or mn == 's_branch' or mn == 's_endpgm' or mn == 's_setpc_b64':
            self.cls = 'branch'
            if 'vcc' in mn: self.rd = {('s', 'vcc')}
        elif mn in ('s_waitcnt', 's_barrier', 's_sleep', 's_setprio', 'buffer_wbl2', 'buffer_inv'):
            self.cls = 'sync'
        elif mn.startswith('s_cmp') or mn.startswith('s_bitcmp'):
            self.cls = 'salu'; self.rd = U(R)
        elif mn.startswith('s_'):
            self.cls = 'salu'; self.wr = R[0] if R else set(); self.rd = U(R[1:])
            if 'saveexec' in mn: self.wr = self.wr | {('s', 'exec')}
        else:
            raise ValueError('unknown instruction: ' + text)

def need_states(p, c):
    n = 0
    vec = lambda s: {r for r in s if r[0] in 'va'}
    sg = lambda s: {r for r in s if r[0] == 's'}
    mem = c.cls in ('dsr', 'dsw', 'vld', 'vst', 'dma')
    if p.cls == 'valu':
        pw = vec(p.wr); ps = sg(p.wr)
        if c.cls == 'mfma' and pw & c.rd: n = max(n, 3 if p.dot else 2)
        if c.cls == 'valu':
            if p.trans and not c.trans and pw & c.rd: n = max(n, 1)
            if (c.perm or c.dpp) and pw & c.rd: n = max(n, 2)
            if c.rdlane and pw & c.rd: n = max(n, 1)
            if ps & c.rd: n = max(n, 4 if c.rdlane else 2)
            if p.dot and (pw & (c.rd | c.wr)) and not (c.mn == p.mn): n = max(n, 3)
        if p.dot and mem and pw & c.rd: n = max(n, 3)
        if p.trans and mem and pw & c.rd: n = max(n, 1)
        if mem and ps & c.rd: n = max(n, 5)
        if c.cls in ('salu', 'branch') and ps & c.rd: n = max(n, 2)
        if ('s', 'exec') in p.wr: n = max(n, 5)
    if p.cls == 'mfma':
        big = 12 if p.passes == 8 else 8
        if c.cls == 'mfma':
            if p.D & (c.A | c.B): n = max(n, big)
            if p.D & c.C and not (p.D == c.C and p.passes == c.passes): n = max(n, big - 2)
            if p.D & c.D and not (p.D & c.C): n = max(n, big - 2)
        elif c.cls == 'valu':
            if p.D & (c.rd | c.wr): n = max(n, big)
            if p.C & c.wr: n = max(n, 7 if p.passes == 8 else 3)
        elif mem:
            if p.D & (c.rd | c.wr): n = max(n, big)
    if p.wide_store and p.wide_store & c.wr: n = max(n, 2)
    if p.cls == 'salu' and ('s', 'm0') in p.wr and c.cls == 'dma': n = max(n, 1)
    return n

class Asm:
    def __init__(self):
        self.ins = []
        self.vm = 0; self.lg = 0
        self.vm_done = 0; self.lg_done = 0
        self.nops = 0
        self.uid = 0
    def label_name(self, p='L'):
        self.uid += 1
        return f'{p}_{self.uid}'
    def raw(self, text):
        self.ins.append(Ins(text))
    def comment(self, t):
        self.ins.append(Ins('; ' + t))
    def __call__(self, text):
        c = Ins(text)
        if c.cls not in ('label', 'dir'):
            dist = 0; need = 0
            for p in reversed(self.ins):
                if dist >= 20: break
                if p.states == 0: continue
                k = need_states(p, c) - dist
                if k > need: need = k
                dist += p.states
            while need > 0:
                k = min(need, 16)
                self.ins.append(Ins(f's_nop {k-1}')); self.nops += k
                need -= k
        self.ins.append(c)
        if c.cls in ('vld', 'vst', 'dma'):
            self.vm += 1; return ('vm', self.vm)
        if c.cls in ('dsr', 'dsw'):
            self.lg += 1; return ('lg', self.lg)
        return None
    def lines(self, text):
        t = None
        for l in text.strip().split('\n'):
            l = l.strip()
            if l: t = self(l)
        return t
    def wait(self, *toks):
        vm = max([t[1] for t in toks if t and t[0] == 'vm'], default=0)
        lg = max([t[1] for t in toks if t and t[0] == 'lg'], default=0)
        parts = []
        if vm > self.vm_done:
            n = self.vm - vm
            if n <= 63: parts.append(f'vmcnt({n})')
            self.vm_done = vm
        if lg > self.lg_done:
            n = self.lg - lg
            if n <= 15: parts.append(f'lgkmcnt({n})')
            self.lg_done = lg
        if parts: self('s_waitcnt ' + ' '.join(parts))
    def wait_all(self, vm=True, lg=True):
        parts = []
        if vm: parts.append('vmcnt(0)'); self.vm_done = self.vm
        if lg: parts.append('lgkmcnt(0)'); self.lg_done = self.lg
        self('s_waitcnt ' + ' '.join(parts))
    def text(self):
        out = []
        for i in self.ins:
            t = i.text
            out.append(t if (i.label or t.startswith('.')) else '    ' + t)
        return '\n'.join(out) + '\n'

def vr(b, n=1): return f'v{b}' if n == 1 else f'v[{b}:{b+n-1}]'
def ar(b, n=1): return f'a{b}' if n == 1 else f'a[{b}:{b+n-1}]'
def sr(b, n=1): return f's{b}' if n == 1 else f's[{b}:{b+n-1}]'
```

```python
WQKV_P = 0x000000
WO_P   = 0x0A0000
W1_P   = 0x120000
W2_P   = 0x280000
KV0    = 0x3E0000
KV_SZ  = 0x20000
GB0    = 0x800000
GB_L   = 0x1000000
GB_G   = 0x80000
O_XIN, O_Q, O_O, O_X1, O_H = 0x0, 0x10000, 0x20000, 0x30000, 0x40000
O_STIN, O_ST1, O_FLAG = 0x6C000, 0x6D000, 0x6E000
F_O, F_X1, F_H, F_X2 = 0, 128, 256, 768
WS_USED = GB0 + 2 * GB_L
assert WO_P == WQKV_P + 8 * 81920 and W1_P == WO_P + 0x80000 and W2_P == W1_P + 88 * 16384
assert KV0 == W2_P + 352 * 4096 and KV0 + 2 * KV_SZ <= GB0
```

```python
import sys, struct, math
from dsl import *
from layout import *

def f32(x): return '0x%08x' % struct.unpack('<I', struct.pack('<f', x))[0]
LOG2E = 1.4426950408889634
LN2 = 0.6931471805599453
M16 = 'v_mfma_f32_16x16x32_bf16'
M32 = 'v_mfma_f32_32x32x16_bf16'
NAME = 'interleave_layers__grouped_kv_mqa__dense_activation_silu__prompt'

S_L = 3
SRD_WS = 4
SRD_B = 8
S_G, S_J, S_W = 12, 13, 14
S_GB, S_GBN, S_KV, S_KVN = 15, 16, 17, 18
S_VMASK = 20
S_T = 24
WS = sr(SRD_WS, 4); SB = sr(SRD_B, 4)
V_L16, V_T, V_G = 1, 2, 3

def ids(a, end):
    a.lines(f'''
    s_cmp_ge_u32 s2, 256
    s_cbranch_scc1 {end}
    s_load_dwordx2 s[4:5], s[0:1], 80
    v_lshrrev_b32 v4, 6, v0
    s_and_b32 s24, s2, 7
    s_lshr_b32 s25, s2, 3
    v_readfirstlane_b32 s{S_W}, v4
    s_and_b32 s{S_J}, s25, 7
    s_lshr_b32 s25, s25, 3
    s_lshl_b32 s{S_G}, s24, 2
    s_add_u32 s{S_G}, s{S_G}, s25
    v_and_b32 v0, 63, v0
    v_lshlrev_b32 v{V_L16}, 4, v0
    v_and_b32 v{V_T}, 15, v0
    v_lshrrev_b32 v{V_G}, 4, v0
    s_mov_b32 s6, {WS_USED}
    s_mov_b32 s7, 0x20000
    s_mul_i32 s{S_GB}, s{S_L}, {GB_L}
    s_mul_i32 s24, s{S_G}, {GB_G}
    s_add_u32 s{S_GB}, s{S_GB}, s24
    s_add_u32 s{S_GB}, s{S_GB}, {GB0}
    s_add_u32 s{S_GBN}, s{S_GB}, {GB_L}
    s_mul_i32 s{S_KV}, s{S_L}, {KV_SZ}
    s_add_u32 s{S_KV}, s{S_KV}, {KV0}
    s_add_u32 s{S_KVN}, s{S_KV}, {KV_SZ}
    ''')

def x_publish(a, acc, pk, tmp, s_gb, o_x, o_st, have_pk=False):
    a.lines(f'''
    s_lshl_b32 s24, s{S_W}, 14
    s_lshl_b32 s25, s{S_J}, 11
    s_add_u32 s24, s24, s25
    s_add_u32 s24, s24, s{s_gb}
    s_add_u32 s24, s24, {o_x}
    s_lshl_b32 s25, s{S_J}, 9
    s_lshl_b32 s26, s{S_W}, 7
    s_add_u32 s25, s25, s26
    s_add_u32 s25, s25, s{s_gb}
    s_add_u32 s25, s25, {o_st}
    ''')
    if not have_pk:
        for i in range(8):
            a(f'v_cvt_pk_bf16_f32 v{pk+i}, v{acc+2*i}, v{acc+2*i+1}')
    a(f'buffer_store_dwordx4 {vr(pk,4)}, v{V_L16}, {WS}, s24 offen sc1')
    a(f'buffer_store_dwordx4 {vr(pk+4,4)}, v{V_L16}, {WS}, s24 offen offset:1024 sc1')
    s, q = tmp, tmp + 2
    a(f'v_pk_add_f32 {vr(s,2)}, {vr(acc,2)}, {vr(acc+2,2)}')
    a(f'v_pk_mul_f32 {vr(q,2)}, {vr(acc,2)}, {vr(acc,2)}')
    for i in range(1, 8):
        if i > 1: a(f'v_pk_add_f32 {vr(s,2)}, {vr(s,2)}, {vr(acc+2*i,2)}')
        a(f'v_pk_fma_f32 {vr(q,2)}, {vr(acc+2*i,2)}, {vr(acc+2*i,2)}, {vr(q,2)}')
    a(f'v_add_f32 v{s}, v{s}, v{s+1}')
    a(f'v_add_f32 v{q}, v{q}, v{q+1}')
    a(f'v_lshrrev_b32 v{s+1}, 1, v{V_G}')
    a(f'v_permlane32_swap_b32 v{s}, v{q}')
    a(f'v_lshlrev_b32 v{s+1}, 2, v{s+1}')
    a(f'v_add_f32 v{s}, v{s}, v{q}')
    a(f'v_lshl_add_u32 v{s+1}, v{V_T}, 3, v{s+1}')
    a(f'v_mov_b32 v{q}, v{s}')
    a(f'v_permlane16_swap_b32 v{s}, v{q}')
    a(f'v_add_f32 v{s}, v{s}, v{q}')
    return a(f'buffer_store_dword v{s}, v{s+1}, {WS}, s25 offen sc1')

def rstd_from(a, st, out, scale):
    L = []
    for i in range(4): L.append(f'v_pk_add_f32 {vr(st+4*i,2)}, {vr(st+4*i,2)}, {vr(st+4*i+2,2)}')
    L.append(f'v_pk_add_f32 {vr(st,2)}, {vr(st,2)}, {vr(st+4,2)}')
    L.append(f'v_pk_add_f32 {vr(st+8,2)}, {vr(st+8,2)}, {vr(st+12,2)}')
    L.append(f'v_pk_add_f32 {vr(st,2)}, {vr(st,2)}, {vr(st+8,2)}')
    L.append(f'v_mul_f32 v{st}, {f32(1/512)}, v{st}')
    L.append(f'v_mul_f32 v{st+1}, {f32(1/512)}, v{st+1}')
    L.append(f'v_fma_f32 v{st+1}, -v{st}, v{st}, v{st+1}')
    L.append(f'v_max_f32 v{st+1}, 0, v{st+1}')
    L.append(f'v_add_f32 v{st+1}, {f32(1e-5)}, v{st+1}')
    L.append(f'v_rsq_f32 v{out}, v{st+1}')
    if scale != 1.0: L.append(f'v_mul_f32 v{out}, {f32(scale)}, v{out}')
    return L

def gen_k0(a):
    end = 'K0_END'
    a('s_mov_b32 s3, 0')
    ids(a, end)
    a.lines('''
    s_load_dwordx4 s[40:43], s[0:1], 0
    s_load_dwordx4 s[44:47], s[0:1], 16
    s_load_dwordx2 s[48:49], s[0:1], 32
    s_load_dwordx4 s[52:55], s[0:1], 48
    s_waitcnt lgkmcnt(0)
    ''')
    a.lines(f'''
    s_mov_b32 s8, s40
    s_mov_b32 s9, s41
    s_mov_b32 s10, {2048*1024}
    s_mov_b32 s11, 0x20000
    s_lshl_b32 s24, s{S_G}, 16
    s_lshl_b32 s25, s{S_W}, 14
    s_add_u32 s24, s24, s25
    s_lshl_b32 s25, s{S_J}, 7
    s_add_u32 s24, s24, s25
    v_lshlrev_b32 v4, 10, v{V_T}
    v_lshl_add_u32 v4, v{V_G}, 3, v4
    ''')
    for mt in range(4):
        t = a(f'buffer_load_dwordx2 {vr(8+2*mt,2)}, v4, {SB}, s24 offen offset:{32*mt}')
    a.lines(f'''
    s_cmp_ge_u32 s{S_J}, 2
    s_cbranch_scc1 K0_NOZ
    s_mul_i32 s24, s{S_J}, {GB_L}
    s_add_u32 s24, s24, s{S_GB}
    s_lshl_b32 s25, s{S_W}, 10
    s_add_u32 s24, s24, s25
    s_add_u32 s24, s24, {O_FLAG}
    v_mov_b32 v40, 0
    v_mov_b32 v41, 0
    v_mov_b32 v42, 0
    v_mov_b32 v43, 0
    buffer_store_dwordx4 v[40:43], v{V_L16}, {WS}, s24 offen sc1
    K0_NOZ:
    ''')
    a.wait_all()
    for i in range(8):
        a(f'v_lshlrev_b32 v{16+2*i}, 16, v{8+i}')
        a(f'v_and_b32 v{17+2*i}, 0xffff0000, v{8+i}')
    x_publish(a, 16, 8, 32, S_GB, O_XIN, O_STIN, have_pk=True)
    a.lines(f'''
    s_cmp_ge_u32 s2, 128
    s_cbranch_scc1 K0_UNIT
    ''')
    a.lines(f'''
    s_cmp_ge_u32 s2, 88
    s_cbranch_scc1 K0_SQ
    s_mov_b32 s8, s52
    s_mov_b32 s9, s53
    s_cmp_lt_u32 s2, 86
    s_cselect_b32 s10, {512*2752}, 0
    s_mov_b32 s30, 2752
    s_lshl_b32 s31, s2, 5
    s_lshl_b32 s32, s2, 14
    s_add_u32 s32, s32, {W1_P}
    s_mov_b32 s33, 1024
    s_mov_b32 s34, 0
    s_branch K0_STRIP
    K0_SQ:
    s_cmp_ge_u32 s2, 120
    s_cbranch_scc1 K0_SKV
    s_sub_u32 s24, s2, 88
    s_mov_b32 s8, s42
    s_mov_b32 s9, s43
    s_mov_b32 s10, {512*1024}
    s_mov_b32 s30, 1024
    s_lshl_b32 s31, s24, 5
    s_lshr_b32 s25, s24, 2
    s_and_b32 s26, s24, 3
    s_mul_i32 s32, s25, 81920
    s_lshl_b32 s26, s26, 10
    s_add_u32 s32, s32, s26
    s_add_u32 s32, s32, {WQKV_P}
    s_mov_b32 s33, 5120
    s_lshl_b32 s34, s25, 1
    s_branch K0_STRIP
    K0_SKV:
    s_sub_u32 s25, s2, 120
    s_bitcmp1_b32 s25, 0
    s_cselect_b32 s8, s46, s44
    s_cselect_b32 s9, s47, s45
    s_mov_b32 s10, {512*32}
    s_mov_b32 s30, 32
    s_mov_b32 s31, 0
    s_mul_i32 s32, s25, 81920
    s_add_u32 s32, s32, {WQKV_P + 4096}
    s_mov_b32 s33, 5120
    s_lshl_b32 s34, s25, 1
    K0_STRIP:
    s_mov_b32 s11, 0x20000
    v_lshrrev_b32 v4, 1, v0
    v_mul_lo_u32 v4, v4, s30
    v_and_b32 v5, 1, v0
    v_lshl_add_u32 v4, v5, 4, v4
    s_lshl_b32 s24, s{S_W}, 7
    s_mul_i32 s24, s24, s30
    s_add_u32 s24, s24, s31
    s_lshl_b32 s25, s30, 5
    s_lshl_b32 s26, s{S_W}, 12
    ''')
    for i in range(4):
        a(f's_mov_b32 m0, s26')
        a(f'buffer_load_dwordx4 v4, {SB}, s24 offen lds')
        a('s_add_u32 s24, s24, s25')
        a('s_add_u32 s26, s26, 1024')
    a.lines(f'''
    v_lshlrev_b32 v5, 3, v{V_T}
    v_lshl_add_u32 v5, v{V_G}, 7, v5
    s_lshl_b32 s26, s{S_W}, 12
    v_add_u32 v5, s26, v5
    v_mov_b32 v40, 0x3f803f80
    v_mov_b32 v41, 0x3f803f80
    v_mov_b32 v42, 0x3f803f80
    v_mov_b32 v43, 0x3f803f80
    ''')
    a.wait_all()
    for i in range(4):
        a(f'ds_read_b64_tr_b16 {vr(8+4*i,2)}, v5 offset:{1024*i}')
        a(f'ds_read_b64_tr_b16 {vr(10+4*i,2)}, v5 offset:{1024*i+512}')
    a.wait_all()
    for i in range(4):
        a(f'{M16} v[44:47], v[40:43], {vr(8+4*i,4)}, {"0" if i == 0 else "v[44:47]"}')
    a.lines(f'''
    v_lshlrev_b32 v6, 2, v0
    s_lshl_b32 s26, s{S_W}, 8
    v_add_u32 v7, s26, v6
    ds_write_b32 v7, v44 offset:16384
    ''')
    a.wait_all()
    a('s_barrier')
    for i in range(4): a(f'ds_read_b32 v{48+i}, v6 offset:{16384+256*i}')
    a.wait_all()
    a.lines(f'''
    v_add_f32 v48, v48, v49
    v_add_f32 v50, v50, v51
    v_add_f32 v48, v48, v50
    v_mul_f32 v48, {f32(1/512)}, v48
    ''')
    for i in range(16):
        a(f'v_lshlrev_b32 v50, 16, v{8+i}')
        a(f'v_and_b32 v51, 0xffff0000, v{8+i}')
        a(f'v_sub_f32 v50, v50, v48')
        a(f'v_sub_f32 v51, v51, v48')
        a(f'v_cvt_pk_bf16_f32 v{8+i}, v50, v51')
    for i in range(4):
        a.lines(f'''
        s_lshl_b32 s24, s{S_W}, 2
        s_add_u32 s24, s24, {i + 16}
        s_sub_u32 s24, s24, s34
        s_and_b32 s24, s24, 15
        s_mul_i32 s24, s24, s33
        s_add_u32 s24, s24, s32
        buffer_store_dwordx4 {vr(8+4*i,4)}, v{V_L16}, {WS}, s24 offen sc1
        ''')
    a(f's_branch {end}')
    a.lines(f'''
    K0_UNIT:
    s_sub_u32 s29, s2, 128
    s_lshl_b32 s29, s29, 2
    s_add_u32 s29, s29, s{S_W}
    s_cmp_ge_u32 s29, 480
    s_cbranch_scc1 {end}
    s_cmp_ge_u32 s29, 352
    s_cbranch_scc1 K0_UO
    s_mov_b32 s8, s54
    s_mov_b32 s9, s55
    s_mov_b32 s10, {1376*1024}
    s_mul_i32 s24, s29, 5958
    s_lshr_b32 s24, s24, 16
    s_mul_i32 s25, s24, 11
    s_sub_u32 s25, s29, s25
    s_lshr_b32 s26, s24, 2
    s_and_b32 s27, s24, 3
    s_lshl_b32 s33, s26, 7
    s_lshl_b32 s32, s29, 12
    s_add_u32 s32, s32, {W2_P}
    s_mul_i32 s27, s27, 22
    s_cmp_ge_u32 s25, 8
    s_cbranch_scc1 K0_UH
    s_lshr_b32 s26, s25, 2
    s_mul_i32 s26, s26, 11
    s_and_b32 s28, s25, 3
    s_mul_i32 s28, s28, 3
    s_add_u32 s27, s27, s26
    s_add_u32 s27, s27, s28
    s_lshl_b32 s30, s27, 4
    s_add_u32 s31, s30, 16
    s_mov_b32 s34, 8
    s_mov_b32 s35, 4
    s_mov_b32 s36, 16
    s_branch K0_UGO
    K0_UH:
    s_mov_b32 s30, 2
    s_mov_b32 s31, 5
    s_cmp_eq_u32 s25, 9
    s_cselect_b32 s30, 8, s30
    s_cselect_b32 s31, 13, s31
    s_cmp_eq_u32 s25, 10
    s_cselect_b32 s30, 16, s30
    s_cselect_b32 s31, 19, s31
    s_add_u32 s30, s30, s27
    s_add_u32 s31, s31, s27
    s_lshl_b32 s30, s30, 4
    s_lshl_b32 s31, s31, 4
    s_mov_b32 s34, 16
    s_mov_b32 s35, 8
    s_mov_b32 s36, 4
    s_branch K0_UGO
    K0_UO:
    s_mov_b32 s8, s48
    s_mov_b32 s9, s49
    s_mov_b32 s10, {512*1024}
    s_sub_u32 s24, s29, 352
    s_lshr_b32 s26, s24, 4
    s_lshl_b32 s33, s26, 7
    s_lshl_b32 s32, s24, 12
    s_add_u32 s32, s32, {WO_P}
    s_lshl_b32 s26, s26, 1
    s_add_u32 s26, s26, s24
    s_and_b32 s26, s26, 15
    s_lshl_b32 s30, s26, 5
    s_add_u32 s31, s30, 16
    s_mov_b32 s34, 16
    s_mov_b32 s35, 4
    s_mov_b32 s36, 8
    K0_UGO:
    s_mov_b32 s11, 0x20000
    v_lshrrev_b32 v4, 3, v0
    v_lshlrev_b32 v4, 10, v4
    v_and_b32 v5, 7, v0
    v_lshl_add_u32 v4, v5, 4, v4
    s_lshl_b32 s30, s30, 10
    s_add_u32 s30, s30, s33
    s_lshl_b32 s31, s31, 10
    s_add_u32 s31, s31, s33
    s_lshl_b32 s26, s{S_W}, 12
    ''')
    for i in range(4):
        s = 30 + (i >> 1)
        a('s_mov_b32 m0, s26')
        a(f'buffer_load_dwordx4 v4, {SB}, s{s} offen lds')
        a(f's_add_u32 s{s}, s{s}, 8192')
        a('s_add_u32 s26, s26, 1024')
    a.lines(f'''
    v_lshrrev_b32 v5, 1, v{V_G}
    v_mul_lo_u32 v5, v5, s34
    v_and_b32 v6, 1, v{V_G}
    v_mul_lo_u32 v6, v6, s35
    v_add_u32 v5, v5, v6
    v_lshrrev_b32 v6, 2, v{V_T}
    v_add_u32 v5, v5, v6
    v_lshlrev_b32 v5, 7, v5
    v_and_b32 v6, 3, v0
    v_lshl_add_u32 v5, v6, 3, v5
    s_lshl_b32 s26, s{S_W}, 12
    v_add_u32 v5, s26, v5
    s_lshl_b32 s36, s36, 7
    v_add_u32 v6, s36, v5
    ''')
    a.wait_all()
    for mt in range(4):
        a(f'ds_read_b64_tr_b16 {vr(8+4*mt,2)}, v5 offset:{32*mt}')
        a(f'ds_read_b64_tr_b16 {vr(10+4*mt,2)}, v6 offset:{32*mt}')
    a.wait_all()
    for mt in range(4):
        a(f'buffer_store_dwordx4 {vr(8+4*mt,4)}, v{V_L16}, {WS}, s32 offen offset:{1024*mt} sc1')
    a.raw(f'{end}:')
    a('s_endpgm')

LDS_WO, LDS_WQ, LDS_SCR = 0, 65536, 131072
LDS_TOTAL = 163840
VQ, VS0, VS1, VP, VO, VKV = 8, 24, 40, 56, 64, 128
POLL_MAX = 400000

def w2reg(f):
    if f < 16: return ar(192 + 4*f, 4)
    if f < 42: return vr(152 + 4*(f-16), 4)
    return vr(144 + 4*(f-42), 4)
def w1reg(i, ks): return ar((i*16 + ks)*4, 4)

S_FLAG = 38
def flag_prep(a):
    a.lines(f'''
    s_lshl_b32 s24, s{S_J}, 4
    s_lshl_b32 s25, s{S_W}, 2
    s_add_u32 s24, s24, s25
    s_add_u32 s24, s24, s{S_GB}
    s_add_u32 s{S_FLAG}, s24, {O_FLAG}
    v_mov_b32 v7, 1
    ''')
def flag_set(a, line_off):
    a('s_mov_b64 exec, 1')
    t = a(f'buffer_store_dword v7, off, {WS}, s{S_FLAG} offset:{line_off} sc1')
    a('s_mov_b64 exec, -1')
    return t

def poll_all(a, line_off):
    lp = a.label_name('POLL'); dn = a.label_name('POLLD')
    a.lines(f'''
    s_add_u32 s24, s{S_GB}, {O_FLAG + line_off}
    v_and_b32 v4, 31, v0
    v_lshlrev_b32 v4, 2, v4
    s_mov_b32 s25, 0
    ''')
    a.raw(f'{lp}:')
    a(f'buffer_load_dword v5, v4, {WS}, s24 offen sc1')
    a(f's_add_u32 s25, s25, 1')
    a(f's_cmp_gt_u32 s25, {POLL_MAX}')
    a(f's_cbranch_scc1 {dn}')
    a.wait_all(lg=False)
    a('v_cmp_eq_u32 vcc, 0, v5')
    a(f's_cbranch_vccnz {lp}')
    a.raw(f'{dn}:')
    a.wait_all(lg=False)

def load_bfrags_rot(a, B, s_gb, off):
    toks = []
    a.lines(f'''
    s_lshl_b32 s26, s{S_W}, 14
    s_add_u32 s26, s26, s{s_gb}
    s_add_u32 s26, s26, {off}
    s_lshl_b32 s27, s{S_J}, 11
    ''')
    for pp in range(8):
        a('s_add_u32 s28, s27, s26')
        toks.append(a(f'buffer_load_dwordx4 {vr(B+8*pp,4)}, v{V_L16}, {WS}, s28 offen sc1'))
        toks.append(a(f'buffer_load_dwordx4 {vr(B+8*pp+4,4)}, v{V_L16}, {WS}, s28 offen offset:1024 sc1'))
        if pp < 7:
            a('s_add_u32 s27, s27, 2048')
            a('s_and_b32 s27, s27, 0x3fff')
    return toks

def gemm_w(a, acc, B, btoks, AW, nwin, lds_addr_fn, pre, first_c, extras=()):
    atoks = list(pre)
    extras = list(extras)
    n = 64
    def issue(k):
        v, off = lds_addr_fn(k)
        atoks.append(a(f'ds_read_b128 {vr(AW + 4*(k % nwin),4)}, v{v} offset:{off}'))
    for k in range(n):
        s, mt = k >> 2, k & 3
        a.wait(atoks[k], btoks[s])
        c = first_c(mt) if s == 0 else vr(acc+4*mt, 4)
        a(f'{M16} {vr(acc+4*mt,4)}, {vr(AW + 4*(k % nwin),4)}, {vr(B+4*s,4)}, {c}')
        if len(atoks) < n and len(atoks) <= k + nwin: issue(len(atoks))
        if extras and k >= 8: a(extras.pop(0))
    for e in extras: a(e)

def gen_p4(a):
    ACC, B, AW, NW, ST, RS = 8, 28, 92, 8, 124, 140
    a.lines(f'''
    s_lshl_b32 s24, s{S_W}, 7
    s_add_u32 s24, s24, s{S_GBN}
    s_add_u32 s24, s24, {O_STIN}
    v_lshlrev_b32 v4, 3, v{V_T}
    v_add_u32 v5, {LDS_WQ}, v{V_L16}
    v_add_u32 v6, {LDS_WQ + 40960}, v{V_L16}
    ''')
    for p in range(8):
        st = a(f'buffer_load_dwordx2 {vr(ST+2*p,2)}, v4, {WS}, s24 offen offset:{512*p} sc1')
    bt = load_bfrags_rot(a, B, S_GBN, O_XIN)
    def addr(k, t=None):
        s, mt = (k >> 2, k & 3) if t is None else (k, t)
        off = s*5120 + mt*1024
        return (5, off) if s < 8 else (6, off - 40960)
    pre = []
    for k in range(NW):
        v, off = addr(k)
        pre.append(a(f'ds_read_b128 {vr(AW+4*k,4)}, v{v} offset:{off}'))
    a.wait(st)
    for l in rstd_from(a, ST, RS, 1.0): a(l)
    gemm_w(a, ACC, B, bt, AW, NW, addr, pre, lambda mt: '0')
    a.lines(f'''
    v_mul_f32 v{RS+2}, {f32(0.25*LOG2E)}, v{RS}
    v_lshrrev_b32 v4, 1, v{V_G}
    v_lshlrev_b32 v4, 9, v4
    v_lshl_add_u32 v4, v{V_T}, 4, v4
    v_and_b32 v7, 1, v{V_G}
    v_lshl_add_u32 v4, v7, 3, v4
    s_lshr_b32 s24, s{S_W}, 1
    s_lshl_b32 s24, s24, 10
    s_and_b32 s25, s{S_W}, 1
    s_lshl_b32 s25, s25, 8
    s_add_u32 s24, s24, s25
    s_lshl_b32 s25, s{S_J}, 13
    s_add_u32 s24, s24, s25
    s_add_u32 s24, s24, s{S_GBN}
    s_add_u32 s24, s24, {O_Q}
    s_add_u32 s25, s24, 4096
    ''')
    for mt in range(4):
        r = ACC + 4*mt
        a(f'v_pk_mul_f32 {vr(r,2)}, {vr(r,2)}, {vr(RS+2,2)} op_sel_hi:[1,0]')
        a(f'v_pk_mul_f32 {vr(r+2,2)}, {vr(r+2,2)}, {vr(RS+2,2)} op_sel_hi:[1,0]')
        a(f'v_cvt_pk_bf16_f32 v{r}, v{r}, v{r+1}')
        a(f'v_cvt_pk_bf16_f32 v{r+1}, v{r+2}, v{r+3}')
        a(f'buffer_store_dwordx2 {vr(r,2)}, v4, {WS}, s{24 + (mt>>1)} offen offset:{2048*(mt&1)} sc1')
    a.lines(f'''
    s_lshr_b32 s24, s{S_J}, 1
    s_cmp_lg_u32 s24, s{S_W}
    s_cbranch_scc1 P4_DONE
    s_lshl_b32 s24, s{S_G}, 1
    s_lshr_b32 s25, s{S_W}, 1
    s_add_u32 s24, s24, s25
    s_lshl_b32 s24, s24, 11
    s_add_u32 s24, s24, s{S_KVN}
    s_and_b32 s25, s{S_W}, 1
    ''')
    K0 = 24
    for half in range(2):
        tk = []
        for s in range(8*half, 8*half+8):
            v, off = addr(s, 4)
            tk.append(a(f'ds_read_b128 {vr(AW+4*(s&7),4)}, v{v} offset:{off}'))
        a.wait_all(vm=False)
        lv = a.label_name('P4V'); lj = a.label_name('P4J')
        a(f's_bitcmp1_b32 s{S_J}, 0')
        a(f's_cbranch_scc1 {lv}')
        for s in range(8*half, 8*half+8):
            a(f'{M16} {vr(K0,4)}, {vr(AW+4*(s&7),4)}, {vr(B+4*s,4)}, {"0" if s == 0 else vr(K0,4)}')
        a(f's_branch {lj}')
        a.raw(f'{lv}:')
        for s in range(8*half, 8*half+8):
            a(f'{M16} {vr(K0,4)}, {vr(B+4*s,4)}, {vr(AW+4*(s&7),4)}, {"0" if s == 0 else vr(K0,4)}')
        a.raw(f'{lj}:')
    a.lines(f'''
    s_bitcmp1_b32 s{S_J}, 0
    s_cbranch_scc1 P4_V
    s_lshl_b32 s25, s25, 8
    s_add_u32 s24, s24, s25
    s_nop 7
    v_pk_mul_f32 {vr(K0,2)}, {vr(K0,2)}, {vr(RS,2)} op_sel_hi:[1,0]
    v_pk_mul_f32 {vr(K0+2,2)}, {vr(K0+2,2)}, {vr(RS,2)} op_sel_hi:[1,0]
    v_cvt_pk_bf16_f32 v{K0}, v{K0}, v{K0+1}
    v_cvt_pk_bf16_f32 v{K0+1}, v{K0+2}, v{K0+3}
    buffer_store_dwordx2 {vr(K0,2)}, v4, {WS}, s24 offen sc1
    s_branch P4_DONE
    P4_V:
    s_lshl_b32 s25, s25, 9
    s_add_u32 s24, s24, s25
    v_lshlrev_b32 v5, 4, v{V_G}
    ds_bpermute_b32 v{ST}, v5, v{RS}
    ds_bpermute_b32 v{ST+1}, v5, v{RS} offset:4
    ds_bpermute_b32 v{ST+2}, v5, v{RS} offset:8
    ds_bpermute_b32 v{ST+3}, v5, v{RS} offset:12
    v_and_b32 v7, 1, v{V_G}
    v_lshlrev_b32 v4, 8, v7
    v_lshl_add_u32 v4, v{V_T}, 4, v4
    v_lshrrev_b32 v7, 1, v{V_G}
    v_lshl_add_u32 v4, v7, 3, v4
    s_waitcnt lgkmcnt(0)
    v_pk_mul_f32 {vr(K0,2)}, {vr(K0,2)}, {vr(ST,2)}
    v_pk_mul_f32 {vr(K0+2,2)}, {vr(K0+2,2)}, {vr(ST+2,2)}
    v_cvt_pk_bf16_f32 v{K0}, v{K0}, v{K0+1}
    v_cvt_pk_bf16_f32 v{K0+1}, v{K0+2}, v{K0+3}
    buffer_store_dwordx2 {vr(K0,2)}, v4, {WS}, s24 offen offset:1024 sc1
    P4_DONE:
    ''')

def gen_k1(a):
    a('s_mov_b32 s3, -1')
    ids(a, 'MAIN_END')
    a('s_waitcnt lgkmcnt(0)')
    a.lines(f'''
    s_mul_i32 s24, s{S_J}, 81920
    s_lshl_b32 s25, s{S_W}, 12
    s_add_u32 s24, s24, s25
    s_add_u32 s24, s24, {WQKV_P}
    s_add_u32 s25, s25, {LDS_WQ}
    ''')
    for R in range(5):
        a('s_mov_b32 m0, s25')
        for i in range(4):
            a(f'buffer_load_dwordx4 v{V_L16}, {WS}, s24 offen offset:{1024*i} lds')
        a('s_add_u32 s24, s24, 16384')
        a('s_add_u32 s25, s25, 16384')
    a.wait_all()
    a('s_barrier')
    a('s_branch P4_START')

def gen_attention(a):
    a.comment('---- attention: 4 q-tiles x 32 key tiles per wave')
    S_IDX, S_KB, S_KO, S_WOFF, S_M0 = 30, 31, 32, 33, 34
    a.lines(f'''
    s_lshr_b32 s26, s{S_W}, 1
    s_and_b32 s27, s{S_W}, 1
    s_lshl_b32 s24, s{S_J}, 13
    s_lshl_b32 s25, s27, 12
    s_add_u32 s24, s24, s25
    s_add_u32 s24, s24, s{S_GB}
    s_add_u32 s24, s24, {O_Q}
    s_lshl_b32 s25, s26, 11
    s_xor_b32 s28, s25, 2048
    s_add_u32 s25, s25, s24
    s_add_u32 s28, s28, s24
    s_lshl_b32 s{S_KB}, s26, 16
    s_add_u32 s{S_KB}, s{S_KB}, s{S_KV}
    s_lshr_b32 s{S_IDX}, s2, 3
    s_lshl_b32 s{S_IDX}, s{S_IDX}, 11
    s_add_u32 s{S_KO}, s{S_IDX}, s{S_KB}
    s_mov_b32 s{S_VMASK}, 0xffff
    s_mov_b32 s{S_VMASK+1}, 0xffff
    v_lshrrev_b32 v4, 1, v{V_G}
    v_lshlrev_b32 v4, 8, v4
    v_lshl_add_u32 v7, v{V_T}, 4, v4
    ''')
    for b in range(2):
        for i in range(8): a(f'v_mov_b32 v{VKV+12*b+4+i}, 0x3f803f80')
    a('s_waitcnt lgkmcnt(0)')
    Kr = lambda i: vr(VKV + 12*(i & 1), 4)
    Vr = lambda i, u: vr(VKV + 12*(i & 1) + 4 + 4*u, 4)
    ktok, vtok = {}, {}
    def ldK(i): ktok[i] = a(f'buffer_load_dwordx4 {Kr(i)}, v{V_L16}, {WS}, s{S_KO} offen')
    def ldV(i):
        a(f's_mov_b64 exec, {sr(S_VMASK,2)}')
        a(f'buffer_load_dwordx4 {Vr(i,0)}, v7, {WS}, s{S_KO} offen offset:1024')
        vtok[i] = a(f'buffer_load_dwordx4 {Vr(i,1)}, v7, {WS}, s{S_KO} offen offset:1536')
        a('s_mov_b64 exec, -1')
    adv = [f's_add_u32 s{S_IDX}, s{S_IDX}, 2048', f's_and_b32 s{S_IDX}, s{S_IDX}, 0xffff', f's_add_u32 s{S_KO}, s{S_IDX}, s{S_KB}']
    ldK(0)
    qt = []
    for sl in range(4):
        qt.append(a(f'buffer_load_dwordx4 {vr(VQ+4*sl,4)}, v{V_L16}, {WS}, s{25 if sl < 2 else 28} offen offset:{1024*(sl&1)}'))
    ldV(0)
    for x in adv: a(x)
    ldK(1)
    groups = []
    def grp(setup, loads): groups.append((setup, loads))
    for R in range(4):
        setup = ([f's_lshl_b32 s{S_WOFF}, s{S_J}, 16', f's_lshl_b32 s{S_M0}, s{S_W}, 12', f's_add_u32 s{S_WOFF}, s{S_WOFF}, s{S_M0}',
                  f's_add_u32 s{S_WOFF}, s{S_WOFF}, {WO_P}', f's_add_u32 m0, s{S_M0}, {LDS_WO}'] if R == 0 else
                 [f's_add_u32 s{S_WOFF}, s{S_WOFF}, 16384', f's_add_u32 m0, m0, 16384'])
        grp(setup, [f'buffer_load_dwordx4 v{V_L16}, {WS}, s{S_WOFF} offen offset:{1024*i} lds' for i in range(4)])
    for G in range(12):
        setup = ([f's_mul_i32 s{S_WOFF}, s{S_J}, {11*16384}', f's_mul_i32 s{S_M0}, s{S_W}, {3*16384}', f's_add_u32 s{S_WOFF}, s{S_WOFF}, s{S_M0}',
                  f's_add_u32 s{S_WOFF}, s{S_WOFF}, {W1_P}'] if G == 0 else [f's_add_u32 s{S_WOFF}, s{S_WOFF}, 4096'])
        grp(setup, [f'buffer_load_dwordx4 {ar(16*G+4*i,4)}, v{V_L16}, {WS}, s{S_WOFF} offen offset:{1024*i}' for i in range(4)])
    for R in range(4):
        setup = ([f's_mul_i32 s{S_WOFF}, s{S_J}, 81920', f's_lshl_b32 s{S_M0}, s{S_W}, 12', f's_add_u32 s{S_WOFF}, s{S_WOFF}, s{S_M0}',
                  f's_add_u32 s{S_WOFF}, s{S_WOFF}, {WQKV_P}', f's_add_u32 m0, s{S_M0}, {LDS_WQ}'] if R == 0 else
                 [f's_add_u32 s{S_WOFF}, s{S_WOFF}, 16384', f's_add_u32 m0, m0, 16384'])
        grp(setup, [f'buffer_load_dwordx4 v{V_L16}, {WS}, s{S_WOFF} offen offset:{1024*i} lds' for i in range(4)])
    for G in range(11):
        setup = ([f's_mul_i32 s{S_WOFF}, s{S_J}, {44*4096}', f's_mul_i32 s{S_M0}, s{S_W}, {11*4096}', f's_add_u32 s{S_WOFF}, s{S_WOFF}, s{S_M0}',
                  f's_add_u32 s{S_WOFF}, s{S_WOFF}, {W2_P}'] if G == 0 else [f's_add_u32 s{S_WOFF}, s{S_WOFF}, 4096'])
        grp(setup, [f'buffer_load_dwordx4 {w2reg(4*G+i)}, v{V_L16}, {WS}, s{S_WOFF} offen offset:{1024*i}' for i in range(4) if 4*G+i < 42])
    assert len(groups) == 31
    Sr = lambda n: VS0 if (n & 1) == 0 else VS1
    def QK(n):
        i, q = n >> 2, n & 3
        return f'{M32} {vr(Sr(n),16)}, {Kr(i)}, {vr(VQ+4*q,4)}, 0'
    def PV(n, u):
        i, q = n >> 2, n & 3
        c = '0' if (i == 0 and u == 0) else vr(VO+16*q, 16)
        return f'{M32} {vr(VO+16*q,16)}, {Vr(i,u)}, {vr(VP+4*u,4)}, {c}'
    a.wait(ktok[0], qt[3])
    a(QK(0))
    a('s_nop 7')
    N = 128
    for n in range(N):
        i, q = n >> 2, n & 3
        S = Sr(n)
        e = lambda k: a(f'v_exp_f32 v{S+k}, v{S+k}')
        c = lambda k: a(f'v_cvt_pk_bf16_f32 v{VP+k}, v{S+2*k}, v{S+2*k+1}')
        x0, x1, x2 = [], [], []
        setup, loads = groups[i] if i < len(groups) else ([], [])
        if q == 0:
            if i + 1 < 32: x1.append(lambda ii=i+1: ldV(ii))
            x2 += setup[:1]
        elif q == 1:
            x0 += setup[1:2]; x1 += setup[2:3]; x2 += setup[3:]
            if len(setup) <= 2: x1 += loads[:1]; x2 += loads[1:2]
        elif q == 2:
            rest = loads[2:] if len(setup) <= 2 else loads
            x0 += [adv[0]] + rest[:1]; x1 += [adv[1]] + rest[1:2]; x2 += [adv[2]] + rest[2:]
        else:
            if i + 2 < 32: x0.append(lambda ii=i+2: ldK(ii))
        def run(xs):
            for x in xs:
                if callable(x): x()
                else: a(x)
        if n + 1 < N:
            if q == 3: a.wait(ktok[i+1])
            a(QK(n+1))
        run(x0)
        e(0); e(1); e(2); e(3); c(0); e(4)
        if n > 0: a(PV(n-1, 1))
        run(x1)
        e(5); c(1); e(6); e(7); c(2); e(8); c(3); e(9)
        if q == 0: a.wait(vtok[i])
        e(10)
        a(PV(n, 0))
        run(x2)
        c(4); e(11); e(12); c(5); e(13); e(14); e(15); c(6); c(7)
    a(PV(N-1, 1))
    return S_WOFF

def gen_att_epilogue(a):
    a.comment('---- pair reduce, range check, normalise, publish O')
    a.lines(f'''
    s_lshl_b32 s24, s{S_W}, 14
    s_lshl_b32 s25, s{S_J}, 11
    s_add_u32 s24, s24, s25
    s_add_u32 s24, s24, s{S_GB}
    s_mul_i32 s25, s{S_W}, 4608
    s_xor_b32 s26, s{S_W}, 2
    s_mul_i32 s26, s26, 4608
    s_add_u32 s25, s25, {LDS_SCR}
    s_add_u32 s26, s26, {LDS_SCR}
    ''')
    a(f'buffer_load_dwordx4 v[128:131], v{V_L16}, {WS}, s24 offen offset:{O_XIN}')
    xt = a(f'buffer_load_dwordx4 v[132:135], v{V_L16}, {WS}, s24 offen offset:{O_XIN+1024}')
    a.lines(f'''
    v_add_u32 v4, s25, v{V_L16}
    v_add_u32 v5, s26, v{V_L16}
    v_lshlrev_b32 v6, 2, v0
    v_add_u32 v24, s25, v6
    v_add_u32 v25, s26, v6
    ''')
    for sl in (2, 3):
        o = VO + 16*sl
        a(f'ds_write_b128 v4, {vr(o,4)} offset:{2048*(sl-2)}')
        a(f'ds_write_b128 v4, {vr(o+4,4)} offset:{2048*(sl-2)+1024}')
        a(f'ds_write_b32 v24, v{o+8} offset:{4096+256*(sl-2)}')
    a.wait_all(vm=False)
    a('s_barrier')
    T = 28
    for sl in (0, 1):
        a(f'ds_read_b128 {vr(T+12*sl,4)}, v5 offset:{2048*sl}')
        a(f'ds_read_b128 {vr(T+12*sl+4,4)}, v5 offset:{2048*sl+1024}')
        a(f'ds_read_b32 v{T+12*sl+8}, v25 offset:{4096+256*sl}')
    a.lines(f'''
    v_and_b32 v4, 1, v{V_G}
    v_lshlrev_b32 v4, 14, v4
    v_add_u32 v4, v4, v7
    s_lshl_b32 s24, s{S_J}, 1
    s_and_b32 s25, s{S_W}, 1
    s_add_u32 s24, s24, s25
    s_lshl_b32 s24, s24, 10
    s_lshr_b32 s25, s{S_W}, 1
    s_lshl_b32 s25, s25, 9
    s_add_u32 s24, s24, s25
    s_add_u32 s24, s24, s{S_GB}
    s_add_u32 s36, s24, {O_O}
    s_add_u32 s37, s36, 32768
    ''')
    a.wait_all(vm=False)
    for sl in (0, 1):
        o = VO + 16*sl
        for k in range(4):
            a(f'v_pk_add_f32 {vr(o+2*k,2)}, {vr(o+2*k,2)}, {vr(T+12*sl+2*k,2)}')
        a(f'v_add_f32 v{o+8}, v{o+8}, v{T+12*sl+8}')
    a.lines(f'''
    v_maximum3_f32 v24, |v{VO}|, |v{VO+1}|, |v{VO+2}|
    v_maximum3_f32 v25, |v{VO+16}|, |v{VO+17}|, |v{VO+18}|
    v_maximum3_f32 v24, |v{VO+3}|, |v{VO+4}|, v24
    v_maximum3_f32 v25, |v{VO+19}|, |v{VO+20}|, v25
    v_maximum3_f32 v24, |v{VO+5}|, |v{VO+6}|, v24
    v_maximum3_f32 v25, |v{VO+21}|, |v{VO+22}|, v25
    v_maximum3_f32 v24, |v{VO+7}|, |v{VO+23}|, v24
    v_minimum3_f32 v26, v{VO+8}, v{VO+24}, v{VO+24}
    v_maximum3_f32 v27, v{VO+8}, v{VO+24}, v{VO+24}
    v_maximum3_f32 v24, v24, v25, v25
    v_cmp_le_f32 s[24:25], s40, v26
    v_cmp_ge_f32 s[26:27], s41, v27
    v_cmp_ge_f32 vcc, s42, v24
    s_and_b64 s[24:25], s[24:25], s[26:27]
    s_and_b64 s[24:25], s[24:25], vcc
    s_cmp_eq_u64 s[24:25], -1
    s_cbranch_scc0 FALLBACK
    ATT_NORM:
    ''')
    for sl in (0, 1):
        o = VO + 16*sl
        a(f'v_rcp_f32 v{o+8}, v{o+8}')
    for sl in (0, 1):
        o = VO + 16*sl
        for k in range(4):
            a(f'v_pk_mul_f32 {vr(o+2*k,2)}, {vr(o+2*k,2)}, {vr(o+8,2)} op_sel_hi:[1,0]')
        for k in range(4):
            a(f'v_cvt_pk_bf16_f32 v{o+k}, v{o+2*k}, v{o+2*k+1}')
        a(f'buffer_store_dwordx4 {vr(o,4)}, v4, {WS}, s{36+sl} offen sc1')
    return xt

def gen_fallback(a):
    a.comment('---- fallback: true-max softmax')
    a.raw('FALLBACK:')
    K, V0, V1, NM = 136, 140, 144, 96
    a.wait_all()
    for i in range(8): a(f'v_mov_b32 v{V0+i}, 0x3f803f80')
    for sl in (0, 1):
        o = VO + 16*sl
        l1 = a.label_name('FB1'); l2 = a.label_name('FB2')
        a(f'v_mov_b32 v56, 0xff800000')
        a(f's_mov_b32 s24, s{S_KV}')
        a(f's_add_u32 s25, s{S_KV}, {KV_SZ}')
        a.raw(f'{l1}:')
        a(f'buffer_load_dwordx4 {vr(K,4)}, v{V_L16}, {WS}, s24 offen')
        a.wait_all()
        a(f'{M32} {vr(VS0,16)}, {vr(K,4)}, {vr(VQ+4*sl,4)}, 0')
        for k in range(8):
            a(f'v_max3_f32 v56, v{VS0+2*k}, v{VS0+2*k+1}, v56')
        a('s_add_u32 s24, s24, 2048')
        a('s_cmp_lt_u32 s24, s25')
        a(f's_cbranch_scc1 {l1}')
        a('v_mov_b32 v57, v56')
        a('v_permlane32_swap_b32 v56, v57')
        a('v_max_f32 v56, v56, v57')
        for k in range(16):
            a(f'v_sub_f32 v{NM+k}, 0, v56')
            a(f'v_mov_b32 v{o+k}, 0')
        a(f's_mov_b32 s24, s{S_KV}')
        a.raw(f'{l2}:')
        a(f'buffer_load_dwordx4 {vr(K,4)}, v{V_L16}, {WS}, s24 offen')
        a(f's_mov_b64 exec, {sr(S_VMASK,2)}')
        a(f'buffer_load_dwordx4 {vr(V0,4)}, v7, {WS}, s24 offen offset:1024')
        a(f'buffer_load_dwordx4 {vr(V1,4)}, v7, {WS}, s24 offen offset:1536')
        a('s_mov_b64 exec, -1')
        a.wait_all()
        a(f'{M32} {vr(VS0,16)}, {vr(K,4)}, {vr(VQ+4*sl,4)}, {vr(NM,16)}')
        for k in range(16): a(f'v_exp_f32 v{VS0+k}, v{VS0+k}')
        for k in range(8): a(f'v_cvt_pk_bf16_f32 v{VP+k}, v{VS0+2*k}, v{VS0+2*k+1}')
        a(f'{M32} {vr(o,16)}, {vr(V0,4)}, {vr(VP,4)}, {vr(o,16)}')
        a(f'{M32} {vr(o,16)}, {vr(V1,4)}, {vr(VP+4,4)}, {vr(o,16)}')
        a('s_add_u32 s24, s24, 2048')
        a('s_cmp_lt_u32 s24, s25')
        a('s_nop 15')
        a(f's_cbranch_scc1 {l2}')
    a('s_nop 15')
    a('s_branch ATT_NORM')

XR = 8
def gen_p1(a, xt, S_WOFF):
    a.comment('---- P1: output projection + residual')
    B, AW, NW = 24, 88, 12
    flag_prep(a)
    a.wait(xt)
    for i in range(8):
        a(f'v_lshlrev_b32 v{XR+2*i}, 16, v{128+i}')
        a(f'v_and_b32 v{XR+2*i+1}, 0xffff0000, v{128+i}')
    addr = lambda k: (V_L16, LDS_WO + 1024*k)
    pre = []
    for k in range(NW):
        v, off = addr(k)
        pre.append(a(f'ds_read_b128 {vr(AW+4*k,4)}, v{v} offset:{off}'))
    a.wait_all(lg=False)
    flag_set(a, F_O)
    poll_all(a, F_O)
    bt = load_bfrags_rot(a, B, S_GB, O_O)
    a(f'buffer_load_dwordx4 {w2reg(42)}, v{V_L16}, {WS}, s{S_WOFF} offen offset:2048')
    a(f'buffer_load_dwordx4 {w2reg(43)}, v{V_L16}, {WS}, s{S_WOFF} offen offset:3072')
    a.lines(f'''
    s_mul_i32 s24, s{S_J}, 81920
    s_lshl_b32 s25, s{S_W}, 12
    s_add_u32 s24, s24, s25
    s_add_u32 s24, s24, {WQKV_P + 65536}
    s_add_u32 m0, s25, {LDS_WQ + 65536}
    ''')
    for i in range(4):
        a(f'buffer_load_dwordx4 v{V_L16}, {WS}, s24 offen offset:{1024*i} lds')
    gemm_w(a, XR, B, bt, AW, NW, addr, pre, lambda mt: vr(XR+4*mt, 4))
    x_publish(a, XR, 24, 32, S_GB, O_X1, O_ST1)
    a.wait_all(lg=False)
    flag_set(a, F_X1)

def gen_p23(a, deferred):
    a.comment('---- P2: LN + FFN1 + silu')
    B0, B1, BW, NBW, ACC, TMP, PK, RS, ST = 24, 68, 68, 6, (92, 104), 116, 128, 134, 24
    S_HF, S_HH, S_HP, S_HB = 30, 31, 32, 33
    poll_all(a, F_X1)
    a.lines(f'''
    s_add_u32 s24, s{S_GB}, {O_ST1}
    v_lshlrev_b32 v4, 3, v0
    s_lshl_b32 s25, s{S_W}, 12
    s_add_u32 s26, s25, s{S_GB}
    s_add_u32 s26, s26, {O_X1}
    s_add_u32 m0, s25, {LDS_WO}
    ''')
    dma = []
    for nt in range(4):
        for i in range(4):
            t = a(f'buffer_load_dwordx4 v{V_L16}, {WS}, s26 offen offset:{1024*i} sc1 lds')
        dma.append(t)
        if nt == 0:
            for p in range(8):
                st = a(f'buffer_load_dwordx2 {vr(ST+2*p,2)}, v4, {WS}, s24 offen offset:{512*p} sc1')
        if nt < 3:
            a('s_add_u32 s26, s26, 16384')
            a('s_add_u32 m0, m0, 16384')
    a.lines(f'''
    s_lshr_b32 s24, s{S_J}, 1
    s_mul_i32 s24, s24, 11
    s_and_b32 s25, s{S_J}, 1
    s_lshl_b32 s26, s25, 2
    s_add_u32 s26, s26, s{S_W}
    s_add_u32 s26, s26, s24
    s_lshl_b32 s26, s26, 10
    s_add_u32 s27, s{S_GB}, {O_H}
    s_add_u32 s{S_HF}, s26, s27
    s_mul_i32 s25, s25, 3
    s_add_u32 s25, s25, s{S_W}
    s_lshl_b32 s25, s25, 9
    s_add_u32 s24, s24, 8
    s_lshl_b32 s24, s24, 10
    s_add_u32 s24, s24, s25
    s_add_u32 s24, s24, s27
    s_cmp_eq_u32 s{S_W}, 3
    s_cselect_b32 s{S_HH}, {WS_USED}, s24
    s_lshl_b32 s24, s{S_W}, 5
    s_add_u32 s24, s24, s{S_GB}
    s_add_u32 s{S_HP}, s24, {O_FLAG + F_H}
    s_mul_i32 s24, s{S_W}, {11*1024}
    s_add_u32 s{S_HB}, s24, s27
    v_lshrrev_b32 v5, 1, v{V_G}
    v_lshlrev_b32 v5, 8, v5
    v_lshl_add_u32 v5, v{V_T}, 4, v5
    v_and_b32 v6, 1, v{V_G}
    v_lshl_add_u32 v5, v6, 3, v5
    v_and_b32 v6, 7, v0
    v_lshlrev_b32 v6, 2, v6
    ''')
    cost = lambda s: 8 if s.split()[0] in TRANS else 4
    def epi(nt):
        A = ACC[nt & 1]
        L = [f'v_mul_f32 v{A+k}, v{A+k}, v{RS+nt}' for k in range(12)]
        L += [f'v_exp_f32 v{TMP+k}, -v{A+k}' for k in range(12)]
        L += [f'v_add_f32 v{TMP+k}, 1.0, v{TMP+k}' for k in range(12)]
        L += [f'v_rcp_f32 v{TMP+k}, v{TMP+k}' for k in range(12)]
        L += [f'v_mul_f32 v{A+k}, v{A+k}, v{TMP+k}' for k in range(12)]
        L += [f'v_cvt_pk_bf16_f32 v{PK+k}, v{A+2*k}, v{A+2*k+1}' for k in range(6)]
        return L
    hst = {}
    def hstore(nt):
        a(f'buffer_store_dwordx4 {vr(PK,4)}, v{V_L16}, {WS}, s{S_HF} offen sc1')
        hst[nt] = a(f'buffer_store_dwordx2 {vr(PK+4,2)}, v5, {WS}, s{S_HH} offen sc1')
        a(f's_add_u32 s{S_HF}, s{S_HF}, {44*1024}')
        a(f's_add_u32 s{S_HH}, s{S_HH}, {44*1024}')
    ptok = {}
    def hpoll_issue(nt):
        ptok[nt] = a(f'buffer_load_dword v4, v6, {WS}, s{S_HP} offen offset:{128*nt} sc1')
    def hpoll_check(nt):
        slow = a.label_name('HSLOW'); ok = a.label_name('HOK')
        a.wait(ptok[nt])
        a('v_cmp_eq_u32 vcc, 0, v4')
        a(f's_cbranch_vccnz {slow}')
        a.raw(f'{ok}:')
        def d(b):
            lp = b.label_name('HLP')
            b.raw(f'{slow}:')
            b('s_mov_b32 s24, 0')
            b.raw(f'{lp}:')
            b(f'buffer_load_dword v4, v6, {WS}, s{S_HP} offen offset:{128*nt} sc1')
            b('s_add_u32 s24, s24, 1')
            b('s_waitcnt vmcnt(0)')
            b(f's_cmp_gt_u32 s24, {POLL_MAX}')
            b(f's_cbranch_scc1 {ok}')
            b('v_cmp_eq_u32 vcc, 0, v4')
            b(f's_cbranch_vccnz {lp}')
            b(f's_branch {ok}')
        deferred.append(d)
    hb = {}
    def hload_list(nt):
        Bb = B0 if (nt & 1) == 0 else B1
        hb[nt] = [None]*11
        out = []
        for s in range(11):
            def f(s=s):
                if s and s % 4 == 0: a(f's_add_u32 s{S_HB}, s{S_HB}, 4096')
                hb[nt][s] = a(f'buffer_load_dwordx4 {vr(Bb+4*s,4)}, v{V_L16}, {WS}, s{S_HB} offen offset:{1024*(s%4)} sc1')
                if s == 10: a(f's_add_u32 s{S_HB}, s{S_HB}, {44*1024 - 8192}')
            out.append(f)
        return out
    stl = rstd_from(a, ST, RS, LOG2E)
    stl += [f'v_mov_b32 v{RS+2}, v{RS}', f'v_permlane32_swap_b32 v{RS}, v{RS+2}',
            f'v_mov_b32 v{RS+1}, v{RS}', f'v_mov_b32 v{RS+3}, v{RS+2}',
            f'v_permlane16_swap_b32 v{RS}, v{RS+1}', f'v_permlane16_swap_b32 v{RS+2}, v{RS+3}']
    btok = []
    def bread():
        k = len(btok)
        if k >= 64: return
        if k % 16 == 0:
            a.wait(dma[k // 16]); a('s_barrier')
        btok.append(a(f'ds_read_b128 {vr(BW+4*(k % NBW),4)}, v{V_L16} offset:{LDS_WO + 1024*k}'))
    for _ in range(NBW - 1): bread()
    pend = []
    for nt in range(4):
        A = ACC[nt & 1]
        ex = stl if nt == 0 else epi(nt-1)
        if nt == 0: a.wait(st)
        credit = 0.0
        for ks in range(16):
            k = nt*16 + ks
            a.wait(btok[k])
            for i in range(3):
                a(f'{M16} {vr(A+4*i,4)}, {w1reg(i,ks)}, {vr(BW+4*(k % NBW),4)}, {"0" if ks == 0 else vr(A+4*i,4)}')
                credit += 9.5
                if i == 0: bread(); credit -= 4
                if i == 1 and nt == 3:
                    if ks == 5: hpoll_issue(0)
                    if ks == 11: hpoll_check(0); pend = hload_list(0)
                if nt == 3 and pend and i > 0 and ks >= 11: pend.pop(0)(); credit -= 4
                if ks*3 + i < 3: credit = 0; continue
                while ex and credit >= cost(ex[0]):
                    credit -= cost(ex[0]); a(ex.pop(0))
        for x in pend: x()
        pend = []
        for x in ex: a(x)
        if nt >= 2:
            a.wait(hst[nt-2]); flag_set(a, F_H + 128*(nt-2))
        if nt >= 1: hstore(nt-1)
    for x in epi(3): a(x)
    hpoll_issue(1)
    hstore(3)
    AC2 = (112, 128)
    a.lines(f'''
    s_lshl_b32 s24, s{S_W}, 12
    v_add_u32 v5, s24, v{V_L16}
    ''')
    for nt in range(4):
        A = AC2[nt & 1]; Bb = B0 if (nt & 1) == 0 else B1
        pend = []; wr = []
        if nt > 0:
            P = AC2[(nt-1) & 1]
            wr = [f'ds_write_b128 v5, {vr(P+4*mt,4)} offset:{16384*(nt-1) + 1024*mt}' for mt in range(4)]
        for s in range(11):
            a.wait(hb[nt][s])
            for mt in range(4):
                a(f'{M16} {vr(A+4*mt,4)}, {w2reg(4*s+mt)}, {vr(Bb+4*s,4)}, {"0" if s == 0 else vr(A+4*mt,4)}')
                if s == 0 and mt == 0:
                    if nt == 1: a.wait(hst[3]); flag_set(a, F_H + 128*3)
                    if nt in (1, 2): hpoll_issue(nt+1)
                    if nt == 2: a('s_barrier')
                if s == 2 and wr: a(wr.pop(0))
                if s == 5 and mt == 0 and nt < 3:
                    hpoll_check(nt+1)
                    if nt == 0: a.wait(hst[2]); flag_set(a, F_H + 128*2)
                    pend = hload_list(nt+1)
                elif pend: pend.pop(0)()
    P = AC2[1]
    for mt in range(4):
        a(f'ds_write_b128 v5, {vr(P+4*mt,4)} offset:{16384*3 + 1024*mt}')
    a.lines(f'''
    s_lshl_b32 s24, s{S_W}, 14
    v_add_u32 v5, s24, v{V_L16}
    s_mov_b32 s24, {f32(LN2)}
    s_mov_b32 s25, {f32(LN2)}
    ''')
    a.wait_all(vm=False)
    a('s_barrier')
    rt = []
    for k in range(16):
        rt.append(a(f'ds_read_b128 {vr(24+4*k,4)}, v5 offset:{1024*k}'))
    a.wait(rt[7])
    for k in range(8): a(f'v_pk_add_f32 {vr(24+2*k,2)}, {vr(24+2*k,2)}, {vr(40+2*k,2)}')
    a.wait(rt[15])
    for k in range(8): a(f'v_pk_add_f32 {vr(56+2*k,2)}, {vr(56+2*k,2)}, {vr(72+2*k,2)}')
    for k in range(8): a(f'v_pk_add_f32 {vr(24+2*k,2)}, {vr(24+2*k,2)}, {vr(56+2*k,2)}')
    for k in range(8): a(f'v_pk_fma_f32 {vr(XR+2*k,2)}, {vr(24+2*k,2)}, s[24:25], {vr(XR+2*k,2)}')

def gen_out(a):
    a.comment('---- final output')
    a.lines(f'''
    s_lshl_b32 s24, s{S_G}, 16
    s_lshl_b32 s25, s{S_W}, 14
    s_add_u32 s24, s24, s25
    s_lshl_b32 s25, s{S_J}, 7
    s_add_u32 s24, s24, s25
    v_lshlrev_b32 v4, 10, v{V_T}
    v_lshl_add_u32 v4, v{V_G}, 3, v4
    ''')
    for i in range(8):
        a(f'v_cvt_pk_bf16_f32 v{24+i}, v{XR+2*i}, v{XR+2*i+1}')
    for mt in range(4):
        a(f'buffer_store_dwordx2 {vr(24+2*mt,2)}, v4, {SB}, s24 offen offset:{32*mt}')

def gen_main(a):
    deferred = []
    a.raw('MAIN:')
    ids(a, 'MAIN_END')
    a.lines(f'''
    s_load_dwordx2 s[8:9], s[0:1], 64
    s_mov_b32 s10, {2048*1024}
    s_mov_b32 s11, 0x20000
    s_mov_b32 s40, {f32(2.0**-60)}
    s_mov_b32 s41, {f32(2.0**60)}
    s_mov_b32 s42, {f32(2.0**120)}
    ''')
    s_woff = gen_attention(a)
    xt = gen_att_epilogue(a)
    gen_p1(a, xt, s_woff)
    gen_p23(a, deferred)
    a.lines(f'''
    s_cmp_eq_u32 s{S_L}, 0
    s_cbranch_scc1 NEXT_LAYER
    ''')
    gen_out(a)
    a('s_endpgm')
    a.raw('NEXT_LAYER:')
    x_publish(a, XR, 24, 32, S_GBN, O_XIN, O_STIN)
    a.wait_all(lg=False)
    flag_set(a, F_X2)
    poll_all(a, F_X2)
    a.wait_all()
    a.raw('P4_START:')
    gen_p4(a)
    a.raw('MAIN_END:')
    a('s_endpgm')
    gen_fallback(a)
    for d in deferred: d(a)

KD = '''.amdhsa_kernel {name}
  .amdhsa_next_free_vgpr {nv}
  .amdhsa_next_free_sgpr 64
  .amdhsa_accum_offset {acc}
  .amdhsa_group_segment_fixed_size 0
  .amdhsa_kernarg_size 88
  .amdhsa_user_sgpr_count 2
  .amdhsa_user_sgpr_kernarg_segment_ptr 1
  .amdhsa_system_sgpr_workgroup_id_x 1
.end_amdhsa_kernel
'''
def entry(a, name):
    a.raw(f'.globl {name}'); a.raw('.p2align 8'); a.raw(f'.type {name},@function'); a.raw(f'{name}:')

def build(launch_sel=None):
    hdr = open('cdna_kernels/' + NAME + '.s.ref').read().split('; Override launch')[0]
    launches = [('pack_kernel', 20480), ('qkv0_kernel', LDS_TOTAL), ('layer0_kernel', LDS_TOTAL), ('layer1_kernel', LDS_TOTAL)]
    if launch_sel is not None: launches = launches[:launch_sel]
    out = hdr
    for n, lds in launches:
        out += f'; @launch kernel={n} grid=(256,1,1) block=(256,1,1) lds={lds}\n'
    a = Asm()
    a.raw('.amdgcn_target "amdgcn-amd-amdhsa--gfx950"'); a.raw('.text')
    entry(a, 'pack_kernel'); gen_k0(a)
    entry(a, 'qkv0_kernel'); gen_k1(a)
    entry(a, 'layer1_kernel'); a('s_mov_b32 s3, 1'); a('s_branch MAIN')
    entry(a, 'layer0_kernel'); a('s_mov_b32 s3, 0')
    gen_main(a)
    out += a.text()
    out += '.section .rodata,"a"\n'
    for n, nv, acc in (('pack_kernel', 64, 64), ('qkv0_kernel', 512, 256), ('layer0_kernel', 512, 256), ('layer1_kernel', 512, 256)):
        out += '.p2align 6\n' + KD.format(name=n, nv=nv, acc=acc)
    sys.stderr.write(f'instructions: {len(a.ins)}, nop states inserted: {a.nops}\n')
    return out

if __name__ == '__main__':
    dst = sys.argv[1] if len(sys.argv) > 1 else 'cdna_kernels/' + NAME + '.s'
    open(dst, 'w').write(build())
```

```python
WQKV_P = 0x000000
WO_P   = 0x0A0000
W1_P   = 0x120000
W2_P   = 0x280000
KV0    = 0x3E0000
KV_SZ  = 0x20000
GB0    = 0x800000
GB_L   = 0x1000000
GB_G   = 0x80000
O_XIN, O_Q, O_O, O_X1, O_H = 0x0, 0x10000, 0x20000, 0x30000, 0x40000
O_STIN, O_ST1 = 0x6C000, 0x6D000
FLAGS = 0x420000
F_O, F_X1, F_H, F_X2, F_XCC = 0, 128, 256, 768, 896
XFL = 0x430000
PROF_OFF = 0x600000
WS_USED = GB0 + 2 * GB_L
assert WO_P == WQKV_P + 8 * 81920 and W1_P == WO_P + 0x80000 and W2_P == W1_P + 88 * 16384
assert KV0 == W2_P + 352 * 4096 and KV0 + 2 * KV_SZ <= GB0
```

```python
import sys, struct, math, os
OPT = lambda k, d=0: int(os.environ.get(k, d))
from dsl import *
from layout import *

def f32(x): return '0x%08x' % struct.unpack('<I', struct.pack('<f', x))[0]
LOG2E = 1.4426950408889634
LN2 = 0.6931471805599453
M16 = 'v_mfma_f32_16x16x32_bf16'
M32 = 'v_mfma_f32_32x32x16_bf16'
NAME = 'interleave_layers__grouped_kv_mqa__dense_activation_silu__prompt'

S_L = 3
SRD_WS = 4
SRD_B = 8
S_G, S_J, S_W = 12, 13, 14
S_GB, S_GBN, S_KV, S_KVN = 15, 16, 17, 18
S_VMASK = 20
S_T = 24
WS = sr(SRD_WS, 4); SB = sr(SRD_B, 4)
V_L16, V_T, V_G = 1, 2, 3

PROF = False
STAMP_OP = 's_memtime'
STAMPS = []
def stamp(a, name):
    if not PROF: return
    i = len(STAMPS); STAMPS.append(name)
    assert i < 26
    a(f'{STAMP_OP} s[70:71]')
    a.wait_all(vm=False)
    a(f's_mov_b32 s{72+i}, s70')
def stamp_dump(a):
    if not PROF: return
    a('s_memrealtime s[70:71]')
    a.wait_all()
    a.lines(f'''
    s_mov_b32 s98, s70
    s_lshl_b32 s24, s2, 2
    s_add_u32 s24, s24, s{S_W}
    s_lshl_b32 s24, s24, 7
    s_add_u32 s25, s{S_L}, 1
    s_lshl_b32 s25, s25, 17
    s_add_u32 s24, s24, s25
    s_add_u32 s24, s24, {PROF_OFF}
    s_mov_b64 exec, 1
    ''')
    for i in range(28):
        a(f'v_mov_b32 v4, s{72 + i}')
        a(f'buffer_store_dword v4, off, {WS}, s24 offset:{4*i}')
    a('s_mov_b64 exec, -1')

def ids(a, end):
    a.lines(f'''
    s_cmp_ge_u32 s2, 256
    s_cbranch_scc1 {end}
    s_load_dwordx2 s[4:5], s[0:1], 80
    v_lshrrev_b32 v4, 6, v0
    s_and_b32 s24, s2, 7
    s_lshr_b32 s25, s2, 3
    v_readfirstlane_b32 s{S_W}, v4
    s_and_b32 s{S_J}, s25, 7
    s_lshr_b32 s25, s25, 3
    s_lshl_b32 s{S_G}, s24, 2
    s_add_u32 s{S_G}, s{S_G}, s25
    v_and_b32 v0, 63, v0
    v_lshlrev_b32 v{V_L16}, 4, v0
    v_and_b32 v{V_T}, 15, v0
    v_lshrrev_b32 v{V_G}, 4, v0
    s_mov_b32 s6, {WS_USED}
    s_mov_b32 s7, 0x20000
    s_mul_i32 s{S_GB}, s{S_L}, {GB_L}
    s_mul_i32 s24, s{S_G}, {GB_G}
    s_add_u32 s{S_GB}, s{S_GB}, s24
    s_add_u32 s{S_GB}, s{S_GB}, {GB0}
    s_add_u32 s{S_GBN}, s{S_GB}, {GB_L}
    s_mul_i32 s{S_KV}, s{S_L}, {KV_SZ}
    s_add_u32 s{S_KV}, s{S_KV}, {KV0}
    s_add_u32 s{S_KVN}, s{S_KV}, {KV_SZ}
    ''')

def x_publish_addr(a, sx, sst, s_gb, o_x, o_st):
    a.lines(f'''
    s_lshl_b32 s24, s{S_W}, 14
    s_lshl_b32 s25, s{S_J}, 11
    s_add_u32 s24, s24, s25
    s_add_u32 s24, s24, s{s_gb}
    s_add_u32 s{sx}, s24, {o_x}
    s_lshl_b32 s25, s{S_J}, 9
    s_lshl_b32 s26, s{S_W}, 7
    s_add_u32 s25, s25, s26
    s_add_u32 s25, s25, s{s_gb}
    s_add_u32 s{sst}, s25, {o_st}
    ''')
def st_voff(a, v):
    a(f'v_lshrrev_b32 v{v}, 1, v{V_G}')
    a(f'v_lshlrev_b32 v{v}, 2, v{v}')
    a(f'v_lshl_add_u32 v{v}, v{V_T}, 3, v{v}')
def x_publish(a, acc, pk, tmp, sx, sst, vst, have_pk=False, sc=''):
    for h in range(2):
        if not have_pk:
            for i in range(4*h, 4*h+4):
                a(f'v_cvt_pk_bf16_f32 v{pk+i}, v{acc+2*i}, v{acc+2*i+1}')
        a(f'buffer_store_dwordx4 {vr(pk+4*h,4)}, v{V_L16}, {WS}, s{sx} offen offset:{1024*h} {sc}')
    s, q = tmp, tmp + 2
    a(f'v_pk_add_f32 {vr(s,2)}, {vr(acc,2)}, {vr(acc+2,2)}')
    a(f'v_pk_mul_f32 {vr(q,2)}, {vr(acc,2)}, {vr(acc,2)}')
    for i in range(1, 8):
        if i > 1: a(f'v_pk_add_f32 {vr(s,2)}, {vr(s,2)}, {vr(acc+2*i,2)}')
        a(f'v_pk_fma_f32 {vr(q,2)}, {vr(acc+2*i,2)}, {vr(acc+2*i,2)}, {vr(q,2)}')
    a(f'v_add_f32 v{s}, v{s}, v{s+1}')
    a(f'v_add_f32 v{q}, v{q}, v{q+1}')
    a(f'v_permlane32_swap_b32 v{s}, v{q}')
    a(f'v_add_f32 v{s}, v{s}, v{q}')
    a(f'v_mov_b32 v{q}, v{s}')
    a(f'v_permlane16_swap_b32 v{s}, v{q}')
    a(f'v_add_f32 v{s}, v{s}, v{q}')
    return a(f'buffer_store_dword v{s}, v{vst}, {WS}, s{sst} offen {sc}')

def rstd_from(a, st, out, scale):
    L = []
    for i in range(4): L.append(f'v_pk_add_f32 {vr(st+4*i,2)}, {vr(st+4*i,2)}, {vr(st+4*i+2,2)}')
    L.append(f'v_pk_add_f32 {vr(st,2)}, {vr(st,2)}, {vr(st+4,2)}')
    L.append(f'v_pk_add_f32 {vr(st+8,2)}, {vr(st+8,2)}, {vr(st+12,2)}')
    L.append(f'v_pk_add_f32 {vr(st,2)}, {vr(st,2)}, {vr(st+8,2)}')
    L.append(f'v_mul_f32 v{st}, {f32(1/512)}, v{st}')
    L.append(f'v_mul_f32 v{st+1}, {f32(1/512)}, v{st+1}')
    L.append(f'v_fma_f32 v{st+1}, -v{st}, v{st}, v{st+1}')
    L.append(f'v_max_f32 v{st+1}, 0, v{st+1}')
    L.append(f'v_add_f32 v{st+1}, {f32(1e-5)}, v{st+1}')
    L.append(f'v_rsq_f32 v{out}, v{st+1}')
    if scale != 1.0: L.append(f'v_mul_f32 v{out}, {f32(scale)}, v{out}')
    return L

def gen_k0(a):
    end = 'K0_END'
    a('s_mov_b32 s3, 0')
    ids(a, end)
    a.lines('''
    s_load_dwordx4 s[40:43], s[0:1], 0
    s_load_dwordx4 s[44:47], s[0:1], 16
    s_load_dwordx2 s[48:49], s[0:1], 32
    s_load_dwordx4 s[52:55], s[0:1], 48
    s_waitcnt lgkmcnt(0)
    ''')
    a.lines(f'''
    s_mov_b32 s8, s40
    s_mov_b32 s9, s41
    s_mov_b32 s10, {2048*1024}
    s_mov_b32 s11, 0x20000
    s_lshl_b32 s24, s{S_G}, 16
    s_lshl_b32 s25, s{S_W}, 14
    s_add_u32 s24, s24, s25
    s_lshl_b32 s25, s{S_J}, 7
    s_add_u32 s24, s24, s25
    v_lshlrev_b32 v4, 10, v{V_T}
    v_lshl_add_u32 v4, v{V_G}, 3, v4
    ''')
    for mt in range(4):
        t = a(f'buffer_load_dwordx2 {vr(8+2*mt,2)}, v4, {SB}, s24 offen offset:{32*mt}')
    a.lines(f'''
    s_cmp_ge_u32 s{S_J}, 2
    s_cbranch_scc1 K0_NOZ
    s_cmp_lg_u32 s{S_W}, 0
    s_cbranch_scc1 K0_NOZ
    s_lshl_b32 s24, s{S_J}, 15
    s_lshl_b32 s25, s{S_G}, 10
    s_add_u32 s24, s24, s25
    s_add_u32 s24, s24, {FLAGS}
    v_mov_b32 v40, 0
    v_mov_b32 v41, 0
    v_mov_b32 v42, 0
    v_mov_b32 v43, 0
    buffer_store_dwordx4 v[40:43], v{V_L16}, {WS}, s24 offen sc1
    K0_NOZ:
    ''')
    a.wait_all()
    for i in range(8):
        a(f'v_lshlrev_b32 v{16+2*i}, 16, v{8+i}')
        a(f'v_and_b32 v{17+2*i}, 0xffff0000, v{8+i}')
    x_publish_addr(a, 28, 29, S_GB, O_XIN, O_STIN)
    st_voff(a, 36)
    x_publish(a, 16, 8, 32, 28, 29, 36, have_pk=True, sc='sc1')
    a.lines(f'''
    s_cmp_ge_u32 s2, 128
    s_cbranch_scc1 K0_UNIT
    ''')
    a.lines(f'''
    s_cmp_ge_u32 s2, 88
    s_cbranch_scc1 K0_SQ
    s_mov_b32 s8, s52
    s_mov_b32 s9, s53
    s_cmp_lt_u32 s2, 86
    s_cselect_b32 s10, {512*2752}, 0
    s_mov_b32 s30, 2752
    s_lshl_b32 s31, s2, 5
    s_lshl_b32 s32, s2, 14
    s_add_u32 s32, s32, {W1_P}
    s_mov_b32 s33, 1024
    s_mov_b32 s34, 0
    s_branch K0_STRIP
    K0_SQ:
    s_cmp_ge_u32 s2, 120
    s_cbranch_scc1 K0_SKV
    s_sub_u32 s24, s2, 88
    s_mov_b32 s8, s42
    s_mov_b32 s9, s43
    s_mov_b32 s10, {512*1024}
    s_mov_b32 s30, 1024
    s_lshl_b32 s31, s24, 5
    s_lshr_b32 s25, s24, 2
    s_and_b32 s26, s24, 3
    s_mul_i32 s32, s25, 81920
    s_lshl_b32 s26, s26, 10
    s_add_u32 s32, s32, s26
    s_add_u32 s32, s32, {WQKV_P}
    s_mov_b32 s33, 5120
    s_lshl_b32 s34, s25, 1
    s_branch K0_STRIP
    K0_SKV:
    s_sub_u32 s25, s2, 120
    s_bitcmp1_b32 s25, 0
    s_cselect_b32 s8, s46, s44
    s_cselect_b32 s9, s47, s45
    s_mov_b32 s10, {512*32}
    s_mov_b32 s30, 32
    s_mov_b32 s31, 0
    s_mul_i32 s32, s25, 81920
    s_add_u32 s32, s32, {WQKV_P + 4096}
    s_mov_b32 s33, 5120
    s_lshl_b32 s34, s25, 1
    K0_STRIP:
    s_mov_b32 s11, 0x20000
    v_lshrrev_b32 v4, 1, v0
    v_mul_lo_u32 v4, v4, s30
    v_and_b32 v5, 1, v0
    v_lshl_add_u32 v4, v5, 4, v4
    s_lshl_b32 s24, s{S_W}, 7
    s_mul_i32 s24, s24, s30
    s_add_u32 s24, s24, s31
    s_lshl_b32 s25, s30, 5
    s_lshl_b32 s26, s{S_W}, 12
    ''')
    for i in range(4):
        a(f's_mov_b32 m0, s26')
        a(f'buffer_load_dwordx4 v4, {SB}, s24 offen lds')
        a('s_add_u32 s24, s24, s25')
        a('s_add_u32 s26, s26, 1024')
    a.lines(f'''
    v_lshlrev_b32 v5, 3, v{V_T}
    v_lshl_add_u32 v5, v{V_G}, 7, v5
    s_lshl_b32 s26, s{S_W}, 12
    v_add_u32 v5, s26, v5
    v_mov_b32 v40, 0x3f803f80
    v_mov_b32 v41, 0x3f803f80
    v_mov_b32 v42, 0x3f803f80
    v_mov_b32 v43, 0x3f803f80
    ''')
    a.wait_all()
    for i in range(4):
        a(f'ds_read_b64_tr_b16 {vr(8+4*i,2)}, v5 offset:{1024*i}')
        a(f'ds_read_b64_tr_b16 {vr(10+4*i,2)}, v5 offset:{1024*i+512}')
    a.wait_all()
    for i in range(4):
        a(f'{M16} v[44:47], v[40:43], {vr(8+4*i,4)}, {"0" if i == 0 else "v[44:47]"}')
    a.lines(f'''
    v_lshlrev_b32 v6, 2, v0
    s_lshl_b32 s26, s{S_W}, 8
    v_add_u32 v7, s26, v6
    ds_write_b32 v7, v44 offset:16384
    ''')
    a.wait_all()
    a('s_barrier')
    for i in range(4): a(f'ds_read_b32 v{48+i}, v6 offset:{16384+256*i}')
    a.wait_all()
    a.lines(f'''
    v_add_f32 v48, v48, v49
    v_add_f32 v50, v50, v51
    v_add_f32 v48, v48, v50
    v_mul_f32 v48, {f32(1/512)}, v48
    ''')
    for i in range(16):
        a(f'v_lshlrev_b32 v50, 16, v{8+i}')
        a(f'v_and_b32 v51, 0xffff0000, v{8+i}')
        a(f'v_sub_f32 v50, v50, v48')
        a(f'v_sub_f32 v51, v51, v48')
        a(f'v_cvt_pk_bf16_f32 v{8+i}, v50, v51')
    for i in range(4):
        a.lines(f'''
        s_lshl_b32 s24, s{S_W}, 2
        s_add_u32 s24, s24, {i + 16}
        s_sub_u32 s24, s24, s34
        s_and_b32 s24, s24, 15
        s_mul_i32 s24, s24, s33
        s_add_u32 s24, s24, s32
        buffer_store_dwordx4 {vr(8+4*i,4)}, v{V_L16}, {WS}, s24 offen sc1
        ''')
    a(f's_branch {end}')
    a.lines(f'''
    K0_UNIT:
    s_sub_u32 s29, s2, 128
    s_lshl_b32 s29, s29, 2
    s_add_u32 s29, s29, s{S_W}
    s_cmp_ge_u32 s29, 480
    s_cbranch_scc1 {end}
    s_cmp_ge_u32 s29, 352
    s_cbranch_scc1 K0_UO
    s_mov_b32 s8, s54
    s_mov_b32 s9, s55
    s_mov_b32 s10, {1376*1024}
    s_mul_i32 s24, s29, 5958
    s_lshr_b32 s24, s24, 16
    s_mul_i32 s25, s24, 11
    s_sub_u32 s25, s29, s25
    s_lshr_b32 s26, s24, 2
    s_and_b32 s27, s24, 3
    s_lshl_b32 s33, s26, 7
    s_lshl_b32 s32, s29, 12
    s_add_u32 s32, s32, {W2_P}
    s_mul_i32 s27, s27, 22
    s_cmp_ge_u32 s25, 8
    s_cbranch_scc1 K0_UH
    s_lshr_b32 s26, s25, 2
    s_mul_i32 s26, s26, 11
    s_and_b32 s28, s25, 3
    s_mul_i32 s28, s28, 3
    s_add_u32 s27, s27, s26
    s_add_u32 s27, s27, s28
    s_lshl_b32 s30, s27, 4
    s_add_u32 s31, s30, 16
    s_mov_b32 s34, 8
    s_mov_b32 s35, 4
    s_mov_b32 s36, 16
    s_branch K0_UGO
    K0_UH:
    s_mov_b32 s30, 2
    s_mov_b32 s31, 5
    s_cmp_eq_u32 s25, 9
    s_cselect_b32 s30, 8, s30
    s_cselect_b32 s31, 13, s31
    s_cmp_eq_u32 s25, 10
    s_cselect_b32 s30, 16, s30
    s_cselect_b32 s31, 19, s31
    s_add_u32 s30, s30, s27
    s_add_u32 s31, s31, s27
    s_lshl_b32 s30, s30, 4
    s_lshl_b32 s31, s31, 4
    s_mov_b32 s34, 16
    s_mov_b32 s35, 8
    s_mov_b32 s36, 4
    s_branch K0_UGO
    K0_UO:
    s_mov_b32 s8, s48
    s_mov_b32 s9, s49
    s_mov_b32 s10, {512*1024}
    s_sub_u32 s24, s29, 352
    s_lshr_b32 s26, s24, 4
    s_lshl_b32 s33, s26, 7
    s_lshl_b32 s32, s24, 12
    s_add_u32 s32, s32, {WO_P}
    s_lshl_b32 s26, s26, 1
    s_add_u32 s26, s26, s24
    s_and_b32 s26, s26, 15
    s_lshl_b32 s30, s26, 5
    s_add_u32 s31, s30, 16
    s_mov_b32 s34, 16
    s_mov_b32 s35, 4
    s_mov_b32 s36, 8
    K0_UGO:
    s_mov_b32 s11, 0x20000
    v_lshrrev_b32 v4, 3, v0
    v_lshlrev_b32 v4, 10, v4
    v_and_b32 v5, 7, v0
    v_lshl_add_u32 v4, v5, 4, v4
    s_lshl_b32 s30, s30, 10
    s_add_u32 s30, s30, s33
    s_lshl_b32 s31, s31, 10
    s_add_u32 s31, s31, s33
    s_lshl_b32 s26, s{S_W}, 12
    ''')
    for i in range(4):
        s = 30 + (i >> 1)
        a('s_mov_b32 m0, s26')
        a(f'buffer_load_dwordx4 v4, {SB}, s{s} offen lds')
        a(f's_add_u32 s{s}, s{s}, 8192')
        a('s_add_u32 s26, s26, 1024')
    a.lines(f'''
    v_lshrrev_b32 v5, 1, v{V_G}
    v_mul_lo_u32 v5, v5, s34
    v_and_b32 v6, 1, v{V_G}
    v_mul_lo_u32 v6, v6, s35
    v_add_u32 v5, v5, v6
    v_lshrrev_b32 v6, 2, v{V_T}
    v_add_u32 v5, v5, v6
    v_lshlrev_b32 v5, 7, v5
    v_and_b32 v6, 3, v0
    v_lshl_add_u32 v5, v6, 3, v5
    s_lshl_b32 s26, s{S_W}, 12
    v_add_u32 v5, s26, v5
    s_lshl_b32 s36, s36, 7
    v_add_u32 v6, s36, v5
    ''')
    a.wait_all()
    for mt in range(4):
        a(f'ds_read_b64_tr_b16 {vr(8+4*mt,2)}, v5 offset:{32*mt}')
        a(f'ds_read_b64_tr_b16 {vr(10+4*mt,2)}, v6 offset:{32*mt}')
    a.wait_all()
    for mt in range(4):
        a(f'buffer_store_dwordx4 {vr(8+4*mt,4)}, v{V_L16}, {WS}, s32 offen offset:{1024*mt} sc1')
    a.raw(f'{end}:')
    a('s_endpgm')

LDS_WO, LDS_WQ, LDS_SCR, LDS_ST = 0, 65536, 131072, 147456
LDS_TOTAL = 163840
VQ, VS0, VS1, VP, VO, VKV = 8, 24, 40, 56, 64, 128
XR = 8
OUT_SC = 'sc1' if OPT('OUT_SC1', 0) else ''
POLL_MAX = 400000
FORCE_SLOW = OPT('FORCE_SLOW', 0)
H_SC = 'sc1' if OPT('H_SC1', 1) else ''
D_SC = 'sc1' if OPT('D_SC1', 1) else ''
S_FLAG, S_FLINE, S_SLOW = 19, 22, 23
S_IDX, S_KB = 30, 31
S_KP, S_WP = 32, 34
S_OST = 36
S_C = 40
S_ROT = 44
S_X1O, S_ST1O, S_X2O, S_ST2O = 52, 53, 54, 55
S_HF, S_HH, S_HB, S_XD = 56, 57, 58, 59
S_QO, S_KVO, S_XRES, S_W2L, S_WQL = 60, 62, 63, 64, 65
S_STD, S_STN = 66, 67

def w2reg(f):
    if f < 16: return ar(192 + 4*f, 4)
    if f < 42: return vr(152 + 4*(f-16), 4)
    return vr(144 + 4*(f-42), 4)
def w1reg(i, ks): return ar((i*16 + ks)*4, 4)

def flag_set(a, line_off, deferred):
    skip = a.label_name('FS'); slow = a.label_name('FSS')
    a(f's_cmp_lg_u32 s{S_W}, 0')
    a(f's_cbranch_scc1 {skip}')
    a(f's_cmp_lg_u32 s{S_SLOW}, 0')
    a(f's_cbranch_scc1 {slow}')
    a('s_mov_b64 exec, 1')
    a.raw(f'buffer_store_dword v7, off, {WS}, s{S_FLAG} offset:{line_off}')
    a('s_mov_b64 exec, -1')
    a.raw(f'{skip}:')
    def d(b):
        b.raw(f'{slow}:')
        b.raw('buffer_wbl2 sc1')
        b('s_waitcnt vmcnt(0)')
        b('s_mov_b64 exec, 1')
        b(f'buffer_store_dword v7, off, {WS}, s{S_FLAG} offset:{line_off} sc1')
        b('s_mov_b64 exec, -1')
        b(f's_branch {skip}')
    deferred.append(d)

def acquire_slow(a, deferred):
    slow = a.label_name('AQS'); back = a.label_name('AQB')
    a(f's_cmp_lg_u32 s{S_SLOW}, 0')
    a(f's_cbranch_scc1 {slow}')
    a.raw(f'{back}:')
    def d(b):
        b.raw(f'{slow}:')
        b.raw('buffer_inv sc1')
        b('s_waitcnt vmcnt(0)')
        b(f's_branch {back}')
    deferred.append(d)

def hop(a, line_off, deferred, tag, vtmp):
    lp = a.label_name('POLL'); dn = a.label_name('POLLD'); sk = a.label_name('POLLS')
    a.wait_all(lg=False)
    stamp(a, tag + '_drained')
    a('s_barrier')
    flag_set(a, line_off, deferred)
    a(f's_cmp_lg_u32 s{S_W}, 1')
    a(f's_cbranch_scc1 {sk}')
    a('s_mov_b32 s25, 0')
    a.raw(f'{lp}:')
    a.raw(f'buffer_load_dword v{vtmp}, v6, {WS}, s{S_FLINE} offen offset:{line_off} sc1')
    a(f's_add_u32 s25, s25, 1')
    a('s_waitcnt vmcnt(0)')
    a(f's_cmp_gt_u32 s25, {POLL_MAX}')
    a(f's_cbranch_scc1 {dn}')
    a(f'v_cmp_eq_u32 vcc, 0, v{vtmp}')
    a(f's_cbranch_vccnz {lp}')
    a.raw(f'{dn}:')
    acquire_slow(a, deferred)
    a.raw(f'{sk}:')
    a('s_barrier')
    stamp(a, tag + '_polled')

def pre_rot(a):
    a(f's_lshl_b32 s26, s{S_W}, 14')
    a(f's_lshl_b32 s27, s{S_J}, 11')
    for pp in range(8):
        a(f's_add_u32 s{S_ROT+pp}, s27, s26')
        if pp < 7:
            a('s_add_u32 s27, s27, 2048')
            a('s_and_b32 s27, s27, 0x3fff')

def bfrag_load(B, voff, s):
    return f'buffer_load_dwordx4 {vr(B+4*s,4)}, v{voff}, {WS}, s{S_ROT+(s>>1)} offen offset:{1024*(s&1)} sc1'

def gemm_w(a, B, voff, AW, nwin, ntile, lds_addr_fn, pre, mfmas, late=(), tag=None):
    LA = OPT('GW_LA', 7)
    atoks = list(pre)
    btoks = [a(bfrag_load(B, voff, s)) for s in range(LA)]
    late = list(late); ltok = None
    n = 16*ntile
    for k in range(n):
        s, t = divmod(k, ntile)
        a.wait(atoks[k], btoks[s])
        if tag and OPT('P1_STAMPS') and t == 0 and s in (0, 4, 8, 12): stamp(a, f'{tag}_s{s}')
        for m in mfmas(s, t, vr(AW + 4*(k % nwin), 4), vr(B+4*s, 4)): a(m)
        if t == 1:
            if len(btoks) < 16: btoks.append(a(bfrag_load(B, voff, len(btoks))))
            elif late: ltok = a(late.pop(0)) or ltok
        if t == 3 and len(btoks) == 16 and late: ltok = a(late.pop(0)) or ltok
        if len(atoks) < n:
            kk = len(atoks); v, off = lds_addr_fn(kk)
            atoks.append(a(f'ds_read_b128 {vr(AW + 4*(kk % nwin),4)}, v{v} offset:{off}'))
    for x in late: ltok = a(x) or ltok
    return ltok

def pre_p4(a):
    a.lines(f'''
    s_lshl_b32 s24, s{S_W}, 7
    s_add_u32 s24, s24, s{S_GBN}
    s_add_u32 s{S_STN}, s24, {O_STIN}
    s_lshr_b32 s24, s{S_W}, 1
    s_lshl_b32 s24, s24, 10
    s_and_b32 s25, s{S_W}, 1
    s_lshl_b32 s25, s25, 8
    s_add_u32 s24, s24, s25
    s_lshl_b32 s25, s{S_J}, 13
    s_add_u32 s24, s24, s25
    s_add_u32 s24, s24, s{S_GBN}
    s_add_u32 s{S_QO}, s24, {O_Q}
    s_add_u32 s{S_QO+1}, s{S_QO}, 4096
    s_lshl_b32 s24, s{S_G}, 1
    s_lshr_b32 s25, s{S_W}, 1
    s_add_u32 s24, s24, s25
    s_lshl_b32 s24, s24, 11
    s_add_u32 s24, s24, s{S_KVN}
    s_and_b32 s25, s{S_W}, 1
    s_lshl_b32 s26, s25, 8
    s_lshl_b32 s27, s25, 9
    s_add_u32 s27, s27, 1024
    s_bitcmp1_b32 s{S_J}, 0
    s_cselect_b32 s26, s27, s26
    s_add_u32 s{S_KVO}, s24, s26
    ''')

P4_ACC, P4_B, P4_AW, P4_NW, P4_ST, P4_RS = 8, 32, 96, 6, 120, 136
def p4_addr(k):
    s, t = divmod(k, 5)
    off = s*5120 + t*1024
    return (140, off) if s < 8 else (141, off - 40960)
def gen_p4_pre(a):
    a.lines(f'''
    v_add_u32 v140, {LDS_WQ}, v{V_L16}
    v_add_u32 v141, {LDS_WQ + 40960}, v{V_L16}
    v_lshlrev_b32 v142, 3, v{V_T}
    v_add_u32 v143, s{S_GBN}, v{V_L16}
    ''')
    pre = []
    for k in range(P4_NW):
        v, off = p4_addr(k)
        pre.append(a(f'ds_read_b128 {vr(P4_AW+4*k,4)}, v{v} offset:{off}'))
    return pre
def gen_p4(a, pre):
    ACC, B, AW, NW, ST, RS = P4_ACC, P4_B, P4_AW, P4_NW, P4_ST, P4_RS
    KA, VA = 24, 28
    assert O_XIN == 0
    stl = [f'buffer_load_dwordx2 {vr(ST+2*p,2)}, v142, {WS}, s{S_STN} offen offset:{512*p} sc1' for p in range(8)]
    def mf(s, t, A, Bq):
        if t < 4: return [f'{M16} {vr(ACC+4*t,4)}, {A}, {Bq}, {"0" if s == 0 else vr(ACC+4*t,4)}']
        return [f'{M16} {vr(KA,4)}, {A}, {Bq}, {"0" if s == 0 else vr(KA,4)}',
                f'{M16} {vr(VA,4)}, {Bq}, {A}, {"0" if s == 0 else vr(VA,4)}']
    st = gemm_w(a, B, 143, AW, NW, 5, p4_addr, pre, mf, late=stl)
    a.lines(f'''
    v_lshrrev_b32 v4, 1, v{V_G}
    v_and_b32 v7, 1, v{V_G}
    v_lshlrev_b32 v5, 9, v4
    v_lshl_add_u32 v5, v{V_T}, 4, v5
    v_lshl_add_u32 v5, v7, 3, v5
    v_lshlrev_b32 v6, 8, v7
    v_lshl_add_u32 v6, v{V_T}, 4, v6
    v_lshl_add_u32 v6, v4, 3, v6
    v_lshlrev_b32 v4, 4, v{V_G}
    ''')
    a.wait(st)
    for l in rstd_from(a, ST, RS, 1.0): a(l)
    for r in range(4): bp = a(f'ds_bpermute_b32 v{ST+r}, v4, v{RS} offset:{4*r}')
    a(f'v_mul_f32 v{RS+2}, {f32(0.25*LOG2E)}, v{RS}')
    for mt in range(4):
        r = ACC + 4*mt
        a(f'v_pk_mul_f32 {vr(r,2)}, {vr(r,2)}, {vr(RS+2,2)} op_sel_hi:[1,0]')
        a(f'v_pk_mul_f32 {vr(r+2,2)}, {vr(r+2,2)}, {vr(RS+2,2)} op_sel_hi:[1,0]')
        a(f'v_cvt_pk_bf16_f32 v{r}, v{r}, v{r+1}')
        a(f'v_cvt_pk_bf16_f32 v{r+1}, v{r+2}, v{r+3}')
        a(f'buffer_store_dwordx2 {vr(r,2)}, v5, {WS}, s{S_QO + (mt>>1)} offen offset:{2048*(mt&1)} sc1')
    a.lines(f'''
    s_lshr_b32 s24, s{S_J}, 1
    s_cmp_lg_u32 s24, s{S_W}
    s_cbranch_scc1 P4_DONE
    s_bitcmp1_b32 s{S_J}, 0
    s_cbranch_scc1 P4_V
    v_pk_mul_f32 {vr(KA,2)}, {vr(KA,2)}, {vr(RS,2)} op_sel_hi:[1,0]
    v_pk_mul_f32 {vr(KA+2,2)}, {vr(KA+2,2)}, {vr(RS,2)} op_sel_hi:[1,0]
    v_cvt_pk_bf16_f32 v{KA}, v{KA}, v{KA+1}
    v_cvt_pk_bf16_f32 v{KA+1}, v{KA+2}, v{KA+3}
    buffer_store_dwordx2 {vr(KA,2)}, v5, {WS}, s{S_KVO} offen sc1
    s_branch P4_DONE
    P4_V:
    s_waitcnt lgkmcnt(0)
    v_pk_mul_f32 {vr(VA,2)}, {vr(VA,2)}, {vr(ST,2)}
    v_pk_mul_f32 {vr(VA+2,2)}, {vr(VA+2,2)}, {vr(ST+2,2)}
    v_cvt_pk_bf16_f32 v{VA}, v{VA}, v{VA+1}
    v_cvt_pk_bf16_f32 v{VA+1}, v{VA+2}, v{VA+3}
    buffer_store_dwordx2 {vr(VA,2)}, v6, {WS}, s{S_KVO} offen sc1
    P4_DONE:
    ''')

def gen_k1(a):
    a('s_mov_b32 s3, -1')
    ids(a, 'MAIN_END')
    a('s_waitcnt lgkmcnt(0)')
    a.lines(f'''
    s_mul_i32 s24, s{S_J}, 81920
    s_lshl_b32 s25, s{S_W}, 12
    s_add_u32 s24, s24, s25
    s_add_u32 s24, s24, {WQKV_P}
    s_add_u32 s25, s25, {LDS_WQ}
    ''')
    for R in range(5):
        a('s_mov_b32 m0, s25')
        for i in range(4):
            a(f'buffer_load_dwordx4 v{V_L16}, {WS}, s24 offen offset:{1024*i} lds')
        a('s_add_u32 s24, s24, 16384')
        a('s_add_u32 s25, s25, 16384')
    pre_rot(a); pre_p4(a)
    a.wait_all()
    a('s_barrier')
    gen_p4_pre(a)
    a.wait_all()
    a('s_branch P4_START')

def gen_attention(a):
    a.comment('---- attention: 4 q-tiles x 32 key tiles per wave; slots 0,1 = partner head, 2,3 = own head')
    KP, WP = sr(S_KP, 2), sr(S_WP, 2)
    a.lines(f'''
    s_lshr_b32 s26, s{S_W}, 1
    s_and_b32 s27, s{S_W}, 1
    s_lshl_b32 s24, s{S_J}, 13
    s_lshl_b32 s25, s27, 12
    s_add_u32 s24, s24, s25
    s_add_u32 s24, s24, s{S_GB}
    s_add_u32 s24, s24, {O_Q}
    s_lshl_b32 s25, s26, 11
    s_xor_b32 s28, s25, 2048
    s_add_u32 s25, s25, s24
    s_add_u32 s28, s28, s24
    s_lshl_b32 s{S_KB}, s26, 16
    s_add_u32 s{S_KB}, s{S_KB}, s{S_KV}
    s_lshr_b32 s{S_IDX}, s2, 3
    s_lshl_b32 s{S_IDX}, s{S_IDX}, 11
    s_add_u32 s29, s{S_IDX}, s{S_KB}
    s_mov_b32 s{S_VMASK}, 0xffff
    s_mov_b32 s{S_VMASK+1}, 0xffff
    v_lshrrev_b32 v4, 1, v{V_G}
    v_lshlrev_b32 v4, 8, v4
    v_lshl_add_u32 v7, v{V_T}, 4, v4
    v_and_b32 v4, 27, v0
    v_cmp_eq_u32 vcc, 16, v4
    v_mov_b32 v4, 0x3f803f80
    v_cndmask_b32 v4, 0, v4, vcc
    ''')
    for b in range(2):
        for i in range(8): a(f'v_mov_b32 v{VKV+12*b+4+i}, v4')
    a('s_waitcnt lgkmcnt(0)')
    a(f's_add_u32 s{S_KB}, s{S_KB}, s4')
    a(f's_addc_u32 s{S_KB+7}, s5, 0')
    Kr = lambda i: vr(VKV + 12*(i & 1), 4)
    Vr = lambda i, u: vr(VKV + 12*(i & 1) + 4 + 4*u, 4)
    ktok, vtok = {}, {}
    def ldK(i): ktok[i] = a(f'global_load_dwordx4 {Kr(i)}, v{V_L16}, {KP}')
    def ldV(i):
        a(f's_mov_b64 exec, {sr(S_VMASK,2)}')
        a(f'global_load_dwordx4 {Vr(i,0)}, v7, {KP} offset:1024')
        vtok[i] = a(f'global_load_dwordx4 {Vr(i,1)}, v7, {KP} offset:1536')
        a('s_mov_b64 exec, -1')
    adv = [f's_add_u32 s{S_IDX}, s{S_IDX}, 2048', f's_and_b32 s{S_IDX}, s{S_IDX}, 0xffff',
           f's_add_u32 s{S_KP}, s{S_IDX}, s{S_KB}', f's_addc_u32 s{S_KP+1}, s{S_KB+7}, 0']
    a(adv[2]); a(adv[3])
    ldK(0)
    qt = []
    for sl in range(4):
        qt.append(a(f'buffer_load_dwordx4 {vr(VQ+4*sl,4)}, v{V_L16}, {WS}, s{28 if sl < 2 else 25} offen offset:{1024*(sl&1)}'))
    ldV(0)
    for x in adv: a(x)
    ldK(1)
    a.lines(f'''
    s_lshl_b32 s24, s{S_L}, 15
    s_lshl_b32 s29, s{S_G}, 10
    s_add_u32 s24, s24, s29
    s_add_u32 s{S_FLINE}, s24, {FLAGS}
    s_lshl_b32 s29, s{S_J}, 2
    s_add_u32 s{S_FLAG}, s{S_FLINE}, s29
    s_getreg_b32 s{S_SLOW}, hwreg(HW_REG_XCC_ID, 0, 4)
    s_add_u32 s{S_SLOW}, s{S_SLOW}, 1
    v_and_b32 v6, 7, v0
    v_lshlrev_b32 v6, 2, v6
    v_mov_b32 v5, s{S_SLOW}
    s_cmp_lg_u32 s{S_W}, 0
    s_cbranch_scc1 XCC_DONE
    s_mov_b64 exec, 1
    ''')
    a.raw(f'buffer_store_dword v5, off, {WS}, s{S_FLAG} offset:{F_XCC} sc1')
    a('s_mov_b64 exec, -1')
    a.raw('XCC_DONE:')
    pre_rot(a); pre_p4(a)
    x_publish_addr(a, S_X1O, S_ST1O, S_GB, O_X1, O_ST1)
    x_publish_addr(a, S_X2O, S_ST2O, S_GBN, O_XIN, O_STIN)
    a.lines(f'''
    s_sub_u32 s{S_XRES}, s{S_X1O}, {O_X1 - O_XIN}
    s_lshl_b32 s24, s{S_J}, 1
    s_and_b32 s25, s{S_W}, 1
    s_add_u32 s24, s24, s25
    s_lshl_b32 s24, s24, 10
    s_lshr_b32 s25, s{S_W}, 1
    s_lshl_b32 s25, s25, 9
    s_add_u32 s24, s24, s25
    s_add_u32 s24, s24, s{S_GB}
    s_add_u32 s{S_OST}, s24, {O_O}
    s_add_u32 s{S_OST+1}, s{S_OST}, 32768
    s_add_u32 s68, s{S_OST}, 16384
    s_add_u32 s69, s{S_OST}, 49152
    s_lshr_b32 s24, s{S_J}, 1
    s_mul_i32 s24, s24, 11
    s_and_b32 s25, s{S_J}, 1
    s_lshl_b32 s26, s25, 2
    s_add_u32 s26, s26, s{S_W}
    s_add_u32 s26, s26, s24
    s_lshl_b32 s26, s26, 10
    s_add_u32 s27, s{S_GB}, {O_H}
    s_add_u32 s{S_HF}, s26, s27
    s_mul_i32 s25, s25, 3
    s_add_u32 s25, s25, s{S_W}
    s_lshl_b32 s25, s25, 9
    s_add_u32 s24, s24, 8
    s_lshl_b32 s24, s24, 10
    s_add_u32 s24, s24, s25
    s_add_u32 s24, s24, s27
    s_cmp_eq_u32 s{S_W}, 3
    s_cselect_b32 s{S_HH}, {WS_USED}, s24
    s_mul_i32 s24, s{S_W}, {11*1024}
    s_add_u32 s{S_HB}, s24, s27
    s_lshl_b32 s25, s{S_W}, 12
    s_add_u32 s26, s25, s{S_GB}
    s_add_u32 s{S_XD}, s26, {O_X1}
    s_lshl_b32 s25, s{S_W}, 10
    s_add_u32 s26, s25, s{S_GB}
    s_add_u32 s{S_STD}, s26, {O_ST1}
    s_lshl_b32 s27, s{S_W}, 12
    s_lshl_b32 s24, s{S_J}, 16
    s_add_u32 s24, s24, s27
    s_add_u32 s24, s24, {WO_P}
    s_mul_i32 s25, s{S_J}, {11*16384}
    s_mul_i32 s26, s{S_W}, {3*16384}
    s_add_u32 s25, s25, s26
    s_add_u32 s25, s25, {W1_P}
    s_mul_i32 s26, s{S_J}, 81920
    s_add_u32 s26, s26, s27
    s_add_u32 s26, s26, {WQKV_P}
    s_add_u32 s{S_WQL}, s26, 65536
    s_mul_i32 s28, s{S_J}, {44*4096}
    s_mul_i32 s29, s{S_W}, {11*4096}
    s_add_u32 s28, s28, s29
    s_add_u32 s28, s28, {W2_P}
    s_add_u32 s{S_W2L}, s28, {10*4096}
    s_mul_i32 s29, s{S_W}, 6144
    s_add_u32 s29, s29, {LDS_SCR}
    v_add_u32 v4, s29, v{V_L16}
    ''')
    groups = []
    start = lambda s: [f's_add_u32 s{S_WP}, s4, s{s}', f's_addc_u32 s{S_WP+1}, s5, 0']
    step = lambda n: [f's_add_u32 s{S_WP}, s{S_WP}, {n}', f's_addc_u32 s{S_WP+1}, s{S_WP+1}, 0']
    dma4 = [f'global_load_lds_dwordx4 v{V_L16}, {WP} offset:{1024*i}' for i in range(4)]
    for R in range(4):
        groups.append(((start(24) + [f's_add_u32 m0, s27, {LDS_WO}']) if R == 0 else (step(16384) + ['s_add_u32 m0, m0, 16384']), dma4))
    for G in range(12):
        groups.append((start(25) if G == 0 else step(4096), [f'global_load_dwordx4 {ar(16*G+4*i,4)}, v{V_L16}, {WP} offset:{1024*i}' for i in range(4)]))
    for R in range(4):
        groups.append(((start(26) + [f's_add_u32 m0, s27, {LDS_WQ}']) if R == 0 else (step(16384) + ['s_add_u32 m0, m0, 16384']), dma4))
    for G in range(11):
        groups.append((start(28) if G == 0 else step(4096), [f'global_load_dwordx4 {w2reg(4*G+i)}, v{V_L16}, {WP} offset:{1024*i}' for i in range(4) if 4*G+i < 42]))
    assert len(groups) == 31
    Sr = lambda n: VS0 if (n & 1) == 0 else VS1
    def QK(n):
        i, q = n >> 2, n & 3
        return f'{M32} {vr(Sr(n),16)}, {Kr(i)}, {vr(VQ+4*q,4)}, 0'
    def PV(n, u):
        i, q = n >> 2, n & 3
        c = '0' if (i == 0 and u == 0) else vr(VO+16*q, 16)
        return f'{M32} {vr(VO+16*q,16)}, {Vr(i,u)}, {vr(VP+4*u,4)}, {c}'
    a(groups[0][0][0]); a(groups[0][0][1])
    a.wait(ktok[0], qt[3])
    stamp(a, 'att_go')
    a(QK(0))
    a('s_nop 7')
    N = 128
    misc = {}
    def scr_w(sl):
        o = VO + 16*sl
        return [f'ds_write_b128 v4, {vr(o,4)} offset:{3072*sl}', f'ds_write_b128 v4, {vr(o+4,4)} offset:{3072*sl+1024}',
                f'ds_write_b32 v4, v{o+8} offset:{3072*sl+2048}']
    for n in range(N):
        i, q = n >> 2, n & 3
        S = Sr(n)
        e = lambda k: a(f'v_exp_f32 v{S+k}, v{S+k}')
        c = lambda k: a(f'v_cvt_pk_bf16_f32 v{VP+k}, v{S+2*k}, v{S+2*k+1}')
        x0, x1, x2 = [], [], []
        pad = lambda l, k: list(l) + [None]*(k - len(l))
        setup, loads = groups[i] if i < len(groups) else ([], [])
        setup, loads = pad(setup, 3), pad(loads, 4)
        nsetup = pad(groups[i+1][0] if i + 1 < len(groups) else [], 3)
        if q == 0:
            x0 += [lambda ii=i: a.wait(vtok[ii])]
            if i + 1 < 32: x1.append(lambda ii=i+1: ldV(ii))
            x2 += [setup[2]]
        elif q == 1:
            x0 += [adv[0], loads[0]]; x1 += [adv[1], loads[1]]; x2 += [adv[2], loads[2]]
        elif q == 2:
            x0 += [adv[3], loads[3]]
            if i + 1 < 32: x2.append(lambda ii=i+1: a.wait(ktok[ii]))
        else:
            if i + 2 < 32: x0.append(lambda ii=i+2: ldK(ii))
            x1 += [nsetup[0]]; x2 += [nsetup[1]]
        PT = OPT('PT', 0)
        if PT and i == PT and q == 3:
            x1 += [f'buffer_load_dword v5, v{V_L16}, {WS}, s{S_X1O} offen', f'buffer_load_dword v5, v{V_L16}, {WS}, s{S_X1O} offen offset:1024',
                   f'buffer_load_dword v5, off, {WS}, s{S_ST1O}']
            x2 += [f'buffer_load_dword v5, v{V_L16}, {WS}, s{S_X2O} offen', f'buffer_load_dword v5, v{V_L16}, {WS}, s{S_X2O} offen offset:1024',
                   f'buffer_load_dword v5, off, {WS}, s{S_ST2O}']
        if PT and i == PT + 1 and q == 3:
            x1 += [f'buffer_load_dword v5, v7, {WS}, s{S_OST} offen', f'buffer_load_dword v5, v7, {WS}, s{S_OST+1} offen',
                   f'buffer_load_dword v5, v{V_L16}, {WS}, s{S_FLINE} offen']
            x2 += [f'buffer_load_dword v5, v7, {WS}, s68 offen', f'buffer_load_dword v5, v7, {WS}, s69 offen']
        if n == 30*4 + 3:
            x0.append(lambda: misc.__setitem__('xcc', a(f'buffer_load_dword v5, v6, {WS}, s{S_FLINE} offen offset:{F_XCC} sc1')))
            x1.append(f'buffer_load_dwordx4 v[128:131], v{V_L16}, {WS}, s{S_XRES} offen')
        if n == 31*4: x1.append(lambda: misc.__setitem__('xt', a(f'buffer_load_dwordx4 v[132:135], v{V_L16}, {WS}, s{S_XRES} offen offset:1024')))
        if n == 126: x1 += scr_w(0)[:2]; x2 += scr_w(0)[2:]
        if n == 127: x1 += scr_w(1)[:2]; x2 += scr_w(1)[2:]
        def run(xs):
            for x in xs:
                if x is None: continue
                if callable(x): x()
                else: a(x)
        if n + 1 < N: a(QK(n+1))
        run(x0)
        e(0); e(1); e(2); e(3); c(0); e(4)
        if n > 0: a(PV(n-1, 1))
        run(x1)
        e(5); c(1); e(6); e(7); c(2); e(8); c(3); e(9); e(10)
        a(PV(n, 0))
        run(x2)
        c(4); e(11); e(12); c(5); e(13); e(14); e(15); c(6); c(7)
    a.wait_all(vm=False)
    a('s_barrier')
    a(PV(N-1, 1))
    return misc

def gen_att_epilogue(a, misc):
    a.comment('---- pair reduce, range check, normalise, publish O')
    T = 24
    O2, O3 = VO + 32, VO + 48
    a(f'v_xor_b32 v4, {2*6144}, v4' if False else f's_xor_b32 s24, s{S_W}, 2')
    a(f's_mul_i32 s24, s24, 6144')
    a(f's_add_u32 s24, s24, {LDS_SCR}')
    a(f'v_add_u32 v4, s24, v{V_L16}')
    rt = []
    for sl in (0, 1):
        a(f'ds_read_b128 {vr(T+12*sl,4)}, v4 offset:{3072*sl}')
        a(f'ds_read_b128 {vr(T+12*sl+4,4)}, v4 offset:{3072*sl+1024}')
        rt.append(a(f'ds_read_b32 v{T+12*sl+8}, v4 offset:{3072*sl+2048}'))
    a.wait(misc['xcc'])
    a.lines(f'''
    v_cmp_ne_u32 vcc, s{S_SLOW}, v5
    v_and_b32 v4, 1, v{V_G}
    v_lshlrev_b32 v4, 14, v4
    v_add_u32 v4, v4, v7
    s_cmp_lg_u64 vcc, 0
    s_cselect_b32 s{S_SLOW}, 1, {FORCE_SLOW}
    ''')
    for sl, o in ((0, O2), (1, O3)):
        a.wait(rt[sl])
        a(f'v_add_f32 v{o+8}, v{o+8}, v{T+12*sl+8}')
        for k in range(4):
            a(f'v_pk_add_f32 {vr(o+2*k,2)}, {vr(o+2*k,2)}, {vr(T+12*sl+2*k,2)}')
    a.lines(f'''
    v_minimum3_f32 v26, v{O2+8}, v{O3+8}, v{O3+8}
    v_maximum3_f32 v27, v{O2+8}, v{O3+8}, v{O3+8}
    v_maximum3_f32 v24, |v{O2}|, |v{O2+1}|, |v{O2+2}|
    v_maximum3_f32 v25, |v{O3}|, |v{O3+1}|, |v{O3+2}|
    v_cmp_le_f32 s[24:25], s{S_C}, v26
    v_cmp_ge_f32 s[26:27], s{S_C+1}, v27
    v_maximum3_f32 v24, |v{O2+3}|, |v{O2+4}|, v24
    v_maximum3_f32 v25, |v{O3+3}|, |v{O3+4}|, v25
    v_maximum3_f32 v24, |v{O2+5}|, |v{O2+6}|, v24
    v_maximum3_f32 v25, |v{O3+5}|, |v{O3+6}|, v25
    v_maximum3_f32 v24, |v{O2+7}|, |v{O3+7}|, v24
    s_and_b64 s[24:25], s[24:25], s[26:27]
    v_maximum3_f32 v24, v24, v25, v25
    v_cmp_ge_f32 vcc, s{S_C+2}, v24
    v_rcp_f32 v{O2+10}, v{O2+8}
    v_rcp_f32 v{O3+10}, v{O3+8}
    s_and_b64 s[24:25], s[24:25], vcc
    s_cmp_eq_u64 s[24:25], -1
    s_cbranch_scc0 FALLBACK
    ATT_NORM:
    ''')
    for sl, o in ((0, O2), (1, O3)):
        for k in range(4):
            a(f'v_pk_mul_f32 {vr(o+2*k,2)}, {vr(o+2*k,2)}, {vr(o+10,2)} op_sel_hi:[1,0]')
        for k in range(4):
            a(f'v_cvt_pk_bf16_f32 v{24+4*sl+k}, v{o+2*k}, v{o+2*k+1}')
        a(f'buffer_store_dwordx4 {vr(24+4*sl,4)}, v4, {WS}, s{S_OST+sl} offen {D_SC}')

def gen_fallback(a):
    a.comment('---- fallback: true-max softmax')
    a.raw('FALLBACK:')
    K, V0, V1, NM = 136, 140, 144, 64
    a.wait_all()
    for i in range(8): a(f'v_mov_b32 v{V0+i}, 0x3f803f80')
    for sl in (2, 3):
        o = VO + 16*sl
        l1 = a.label_name('FB1'); l2 = a.label_name('FB2')
        a(f'v_mov_b32 v56, 0xff800000')
        a(f's_mov_b32 s24, s{S_KV}')
        a(f's_add_u32 s25, s{S_KV}, {KV_SZ}')
        a.raw(f'{l1}:')
        a(f'buffer_load_dwordx4 {vr(K,4)}, v{V_L16}, {WS}, s24 offen')
        a.wait_all()
        a(f'{M32} {vr(VS0,16)}, {vr(K,4)}, {vr(VQ+4*sl,4)}, 0')
        for k in range(8):
            a(f'v_max3_f32 v56, v{VS0+2*k}, v{VS0+2*k+1}, v56')
        a('s_add_u32 s24, s24, 2048')
        a('s_cmp_lt_u32 s24, s25')
        a(f's_cbranch_scc1 {l1}')
        a('v_mov_b32 v57, v56')
        a('v_permlane32_swap_b32 v56, v57')
        a('v_max_f32 v56, v56, v57')
        for k in range(16):
            a(f'v_sub_f32 v{NM+k}, 0, v56')
            a(f'v_mov_b32 v{o+k}, 0')
        a(f's_mov_b32 s24, s{S_KV}')
        a.raw(f'{l2}:')
        a(f'buffer_load_dwordx4 {vr(K,4)}, v{V_L16}, {WS}, s24 offen')
        a(f's_mov_b64 exec, {sr(S_VMASK,2)}')
        a(f'buffer_load_dwordx4 {vr(V0,4)}, v7, {WS}, s24 offen offset:1024')
        a(f'buffer_load_dwordx4 {vr(V1,4)}, v7, {WS}, s24 offen offset:1536')
        a('s_mov_b64 exec, -1')
        a.wait_all()
        a(f'{M32} {vr(VS0,16)}, {vr(K,4)}, {vr(VQ+4*sl,4)}, {vr(NM,16)}')
        for k in range(16): a(f'v_exp_f32 v{VS0+k}, v{VS0+k}')
        for k in range(8): a(f'v_cvt_pk_bf16_f32 v{VP+k}, v{VS0+2*k}, v{VS0+2*k+1}')
        a(f'{M32} {vr(o,16)}, {vr(V0,4)}, {vr(VP,4)}, {vr(o,16)}')
        a(f'{M32} {vr(o,16)}, {vr(V1,4)}, {vr(VP+4,4)}, {vr(o,16)}')
        a('s_add_u32 s24, s24, 2048')
        a('s_cmp_lt_u32 s24, s25')
        a('s_nop 15')
        a(f's_cbranch_scc1 {l2}')
        a('s_nop 15')
        a(f'v_rcp_f32 v{o+10}, v{o+8}')
    a('s_nop 3')
    a('s_branch ATT_NORM')

def gen_p1(a, misc, deferred):
    a.comment('---- P1: output projection + residual')
    B, AW, NW = 24, 88, 12
    a('v_mov_b32 v7, 1')
    a.wait(misc['xt'])
    for i in range(8):
        a(f'v_lshlrev_b32 v{XR+2*i}, 16, v{128+i}')
        a(f'v_and_b32 v{XR+2*i+1}, 0xffff0000, v{128+i}')
    a(f's_add_u32 s24, s{S_GB}, {O_O}')
    a(f'v_add_u32 v136, s24, v{V_L16}')
    st_voff(a, 137)
    a(f's_lshl_b32 s25, s{S_W}, 12')
    a(f's_add_u32 m0, s25, {LDS_WQ + 65536}')
    addr = lambda k: (V_L16, LDS_WO + 1024*k)
    pre = []
    for k in range(NW):
        v, off = addr(k)
        pre.append(a(f'ds_read_b128 {vr(AW+4*k,4)}, v{v} offset:{off}'))
    hop(a, F_O, deferred, 'o', 5)
    late = [f'buffer_load_dwordx4 {w2reg(42)}, v{V_L16}, {WS}, s{S_W2L} offen offset:2048',
            f'buffer_load_dwordx4 {w2reg(43)}, v{V_L16}, {WS}, s{S_W2L} offen offset:3072']
    late += [f'buffer_load_dwordx4 v{V_L16}, {WS}, s{S_WQL} offen offset:{1024*i} lds' for i in range(4)]
    gemm_w(a, B, 136, AW, NW, 4, addr, pre, lambda s, t, A, Bq: [f'{M16} {vr(XR+4*t,4)}, {A}, {Bq}, {vr(XR+4*t,4)}'], late=late, tag='p1')
    stamp(a, 'p1_gemm')
    x_publish(a, XR, 24, 32, S_X1O, S_ST1O, 137, sc=D_SC)

def gen_p23(a, deferred):
    a.comment('---- P2: LN + FFN1 + silu')
    B0, B1, BW, NBW, ACC, TMP, PK, RS, ST = 24, 68, 68, 6, (92, 104), 116, 128, 138, 24
    a.lines(f'''
    v_lshrrev_b32 v5, 1, v{V_G}
    v_lshlrev_b32 v5, 8, v5
    v_lshl_add_u32 v5, v{V_T}, 4, v5
    v_and_b32 v4, 1, v{V_G}
    v_lshl_add_u32 v5, v4, 3, v5
    v_lshlrev_b32 v136, 3, v0
    v_add_u32 v136, {LDS_ST}, v136
    s_lshl_b32 s28, s{S_W}, 12
    s_lshl_b32 s29, s{S_W}, 10
    s_add_u32 s29, s29, {LDS_ST}
    s_add_u32 m0, s28, {LDS_WO}
    ''')
    hop(a, F_X1, deferred, 'x1', 4)
    dma = {}
    xd = lambda i: f'buffer_load_dwordx4 v{V_L16}, {WS}, s{S_XD} offen offset:{1024*i} sc1 lds'
    for i in range(4): a(xd(i))
    a('s_mov_b32 m0, s29')
    a(f's_add_u32 s{S_XD}, s{S_XD}, 16384')
    dma[0] = a(f'buffer_load_dwordx4 v{V_L16}, {WS}, s{S_STD} offen sc1 lds')
    a(f's_add_u32 m0, s28, {LDS_WO + 16384}')
    if OPT('XD_BAR', 1): a('s_barrier')
    for i in range(4): dma[1] = a(xd(i))
    dq = []
    for nt in (2, 3):
        dq += [f's_add_u32 s{S_XD}, s{S_XD}, 16384', 's_add_u32 m0, m0, 16384'] + [(nt, xd(i)) for i in range(4)]
    cost = lambda s: 8 if s.split()[0] in TRANS else 4
    def epi(nt):
        A = ACC[nt & 1]
        L = [f'v_mul_f32 v{A+k}, v{A+k}, v{RS+nt}' for k in range(12)]
        L += [f'v_exp_f32 v{TMP+k}, -v{A+k}' for k in range(12)]
        L += [f'v_add_f32 v{TMP+k}, 1.0, v{TMP+k}' for k in range(12)]
        L += [f'v_rcp_f32 v{TMP+k}, v{TMP+k}' for k in range(12)]
        L += [f'v_mul_f32 v{A+k}, v{A+k}, v{TMP+k}' for k in range(12)]
        L += [f'v_cvt_pk_bf16_f32 v{PK+k}, v{A+2*k}, v{A+2*k+1}' for k in range(6)]
        return L
    def epi_pk(nt):
        A = ACC[nt & 1]
        L = [f'v_mov_b32 v{RS}, v{RS+nt}']
        L += [f'v_pk_mul_f32 {vr(A+2*k,2)}, {vr(A+2*k,2)}, {vr(RS,2)} op_sel_hi:[1,0]' for k in range(6)]
        L += [f'v_exp_f32 v{TMP+k}, -v{A+k}' for k in range(12)]
        L += [f'v_pk_add_f32 {vr(TMP+2*k,2)}, {vr(TMP+2*k,2)}, 1.0 op_sel_hi:[1,0]' for k in range(6)]
        L += [f'v_rcp_f32 v{TMP+k}, v{TMP+k}' for k in range(12)]
        L += [f'v_pk_mul_f32 {vr(A+2*k,2)}, {vr(A+2*k,2)}, {vr(TMP+2*k,2)}' for k in range(6)]
        L += [f'v_cvt_pk_bf16_f32 v{PK+k}, v{A+2*k}, v{A+2*k+1}' for k in range(6)]
        return L
    hst = {}
    def hstore(nt):
        a(f'buffer_store_dwordx4 {vr(PK,4)}, v{V_L16}, {WS}, s{S_HF} offen {H_SC}')
        hst[nt] = a(f'buffer_store_dwordx2 {vr(PK+4,2)}, v5, {WS}, s{S_HH} offen {H_SC}')
    hadv = [f's_add_u32 s{S_HF}, s{S_HF}, {44*1024}', f's_add_u32 s{S_HH}, s{S_HH}, {44*1024}']
    ptok = {}
    def hpoll_issue(nt):
        ptok[nt] = a(f'buffer_load_dword v4, v6, {WS}, s{S_FLINE} offen offset:{F_H + 128*nt} sc1')
    def hpoll_check(nt):
        slow = a.label_name('HSLOW'); ok = a.label_name('HOK')
        a.wait(ptok[nt])
        a('v_cmp_eq_u32 vcc, 0, v4')
        a(f's_cbranch_vccnz {slow}')
        a.raw(f'{ok}:')
        acquire_slow(a, deferred)
        def d(b):
            lp = b.label_name('HLP')
            b.raw(f'{slow}:')
            b('s_mov_b32 s24, 0')
            b.raw(f'{lp}:')
            b(f'buffer_load_dword v4, v6, {WS}, s{S_FLINE} offen offset:{F_H + 128*nt} sc1')
            b('s_add_u32 s24, s24, 1')
            b('s_waitcnt vmcnt(0)')
            b(f's_cmp_gt_u32 s24, {POLL_MAX}')
            b(f's_cbranch_scc1 {ok}')
            b('v_cmp_eq_u32 vcc, 0, v4')
            b(f's_cbranch_vccnz {lp}')
            b(f's_branch {ok}')
        deferred.append(d)
    hb = {nt: [None]*11 for nt in range(4)}
    def hload(nt, s):
        Bb = B0 if (nt & 1) == 0 else B1
        if s and s % 4 == 0: a(f's_add_u32 s{S_HB}, s{S_HB}, 4096')
        hb[nt][s] = a(f'buffer_load_dwordx4 {vr(Bb+4*s,4)}, v{V_L16}, {WS}, s{S_HB} offen offset:{1024*(s%4)} sc1')
        if s == 10: a(f's_add_u32 s{S_HB}, s{S_HB}, {44*1024 - 8192}')
    hlist = lambda nt: [(lambda s=s: hload(nt, s)) for s in range(11)]
    stl = rstd_from(a, ST, RS, LOG2E)
    stl += [f'v_mov_b32 v{RS+2}, v{RS}', f'v_permlane32_swap_b32 v{RS}, v{RS+2}',
            f'v_mov_b32 v{RS+1}, v{RS}', f'v_mov_b32 v{RS+3}, v{RS+2}',
            f'v_permlane16_swap_b32 v{RS}, v{RS+1}', f'v_permlane16_swap_b32 v{RS+2}, v{RS+3}']
    btok = []
    def bread():
        k = len(btok)
        if k >= 64: return
        btok.append(a(f'ds_read_b128 {vr(BW+4*(k % NBW),4)}, v{V_L16} offset:{LDS_WO + 1024*k}'))
    a.wait(dma[0]); a('s_barrier')
    for _ in range(NBW - 1): bread()
    strd = [f'ds_read_b64 {vr(ST+2*p,2)}, v136 offset:{512*p}' for p in range(8)]
    pend = []
    KB = OPT('KB', 8)
    CR = OPT('CR10', 95) / 10
    a.wait(btok[0])
    for nt in range(4):
        stamp(a, f'f1_nt{nt}')
        A = ACC[nt & 1]
        ex = stl if nt == 0 else epi(nt-1)
        sal = list(hadv) if nt >= 2 else []
        credit = 0.0
        for ks in range(16):
            k = nt*16 + ks
            for i in range(3):
                a(f'{M16} {vr(A+4*i,4)}, {w1reg(i,ks)}, {vr(BW+4*(k % NBW),4)}, {"0" if ks == 0 else vr(A+4*i,4)}')
                credit += CR
                if i == 0:
                    if sal and ks > 0: a(sal.pop(0))
                    bread(); credit -= 4
                if i == 1 and nt == 0 and strd:
                    a(strd.pop(0)); stt = a(strd.pop(0)); credit -= 8
                if i == 1 and nt == 0 and ks >= 4 and dq:
                    x = dq.pop(0)
                    if isinstance(x, tuple): dma[x[0]] = a(x[1]); credit -= 8
                    else: a(x)
                if i == 1 and ks == KB:
                    a.wait(dma[nt+1] if nt < 3 else None, hst[nt-2] if nt >= 2 else None)
                    a('s_barrier')
                    if nt >= 2: flag_set(a, F_H + 128*(nt-2), deferred)
                if i == 1 and nt == 3:
                    if ks == 0: hpoll_issue(0)
                    if ks == 7: hpoll_check(0); pend = hlist(0)
                if i == 2 and k + 1 < 64: a.wait(btok[k+1])
                if nt == 3 and pend and i == 2: pend.pop(0)(); credit -= 8
                if nt == 3 and pend and i == 1 and ks > 12: pend.pop(0)(); credit -= 8
                if ks*3 + i < 3 or (nt == 0 and ks < 9): credit = 0; continue
                while ex and credit >= cost(ex[0]):
                    credit -= cost(ex[0]); a(ex.pop(0))
        for x in pend: x()
        pend = []
        for x in ex: a(x)
        if nt >= 1: hstore(nt-1)
    hpoll_issue(1)
    for x in hadv: a(x)
    stamp(a, 'f1_main_end')
    for x in epi_pk(3): a(x)
    hstore(3)
    AC2 = (112, 128)
    a(f'v_add_u32 v5, s28, v{V_L16}')
    hpoll_check(1)
    F2, P2I, P2C, F3, P3I, P3C = OPT('F2', 0), OPT('P2I', 5), OPT('P2C', 12), OPT('F3', 6), OPT('P3I', 13), OPT('P3C', 20)
    roll = [(1, x) for x in range(11)]
    for nt in range(4):
        if not OPT('P1_STAMPS'): stamp(a, f'f2_nt{nt}')
        A = AC2[nt & 1]; Bb = B0 if (nt & 1) == 0 else B1
        wr = []
        if nt > 0:
            P = AC2[(nt-1) & 1]
            wr = [f'ds_write_b128 v5, {vr(P+4*mt,4)} offset:{16384*(nt-1) + 1024*mt}' for mt in range(4)]
        for s in range(11):
            pos = nt*11 + s
            a.wait(hb[nt][s])
            for mt in range(4):
                a(f'{M16} {vr(A+4*mt,4)}, {w2reg(4*s+mt)}, {vr(Bb+4*s,4)}, {"0" if s == 0 else vr(A+4*mt,4)}')
                if mt == 0:
                    if pos == P2C: hpoll_check(2); roll += [(2, x) for x in range(11)]
                    if pos == P3C: hpoll_check(3); roll += [(3, x) for x in range(11)]
                    if pos == F2: a.wait(hst[2]); a('s_barrier'); flag_set(a, F_H + 128*2, deferred)
                    if pos == F3: a.wait(hst[3]); a('s_barrier'); flag_set(a, F_H + 128*3, deferred)
                free = lambda: roll and (roll[0][0]-2)*11 + roll[0][1] < pos
                behind = lambda: roll and roll[0][0]*11 + roll[0][1] < pos + 11
                if mt == 1 and free(): hload(*roll.pop(0))
                if mt == 3 and free() and behind(): hload(*roll.pop(0))
                if mt == 2:
                    if pos == P2I: hpoll_issue(2)
                    elif pos == P3I: hpoll_issue(3)
                    elif s >= 3 and wr: a(wr.pop(0))
        assert not wr
    assert not roll
    stamp(a, 'f2_mfma_end')
    P = AC2[1]
    a(f's_lshl_b32 s24, s{S_W}, 14')
    a(f'v_add_u32 v4, s24, v{V_L16}')
    a(f's_mov_b32 s24, {f32(LN2)}')
    a(f's_mov_b32 s25, {f32(LN2)}')
    for mt in range(4):
        a(f'ds_write_b128 v5, {vr(P+4*mt,4)} offset:{16384*3 + 1024*mt}')
    a.wait_all(vm=False)
    a('s_barrier')
    rt = []
    order = [(sl, mt) for mt in range(4) for sl in range(4)]
    for sl, mt in order:
        rt.append(a(f'ds_read_b128 {vr(24+16*sl+4*mt,4)}, v4 offset:{4096*sl + 1024*mt}'))
    for mt in range(4):
        a.wait(rt[4*mt+3])
        for h in range(2):
            r = lambda sl: vr(24+16*sl+4*mt+2*h, 2)
            a(f'v_pk_add_f32 {r(0)}, {r(0)}, {r(1)}')
            a(f'v_pk_add_f32 {r(2)}, {r(2)}, {r(3)}')
        for h in range(2):
            r = lambda sl: vr(24+16*sl+4*mt+2*h, 2)
            a(f'v_pk_add_f32 {r(0)}, {r(0)}, {r(2)}')
        for h in range(2):
            r = lambda sl: vr(24+16*sl+4*mt+2*h, 2)
            a(f'v_pk_fma_f32 {vr(XR+4*mt+2*h,2)}, {r(0)}, s[24:25], {vr(XR+4*mt+2*h,2)}')

def gen_out(a):
    a.comment('---- final output')
    a.lines(f'''
    s_lshl_b32 s24, s{S_G}, 16
    s_lshl_b32 s25, s{S_W}, 14
    s_add_u32 s24, s24, s25
    s_lshl_b32 s25, s{S_J}, 7
    s_add_u32 s24, s24, s25
    v_lshlrev_b32 v4, 10, v{V_T}
    v_lshl_add_u32 v4, v{V_G}, 3, v4
    ''')
    for i in range(8):
        a(f'v_cvt_pk_bf16_f32 v{24+i}, v{XR+2*i}, v{XR+2*i+1}')
    for mt in range(4):
        a(f'buffer_store_dwordx2 {vr(24+2*mt,2)}, v4, {SB}, s24 offen offset:{32*mt} {OUT_SC}')

def gen_main(a):
    deferred = []
    a.raw('MAIN:')
    if PROF:
        a('s_memrealtime s[70:71]'); a.wait_all(vm=False); a('s_mov_b32 s99, s70')
    stamp(a, 'start')
    ids(a, 'MAIN_END')
    a.lines(f'''
    s_load_dwordx2 s[8:9], s[0:1], 64
    s_mov_b32 s10, {2048*1024}
    s_mov_b32 s11, 0x20000
    s_mov_b32 s{S_C}, {f32(2.0**-60)}
    s_mov_b32 s{S_C+1}, {f32(2.0**60)}
    s_mov_b32 s{S_C+2}, {f32(2.0**120)}
    ''')
    misc = gen_attention(a)
    stamp(a, 'att_end')
    gen_att_epilogue(a, misc)
    stamp(a, 'o_stored')
    gen_p1(a, misc, deferred)
    gen_p23(a, deferred)
    stamp(a, 'f2_end')
    a.lines(f'''
    s_cmp_eq_u32 s{S_L}, 0
    s_cbranch_scc1 NEXT_LAYER
    ''')
    gen_out(a)
    stamp_dump(a)
    a('s_endpgm')
    a.raw('NEXT_LAYER:')
    st_voff(a, 137)
    x_publish(a, XR, 24, 92, S_X2O, S_ST2O, 137, sc=D_SC)
    pre = gen_p4_pre(a)
    hop(a, F_X2, deferred, 'x2', 5)
    a.raw('P4_START:')
    gen_p4(a, pre)
    if PROF: a.wait_all()
    stamp(a, 'p4_end')
    stamp_dump(a)
    a.raw('MAIN_END:')
    a('s_endpgm')
    gen_fallback(a)
    for d in deferred: d(a)

KD = '''.amdhsa_kernel {name}
  .amdhsa_next_free_vgpr {nv}
  .amdhsa_next_free_sgpr 100
  .amdhsa_accum_offset {acc}
  .amdhsa_group_segment_fixed_size 0
  .amdhsa_kernarg_size 88
  .amdhsa_user_sgpr_count 2
  .amdhsa_user_sgpr_kernarg_segment_ptr 1
  .amdhsa_system_sgpr_workgroup_id_x 1
.end_amdhsa_kernel
'''
def entry(a, name):
    a.raw(f'.globl {name}'); a.raw('.p2align 8'); a.raw(f'.type {name},@function'); a.raw(f'{name}:')

def build():
    hdr = open('cdna_kernels/' + NAME + '.s.ref').read().split('; Override launch')[0]
    launches = [('pack_kernel', 20480), ('qkv0_kernel', LDS_TOTAL), ('layer0_kernel', LDS_TOTAL), ('layer1_kernel', LDS_TOTAL)]
    out = hdr
    for n, lds in launches:
        out += f'; @launch kernel={n} grid=(256,1,1) block=(256,1,1) lds={lds}\n'
    a = Asm()
    a.raw('.amdgcn_target "amdgcn-amd-amdhsa--gfx950"'); a.raw('.text')
    entry(a, 'pack_kernel'); gen_k0(a)
    entry(a, 'qkv0_kernel'); gen_k1(a)
    entry(a, 'layer1_kernel'); a('s_mov_b32 s3, 1'); a('s_branch MAIN')
    entry(a, 'layer0_kernel'); a('s_mov_b32 s3, 0')
    gen_main(a)
    out += a.text()
    out += '.section .rodata,"a"\n'
    for n, nv, acc in (('pack_kernel', 64, 64), ('qkv0_kernel', 512, 256), ('layer0_kernel', 512, 256), ('layer1_kernel', 512, 256)):
        out += '.p2align 6\n' + KD.format(name=n, nv=nv, acc=acc)
    sys.stderr.write(f'instructions: {len(a.ins)}, nop states inserted: {a.nops}\n')
    return out

if __name__ == '__main__':
    dst = sys.argv[1] if len(sys.argv) > 1 else 'cdna_kernels/' + NAME + '.s'
    if len(sys.argv) > 2 and sys.argv[2].startswith('prof'): PROF = True
    if len(sys.argv) > 2 and sys.argv[2] == 'profrt': STAMP_OP = 's_memrealtime'
    open(dst, 'w').write(build())
    if PROF: open(dst + '.stamps', 'w').write(' '.join(STAMPS))
```

```python
import sys, struct, math, os
OPT = lambda k, d=0: int(os.environ.get(k, d))
from dsl import *
from layout import *

def f32(x): return '0x%08x' % struct.unpack('<I', struct.pack('<f', x))[0]
LOG2E = 1.4426950408889634
LN2 = 0.6931471805599453
M16 = 'v_mfma_f32_16x16x32_bf16'
M32 = 'v_mfma_f32_32x32x16_bf16'
NAME = 'interleave_layers__grouped_kv_mqa__dense_activation_silu__prompt'

S_L = 3
SRD_WS = 4
SRD_B = 8
S_G, S_J, S_W = 12, 13, 14
S_GB, S_GBN, S_KV, S_KVN = 15, 16, 17, 18
S_VMASK = 20
S_T = 24
WS = sr(SRD_WS, 4); SB = sr(SRD_B, 4)
V_L16, V_T, V_G = 1, 2, 3

PROF = False
STAMP_OP = 's_memtime'
STAMPS = []
def stamp(a, name):
    if not PROF: return
    i = len(STAMPS); STAMPS.append(name)
    assert i < 26
    a(f'{STAMP_OP} s[70:71]')
    a.wait_all(vm=False)
    a(f's_mov_b32 s{72+i}, s70')
def stamp_dump(a):
    if not PROF: return
    a('s_memrealtime s[70:71]')
    a.wait_all()
    a.lines(f'''
    s_mov_b32 s98, s70
    s_lshl_b32 s24, s2, 2
    s_add_u32 s24, s24, s{S_W}
    s_lshl_b32 s24, s24, 7
    s_add_u32 s25, s{S_L}, 1
    s_lshl_b32 s25, s25, 17
    s_add_u32 s24, s24, s25
    s_add_u32 s24, s24, {PROF_OFF}
    s_mov_b64 exec, 1
    ''')
    for i in range(28):
        a(f'v_mov_b32 v4, s{72 + i}')
        a(f'buffer_store_dword v4, off, {WS}, s24 offset:{4*i}')
    a('s_mov_b64 exec, -1')

def ids(a, end):
    a.lines(f'''
    s_cmp_ge_u32 s2, 256
    s_cbranch_scc1 {end}
    s_load_dwordx2 s[4:5], s[0:1], 80
    v_lshrrev_b32 v4, 6, v0
    s_and_b32 s24, s2, 7
    s_lshr_b32 s25, s2, 3
    v_readfirstlane_b32 s{S_W}, v4
    s_and_b32 s{S_J}, s25, 7
    s_lshr_b32 s25, s25, 3
    s_lshl_b32 s{S_G}, s24, 2
    s_add_u32 s{S_G}, s{S_G}, s25
    v_and_b32 v0, 63, v0
    v_lshlrev_b32 v{V_L16}, 4, v0
    v_and_b32 v{V_T}, 15, v0
    v_lshrrev_b32 v{V_G}, 4, v0
    s_mov_b32 s6, {WS_USED}
    s_mov_b32 s7, 0x20000
    s_mul_i32 s{S_GB}, s{S_L}, {GB_L}
    s_mul_i32 s24, s{S_G}, {GB_G}
    s_add_u32 s{S_GB}, s{S_GB}, s24
    s_add_u32 s{S_GB}, s{S_GB}, {GB0}
    s_add_u32 s{S_GBN}, s{S_GB}, {GB_L}
    s_mul_i32 s{S_KV}, s{S_L}, {KV_SZ}
    s_add_u32 s{S_KV}, s{S_KV}, {KV0}
    s_add_u32 s{S_KVN}, s{S_KV}, {KV_SZ}
    ''')

DIAG = OPT('DIAG', -1)
def diag_mark(a, idx_expr):
    if DIAG < 0: return
    l = a.label_name('DG')
    a('s_memrealtime s[70:71]')
    a('s_waitcnt lgkmcnt(0)')
    a('s_cmp_lg_u32 s2, 0')
    a(f's_cbranch_scc1 {l}')
    a(idx_expr)
    a('s_lshl_b32 s24, s24, 2')
    a(f's_add_u32 s24, s24, {PROF_OFF}')
    a('v_mov_b32 v4, s70')
    a.raw(f'buffer_store_dword v4, off, {WS}, s24 sc1')
    a.raw(f'{l}:')
def gen_diag(a):
    A, B, F = [(0, 0, 0), (0, 4, 1), (0, 1, 4), (1, 2, 4), (2, 3, 1), (3, 4, 1)][DIAG]
    a.lines(f'''
    s_memrealtime s[16:17]
    s_cmp_lg_u32 s2, 0
    s_cbranch_scc1 DIAG_END
    s_load_dwordx2 s[4:5], s[0:1], 80
    s_mov_b32 s6, {WS_USED}
    s_mov_b32 s7, 0x20000
    s_mov_b32 s24, {PROF_OFF}
    s_waitcnt lgkmcnt(0)
    buffer_load_dwordx4 v[4:7], off, s[4:7], s24 sc1
    s_waitcnt vmcnt(0)
    v_readfirstlane_b32 s30, v4
    v_readfirstlane_b32 s31, v5
    v_readfirstlane_b32 s32, v6
    v_readfirstlane_b32 s33, v7
    s_mov_b32 s34, s16
    s_nop 4
    s_sub_u32 s20, s{30+B}, s{30+A}
    s_min_u32 s20, s20, 20000
    s_mul_i32 s20, s20, {F}
    DIAG_LOOP:
    s_memrealtime s[18:19]
    s_waitcnt lgkmcnt(0)
    s_sub_u32 s21, s18, s16
    s_cmp_lt_u32 s21, s20
    s_cbranch_scc1 DIAG_LOOP
    DIAG_END:
    s_endpgm
    ''')

def x_publish_addr(a, sx, sst, s_gb, o_x, o_st):
    a.lines(f'''
    s_lshl_b32 s24, s{S_W}, 14
    s_lshl_b32 s25, s{S_J}, 11
    s_add_u32 s24, s24, s25
    s_add_u32 s24, s24, s{s_gb}
    s_add_u32 s{sx}, s24, {o_x}
    s_lshl_b32 s25, s{S_J}, 9
    s_lshl_b32 s26, s{S_W}, 7
    s_add_u32 s25, s25, s26
    s_add_u32 s25, s25, s{s_gb}
    s_add_u32 s{sst}, s25, {o_st}
    ''')
def st_voff(a, v):
    a(f'v_lshrrev_b32 v{v}, 1, v{V_G}')
    a(f'v_lshlrev_b32 v{v}, 2, v{v}')
    a(f'v_lshl_add_u32 v{v}, v{V_T}, 3, v{v}')
def x_publish(a, acc, pk, tmp, sx, sst, vst, have_pk=False, sc=''):
    for h in range(2):
        if not have_pk:
            for i in range(4*h, 4*h+4):
                a(f'v_cvt_pk_bf16_f32 v{pk+i}, v{acc+2*i}, v{acc+2*i+1}')
        a(f'buffer_store_dwordx4 {vr(pk+4*h,4)}, v{V_L16}, {WS}, s{sx} offen offset:{1024*h} {sc}')
    s, q = tmp, tmp + 2
    a(f'v_pk_add_f32 {vr(s,2)}, {vr(acc,2)}, {vr(acc+2,2)}')
    a(f'v_pk_mul_f32 {vr(q,2)}, {vr(acc,2)}, {vr(acc,2)}')
    for i in range(1, 8):
        if i > 1: a(f'v_pk_add_f32 {vr(s,2)}, {vr(s,2)}, {vr(acc+2*i,2)}')
        a(f'v_pk_fma_f32 {vr(q,2)}, {vr(acc+2*i,2)}, {vr(acc+2*i,2)}, {vr(q,2)}')
    a(f'v_add_f32 v{s}, v{s}, v{s+1}')
    a(f'v_add_f32 v{q}, v{q}, v{q+1}')
    a(f'v_permlane32_swap_b32 v{s}, v{q}')
    a(f'v_add_f32 v{s}, v{s}, v{q}')
    a(f'v_mov_b32 v{q}, v{s}')
    a(f'v_permlane16_swap_b32 v{s}, v{q}')
    a(f'v_add_f32 v{s}, v{s}, v{q}')
    return a(f'buffer_store_dword v{s}, v{vst}, {WS}, s{sst} offen {sc}')

def rstd_from(a, st, out, scale):
    L = []
    for i in range(4): L.append(f'v_pk_add_f32 {vr(st+4*i,2)}, {vr(st+4*i,2)}, {vr(st+4*i+2,2)}')
    L.append(f'v_pk_add_f32 {vr(st,2)}, {vr(st,2)}, {vr(st+4,2)}')
    L.append(f'v_pk_add_f32 {vr(st+8,2)}, {vr(st+8,2)}, {vr(st+12,2)}')
    L.append(f'v_pk_add_f32 {vr(st,2)}, {vr(st,2)}, {vr(st+8,2)}')
    L.append(f'v_mul_f32 v{st}, {f32(1/512)}, v{st}')
    L.append(f'v_mul_f32 v{st+1}, {f32(1/512)}, v{st+1}')
    L.append(f'v_fma_f32 v{st+1}, -v{st}, v{st}, v{st+1}')
    L.append(f'v_max_f32 v{st+1}, 0, v{st+1}')
    L.append(f'v_add_f32 v{st+1}, {f32(1e-5)}, v{st+1}')
    L.append(f'v_rsq_f32 v{out}, v{st+1}')
    if scale != 1.0: L.append(f'v_mul_f32 v{out}, {f32(scale)}, v{out}')
    return L

def gen_k0(a):
    end = 'K0_END'
    a('s_mov_b32 s3, 0')
    ids(a, end)
    a.lines('''
    s_load_dwordx4 s[40:43], s[0:1], 0
    s_load_dwordx4 s[44:47], s[0:1], 16
    s_load_dwordx2 s[48:49], s[0:1], 32
    s_load_dwordx4 s[52:55], s[0:1], 48
    s_waitcnt lgkmcnt(0)
    ''')
    diag_mark(a, 's_mov_b32 s24, 0')
    a.lines(f'''
    s_mov_b32 s8, s40
    s_mov_b32 s9, s41
    s_mov_b32 s10, {2048*1024}
    s_mov_b32 s11, 0x20000
    s_lshl_b32 s24, s{S_G}, 16
    s_lshl_b32 s25, s{S_W}, 14
    s_add_u32 s24, s24, s25
    s_lshl_b32 s25, s{S_J}, 7
    s_add_u32 s24, s24, s25
    v_lshlrev_b32 v4, 10, v{V_T}
    v_lshl_add_u32 v4, v{V_G}, 3, v4
    ''')
    for mt in range(4):
        t = a(f'buffer_load_dwordx2 {vr(8+2*mt,2)}, v4, {SB}, s24 offen offset:{32*mt}')
    a.lines(f'''
    s_cmp_ge_u32 s{S_J}, 2
    s_cbranch_scc1 K0_NOZ
    s_cmp_lg_u32 s{S_W}, 0
    s_cbranch_scc1 K0_NOZ
    s_lshl_b32 s24, s{S_J}, 15
    s_lshl_b32 s25, s{S_G}, 10
    s_add_u32 s24, s24, s25
    s_add_u32 s24, s24, {FLAGS}
    v_mov_b32 v40, 0
    v_mov_b32 v41, 0
    v_mov_b32 v42, 0
    v_mov_b32 v43, 0
    buffer_store_dwordx4 v[40:43], v{V_L16}, {WS}, s24 offen sc1
    K0_NOZ:
    ''')
    a.wait_all()
    for i in range(8):
        a(f'v_lshlrev_b32 v{16+2*i}, 16, v{8+i}')
        a(f'v_and_b32 v{17+2*i}, 0xffff0000, v{8+i}')
    x_publish_addr(a, 28, 29, S_GB, O_XIN, O_STIN)
    st_voff(a, 36)
    x_publish(a, 16, 8, 32, 28, 29, 36, have_pk=True, sc='sc1')
    a.lines(f'''
    s_cmp_ge_u32 s2, 128
    s_cbranch_scc1 K0_UNIT
    ''')
    a.lines(f'''
    s_cmp_ge_u32 s2, 88
    s_cbranch_scc1 K0_SQ
    s_mov_b32 s8, s52
    s_mov_b32 s9, s53
    s_cmp_lt_u32 s2, 86
    s_cselect_b32 s10, {512*2752}, 0
    s_mov_b32 s30, 2752
    s_lshl_b32 s31, s2, 5
    s_lshl_b32 s32, s2, 14
    s_add_u32 s32, s32, {W1_P}
    s_mov_b32 s33, 1024
    s_mov_b32 s34, 0
    s_branch K0_STRIP
    K0_SQ:
    s_cmp_ge_u32 s2, 120
    s_cbranch_scc1 K0_SKV
    s_sub_u32 s24, s2, 88
    s_mov_b32 s8, s42
    s_mov_b32 s9, s43
    s_mov_b32 s10, {512*1024}
    s_mov_b32 s30, 1024
    s_lshl_b32 s31, s24, 5
    s_lshr_b32 s25, s24, 2
    s_and_b32 s26, s24, 3
    s_mul_i32 s32, s25, 81920
    s_lshl_b32 s26, s26, 10
    s_add_u32 s32, s32, s26
    s_add_u32 s32, s32, {WQKV_P}
    s_mov_b32 s33, 5120
    s_lshl_b32 s34, s25, 1
    s_branch K0_STRIP
    K0_SKV:
    s_sub_u32 s25, s2, 120
    s_bitcmp1_b32 s25, 0
    s_cselect_b32 s8, s46, s44
    s_cselect_b32 s9, s47, s45
    s_mov_b32 s10, {512*32}
    s_mov_b32 s30, 32
    s_mov_b32 s31, 0
    s_mul_i32 s32, s25, 81920
    s_add_u32 s32, s32, {WQKV_P + 4096}
    s_mov_b32 s33, 5120
    s_lshl_b32 s34, s25, 1
    K0_STRIP:
    s_mov_b32 s11, 0x20000
    v_lshrrev_b32 v4, 1, v0
    v_mul_lo_u32 v4, v4, s30
    v_and_b32 v5, 1, v0
    v_lshl_add_u32 v4, v5, 4, v4
    s_lshl_b32 s24, s{S_W}, 7
    s_mul_i32 s24, s24, s30
    s_add_u32 s24, s24, s31
    s_lshl_b32 s25, s30, 5
    s_lshl_b32 s26, s{S_W}, 12
    ''')
    for i in range(4):
        a(f's_mov_b32 m0, s26')
        a(f'buffer_load_dwordx4 v4, {SB}, s24 offen lds')
        a('s_add_u32 s24, s24, s25')
        a('s_add_u32 s26, s26, 1024')
    a.lines(f'''
    v_lshlrev_b32 v5, 3, v{V_T}
    v_lshl_add_u32 v5, v{V_G}, 7, v5
    s_lshl_b32 s26, s{S_W}, 12
    v_add_u32 v5, s26, v5
    v_mov_b32 v40, 0x3f803f80
    v_mov_b32 v41, 0x3f803f80
    v_mov_b32 v42, 0x3f803f80
    v_mov_b32 v43, 0x3f803f80
    ''')
    a.wait_all()
    for i in range(4):
        a(f'ds_read_b64_tr_b16 {vr(8+4*i,2)}, v5 offset:{1024*i}')
        a(f'ds_read_b64_tr_b16 {vr(10+4*i,2)}, v5 offset:{1024*i+512}')
    a.wait_all()
    for i in range(4):
        a(f'{M16} v[44:47], v[40:43], {vr(8+4*i,4)}, {"0" if i == 0 else "v[44:47]"}')
    a.lines(f'''
    v_lshlrev_b32 v6, 2, v0
    s_lshl_b32 s26, s{S_W}, 8
    v_add_u32 v7, s26, v6
    ds_write_b32 v7, v44 offset:16384
    ''')
    a.wait_all()
    a('s_barrier')
    for i in range(4): a(f'ds_read_b32 v{48+i}, v6 offset:{16384+256*i}')
    a.wait_all()
    a.lines(f'''
    v_add_f32 v48, v48, v49
    v_add_f32 v50, v50, v51
    v_add_f32 v48, v48, v50
    v_mul_f32 v48, {f32(1/512)}, v48
    ''')
    for i in range(16):
        a(f'v_lshlrev_b32 v50, 16, v{8+i}')
        a(f'v_and_b32 v51, 0xffff0000, v{8+i}')
        a(f'v_sub_f32 v50, v50, v48')
        a(f'v_sub_f32 v51, v51, v48')
        a(f'v_cvt_pk_bf16_f32 v{8+i}, v50, v51')
    for i in range(4):
        a.lines(f'''
        s_lshl_b32 s24, s{S_W}, 2
        s_add_u32 s24, s24, {i + 16}
        s_sub_u32 s24, s24, s34
        s_and_b32 s24, s24, 15
        s_mul_i32 s24, s24, s33
        s_add_u32 s24, s24, s32
        buffer_store_dwordx4 {vr(8+4*i,4)}, v{V_L16}, {WS}, s24 offen sc1
        ''')
    a(f's_branch {end}')
    a.lines(f'''
    K0_UNIT:
    s_sub_u32 s29, s2, 128
    s_lshl_b32 s29, s29, 2
    s_add_u32 s29, s29, s{S_W}
    s_cmp_ge_u32 s29, 480
    s_cbranch_scc1 {end}
    s_cmp_ge_u32 s29, 352
    s_cbranch_scc1 K0_UO
    s_mov_b32 s8, s54
    s_mov_b32 s9, s55
    s_mov_b32 s10, {1376*1024}
    s_mul_i32 s24, s29, 5958
    s_lshr_b32 s24, s24, 16
    s_mul_i32 s25, s24, 11
    s_sub_u32 s25, s29, s25
    s_lshr_b32 s26, s24, 2
    s_and_b32 s27, s24, 3
    s_lshl_b32 s33, s26, 7
    s_lshl_b32 s32, s29, 12
    s_add_u32 s32, s32, {W2_P}
    s_mul_i32 s27, s27, 22
    s_cmp_ge_u32 s25, 8
    s_cbranch_scc1 K0_UH
    s_lshr_b32 s26, s25, 2
    s_mul_i32 s26, s26, 11
    s_and_b32 s28, s25, 3
    s_mul_i32 s28, s28, 3
    s_add_u32 s27, s27, s26
    s_add_u32 s27, s27, s28
    s_lshl_b32 s30, s27, 4
    s_add_u32 s31, s30, 16
    s_mov_b32 s34, 8
    s_mov_b32 s35, 4
    s_mov_b32 s36, 16
    s_branch K0_UGO
    K0_UH:
    s_mov_b32 s30, 2
    s_mov_b32 s31, 5
    s_cmp_eq_u32 s25, 9
    s_cselect_b32 s30, 8, s30
    s_cselect_b32 s31, 13, s31
    s_cmp_eq_u32 s25, 10
    s_cselect_b32 s30, 16, s30
    s_cselect_b32 s31, 19, s31
    s_add_u32 s30, s30, s27
    s_add_u32 s31, s31, s27
    s_lshl_b32 s30, s30, 4
    s_lshl_b32 s31, s31, 4
    s_mov_b32 s34, 16
    s_mov_b32 s35, 8
    s_mov_b32 s36, 4
    s_branch K0_UGO
    K0_UO:
    s_mov_b32 s8, s48
    s_mov_b32 s9, s49
    s_mov_b32 s10, {512*1024}
    s_sub_u32 s24, s29, 352
    s_lshr_b32 s26, s24, 4
    s_lshl_b32 s33, s26, 7
    s_lshl_b32 s32, s24, 12
    s_add_u32 s32, s32, {WO_P}
    s_lshl_b32 s26, s26, 1
    s_add_u32 s26, s26, s24
    s_and_b32 s26, s26, 15
    s_lshl_b32 s30, s26, 5
    s_add_u32 s31, s30, 16
    s_mov_b32 s34, 16
    s_mov_b32 s35, 4
    s_mov_b32 s36, 8
    K0_UGO:
    s_mov_b32 s11, 0x20000
    v_lshrrev_b32 v4, 3, v0
    v_lshlrev_b32 v4, 10, v4
    v_and_b32 v5, 7, v0
    v_lshl_add_u32 v4, v5, 4, v4
    s_lshl_b32 s30, s30, 10
    s_add_u32 s30, s30, s33
    s_lshl_b32 s31, s31, 10
    s_add_u32 s31, s31, s33
    s_lshl_b32 s26, s{S_W}, 12
    ''')
    for i in range(4):
        s = 30 + (i >> 1)
        a('s_mov_b32 m0, s26')
        a(f'buffer_load_dwordx4 v4, {SB}, s{s} offen lds')
        a(f's_add_u32 s{s}, s{s}, 8192')
        a('s_add_u32 s26, s26, 1024')
    a.lines(f'''
    v_lshrrev_b32 v5, 1, v{V_G}
    v_mul_lo_u32 v5, v5, s34
    v_and_b32 v6, 1, v{V_G}
    v_mul_lo_u32 v6, v6, s35
    v_add_u32 v5, v5, v6
    v_lshrrev_b32 v6, 2, v{V_T}
    v_add_u32 v5, v5, v6
    v_lshlrev_b32 v5, 7, v5
    v_and_b32 v6, 3, v0
    v_lshl_add_u32 v5, v6, 3, v5
    s_lshl_b32 s26, s{S_W}, 12
    v_add_u32 v5, s26, v5
    s_lshl_b32 s36, s36, 7
    v_add_u32 v6, s36, v5
    ''')
    a.wait_all()
    for mt in range(4):
        a(f'ds_read_b64_tr_b16 {vr(8+4*mt,2)}, v5 offset:{32*mt}')
        a(f'ds_read_b64_tr_b16 {vr(10+4*mt,2)}, v6 offset:{32*mt}')
    a.wait_all()
    for mt in range(4):
        a(f'buffer_store_dwordx4 {vr(8+4*mt,4)}, v{V_L16}, {WS}, s32 offen offset:{1024*mt} sc1')
    a.raw(f'{end}:')
    a('s_endpgm')

LDS_WO, LDS_WQ, LDS_SCR, LDS_ST = 0, 65536, 131072, 147456
LDS_TOTAL = 163840
VQ, VS0, VS1, VP, VO, VKV = 8, 24, 40, 56, 64, 128
XR = 8
OUT_SC = 'sc1' if OPT('OUT_SC1', 0) else ''
POLL_MAX = 400000
FORCE_SLOW = OPT('FORCE_SLOW', 0)
H_SC = 'sc1' if OPT('H_SC1', 1) else ''
D_SC = 'sc1' if OPT('D_SC1', 1) else ''
S_FLAG, S_FLINE, S_SLOW = 19, 22, 23
S_IDX, S_KB = 30, 31
S_KP, S_WP = 32, 34
S_OST = 36
S_C = 40
S_ROT = 44
S_X1O, S_ST1O, S_X2O, S_ST2O = 52, 53, 54, 55
S_HF, S_HH, S_HB, S_XD = 56, 57, 58, 59
S_QO, S_KVO, S_XRES, S_W2L, S_WQL = 60, 62, 63, 64, 65
S_STD, S_STN = 66, 67

def w2reg(f):
    if f < 16: return ar(192 + 4*f, 4)
    if f < 42: return vr(152 + 4*(f-16), 4)
    return vr(144 + 4*(f-42), 4)
def w1reg(i, ks): return ar((i*16 + ks)*4, 4)

def flag_set(a, line_off, deferred):
    skip = a.label_name('FS'); slow = a.label_name('FSS')
    a(f's_cmp_lg_u32 s{S_W}, 0')
    a(f's_cbranch_scc1 {skip}')
    a(f's_cmp_lg_u32 s{S_SLOW}, 0')
    a(f's_cbranch_scc1 {slow}')
    a('s_mov_b64 exec, 1')
    a.raw(f'buffer_store_dword v7, off, {WS}, s{S_FLAG} offset:{line_off}')
    a('s_mov_b64 exec, -1')
    a.raw(f'{skip}:')
    def d(b):
        b.raw(f'{slow}:')
        b.raw('buffer_wbl2 sc1')
        b('s_waitcnt vmcnt(0)')
        b('s_mov_b64 exec, 1')
        b(f'buffer_store_dword v7, off, {WS}, s{S_FLAG} offset:{line_off} sc1')
        b('s_mov_b64 exec, -1')
        b(f's_branch {skip}')
    deferred.append(d)

def acquire_slow(a, deferred):
    slow = a.label_name('AQS'); back = a.label_name('AQB')
    a(f's_cmp_lg_u32 s{S_SLOW}, 0')
    a(f's_cbranch_scc1 {slow}')
    a.raw(f'{back}:')
    def d(b):
        b.raw(f'{slow}:')
        b.raw('buffer_inv sc1')
        b('s_waitcnt vmcnt(0)')
        b(f's_branch {back}')
    deferred.append(d)

def hop(a, line_off, deferred, tag, vtmp):
    lp = a.label_name('POLL'); dn = a.label_name('POLLD'); sk = a.label_name('POLLS')
    a.wait_all(lg=False)
    stamp(a, tag + '_drained')
    a('s_barrier')
    flag_set(a, line_off, deferred)
    a(f's_cmp_lg_u32 s{S_W}, 1')
    a(f's_cbranch_scc1 {sk}')
    a('s_mov_b32 s25, 0')
    a.raw(f'{lp}:')
    a.raw(f'buffer_load_dword v{vtmp}, v6, {WS}, s{S_FLINE} offen offset:{line_off} sc1')
    a(f's_add_u32 s25, s25, 1')
    a('s_waitcnt vmcnt(0)')
    a(f's_cmp_gt_u32 s25, {POLL_MAX}')
    a(f's_cbranch_scc1 {dn}')
    a(f'v_cmp_eq_u32 vcc, 0, v{vtmp}')
    a(f's_cbranch_vccnz {lp}')
    a.raw(f'{dn}:')
    acquire_slow(a, deferred)
    a.raw(f'{sk}:')
    a('s_barrier')
    stamp(a, tag + '_polled')

def pre_rot(a):
    a(f's_lshl_b32 s26, s{S_W}, 14')
    a(f's_lshl_b32 s27, s{S_J}, 11')
    for pp in range(8):
        a(f's_add_u32 s{S_ROT+pp}, s27, s26')
        if pp < 7:
            a('s_add_u32 s27, s27, 2048')
            a('s_and_b32 s27, s27, 0x3fff')

def bfrag_load(B, voff, s):
    return f'buffer_load_dwordx4 {vr(B+4*s,4)}, v{voff}, {WS}, s{S_ROT+(s>>1)} offen offset:{1024*(s&1)} sc1'

def gemm_w(a, B, voff, AW, nwin, ntile, lds_addr_fn, pre, mfmas, late=(), tag=None):
    LA = OPT('GW_LA', 7)
    atoks = list(pre)
    btoks = [a(bfrag_load(B, voff, s)) for s in range(LA)]
    late = list(late); ltok = None
    n = 16*ntile
    for k in range(n):
        s, t = divmod(k, ntile)
        a.wait(atoks[k], btoks[s])
        if tag and OPT('P1_STAMPS') and t == 0 and s in (0, 4, 8, 12): stamp(a, f'{tag}_s{s}')
        for m in mfmas(s, t, vr(AW + 4*(k % nwin), 4), vr(B+4*s, 4)): a(m)
        if t == 1:
            if len(btoks) < 16: btoks.append(a(bfrag_load(B, voff, len(btoks))))
            elif late: ltok = a(late.pop(0)) or ltok
        if t == 3 and len(btoks) == 16 and late: ltok = a(late.pop(0)) or ltok
        if len(atoks) < n:
            kk = len(atoks); v, off = lds_addr_fn(kk)
            atoks.append(a(f'ds_read_b128 {vr(AW + 4*(kk % nwin),4)}, v{v} offset:{off}'))
    for x in late: ltok = a(x) or ltok
    return ltok

def pre_p4(a):
    a.lines(f'''
    s_lshl_b32 s24, s{S_W}, 7
    s_add_u32 s24, s24, s{S_GBN}
    s_add_u32 s{S_STN}, s24, {O_STIN}
    s_lshr_b32 s24, s{S_W}, 1
    s_lshl_b32 s24, s24, 10
    s_and_b32 s25, s{S_W}, 1
    s_lshl_b32 s25, s25, 8
    s_add_u32 s24, s24, s25
    s_lshl_b32 s25, s{S_J}, 13
    s_add_u32 s24, s24, s25
    s_add_u32 s24, s24, s{S_GBN}
    s_add_u32 s{S_QO}, s24, {O_Q}
    s_add_u32 s{S_QO+1}, s{S_QO}, 4096
    s_lshl_b32 s24, s{S_G}, 1
    s_lshr_b32 s25, s{S_W}, 1
    s_add_u32 s24, s24, s25
    s_lshl_b32 s24, s24, 11
    s_add_u32 s24, s24, s{S_KVN}
    s_and_b32 s25, s{S_W}, 1
    s_lshl_b32 s26, s25, 8
    s_lshl_b32 s27, s25, 9
    s_add_u32 s27, s27, 1024
    s_bitcmp1_b32 s{S_J}, 0
    s_cselect_b32 s26, s27, s26
    s_add_u32 s{S_KVO}, s24, s26
    ''')

P4_ACC, P4_B, P4_AW, P4_NW, P4_ST, P4_RS = 8, 32, 96, 6, 120, 136
def p4_addr(k):
    s, t = divmod(k, 5)
    off = s*5120 + t*1024
    return (140, off) if s < 8 else (141, off - 40960)
def gen_p4_pre(a):
    a.lines(f'''
    v_add_u32 v140, {LDS_WQ}, v{V_L16}
    v_add_u32 v141, {LDS_WQ + 40960}, v{V_L16}
    v_lshlrev_b32 v142, 3, v{V_T}
    v_add_u32 v143, s{S_GBN}, v{V_L16}
    ''')
    pre = []
    for k in range(P4_NW):
        v, off = p4_addr(k)
        pre.append(a(f'ds_read_b128 {vr(P4_AW+4*k,4)}, v{v} offset:{off}'))
    return pre
def gen_p4(a, pre):
    ACC, B, AW, NW, ST, RS = P4_ACC, P4_B, P4_AW, P4_NW, P4_ST, P4_RS
    KA, VA = 24, 28
    assert O_XIN == 0
    stl = [f'buffer_load_dwordx2 {vr(ST+2*p,2)}, v142, {WS}, s{S_STN} offen offset:{512*p} sc1' for p in range(8)]
    def mf(s, t, A, Bq):
        if t < 4: return [f'{M16} {vr(ACC+4*t,4)}, {A}, {Bq}, {"0" if s == 0 else vr(ACC+4*t,4)}']
        return [f'{M16} {vr(KA,4)}, {A}, {Bq}, {"0" if s == 0 else vr(KA,4)}',
                f'{M16} {vr(VA,4)}, {Bq}, {A}, {"0" if s == 0 else vr(VA,4)}']
    st = gemm_w(a, B, 143, AW, NW, 5, p4_addr, pre, mf, late=stl)
    a.lines(f'''
    v_lshrrev_b32 v4, 1, v{V_G}
    v_and_b32 v7, 1, v{V_G}
    v_lshlrev_b32 v5, 9, v4
    v_lshl_add_u32 v5, v{V_T}, 4, v5
    v_lshl_add_u32 v5, v7, 3, v5
    v_lshlrev_b32 v6, 8, v7
    v_lshl_add_u32 v6, v{V_T}, 4, v6
    v_lshl_add_u32 v6, v4, 3, v6
    v_lshlrev_b32 v4, 4, v{V_G}
    ''')
    a.wait(st)
    for l in rstd_from(a, ST, RS, 1.0): a(l)
    for r in range(4): bp = a(f'ds_bpermute_b32 v{ST+r}, v4, v{RS} offset:{4*r}')
    a(f'v_mul_f32 v{RS+2}, {f32(0.25*LOG2E)}, v{RS}')
    for mt in range(4):
        r = ACC + 4*mt
        a(f'v_pk_mul_f32 {vr(r,2)}, {vr(r,2)}, {vr(RS+2,2)} op_sel_hi:[1,0]')
        a(f'v_pk_mul_f32 {vr(r+2,2)}, {vr(r+2,2)}, {vr(RS+2,2)} op_sel_hi:[1,0]')
        a(f'v_cvt_pk_bf16_f32 v{r}, v{r}, v{r+1}')
        a(f'v_cvt_pk_bf16_f32 v{r+1}, v{r+2}, v{r+3}')
        a(f'buffer_store_dwordx2 {vr(r,2)}, v5, {WS}, s{S_QO + (mt>>1)} offen offset:{2048*(mt&1)} sc1')
    a.lines(f'''
    s_lshr_b32 s24, s{S_J}, 1
    s_cmp_lg_u32 s24, s{S_W}
    s_cbranch_scc1 P4_DONE
    s_bitcmp1_b32 s{S_J}, 0
    s_cbranch_scc1 P4_V
    v_pk_mul_f32 {vr(KA,2)}, {vr(KA,2)}, {vr(RS,2)} op_sel_hi:[1,0]
    v_pk_mul_f32 {vr(KA+2,2)}, {vr(KA+2,2)}, {vr(RS,2)} op_sel_hi:[1,0]
    v_cvt_pk_bf16_f32 v{KA}, v{KA}, v{KA+1}
    v_cvt_pk_bf16_f32 v{KA+1}, v{KA+2}, v{KA+3}
    buffer_store_dwordx2 {vr(KA,2)}, v5, {WS}, s{S_KVO} offen sc1
    s_branch P4_DONE
    P4_V:
    s_waitcnt lgkmcnt(0)
    v_pk_mul_f32 {vr(VA,2)}, {vr(VA,2)}, {vr(ST,2)}
    v_pk_mul_f32 {vr(VA+2,2)}, {vr(VA+2,2)}, {vr(ST+2,2)}
    v_cvt_pk_bf16_f32 v{VA}, v{VA}, v{VA+1}
    v_cvt_pk_bf16_f32 v{VA+1}, v{VA+2}, v{VA+3}
    buffer_store_dwordx2 {vr(VA,2)}, v6, {WS}, s{S_KVO} offen sc1
    P4_DONE:
    ''')

def gen_k1(a):
    a('s_mov_b32 s3, -1')
    ids(a, 'MAIN_END')
    a('s_waitcnt lgkmcnt(0)')
    diag_mark(a, 's_mov_b32 s24, 1')
    a.lines(f'''
    s_mul_i32 s24, s{S_J}, 81920
    s_lshl_b32 s25, s{S_W}, 12
    s_add_u32 s24, s24, s25
    s_add_u32 s24, s24, {WQKV_P}
    s_add_u32 s25, s25, {LDS_WQ}
    ''')
    for R in range(5):
        a('s_mov_b32 m0, s25')
        for i in range(4):
            a(f'buffer_load_dwordx4 v{V_L16}, {WS}, s24 offen offset:{1024*i} lds')
        a('s_add_u32 s24, s24, 16384')
        a('s_add_u32 s25, s25, 16384')
    pre_rot(a); pre_p4(a)
    a.wait_all()
    a('s_barrier')
    gen_p4_pre(a)
    a.wait_all()
    a('s_branch P4_START')

def gen_attention(a):
    a.comment('---- attention: 4 q-tiles x 32 key tiles per wave; slots 0,1 = partner head, 2,3 = own head')
    KP, WP = sr(S_KP, 2), sr(S_WP, 2)
    a.lines(f'''
    s_lshr_b32 s26, s{S_W}, 1
    s_and_b32 s27, s{S_W}, 1
    s_lshl_b32 s24, s{S_J}, 13
    s_lshl_b32 s25, s27, 12
    s_add_u32 s24, s24, s25
    s_add_u32 s24, s24, s{S_GB}
    s_add_u32 s24, s24, {O_Q}
    s_lshl_b32 s25, s26, 11
    s_xor_b32 s28, s25, 2048
    s_add_u32 s25, s25, s24
    s_add_u32 s28, s28, s24
    s_lshl_b32 s{S_KB}, s26, 16
    s_add_u32 s{S_KB}, s{S_KB}, s{S_KV}
    s_lshr_b32 s{S_IDX}, s2, 3
    s_lshl_b32 s{S_IDX}, s{S_IDX}, 11
    s_add_u32 s29, s{S_IDX}, s{S_KB}
    s_mov_b32 s{S_VMASK}, 0xffff
    s_mov_b32 s{S_VMASK+1}, 0xffff
    v_lshrrev_b32 v4, 1, v{V_G}
    v_lshlrev_b32 v4, 8, v4
    v_lshl_add_u32 v7, v{V_T}, 4, v4
    v_and_b32 v4, 27, v0
    v_cmp_eq_u32 vcc, 16, v4
    v_mov_b32 v4, 0x3f803f80
    v_cndmask_b32 v4, 0, v4, vcc
    ''')
    for b in range(2):
        for i in range(8): a(f'v_mov_b32 v{VKV+12*b+4+i}, v4')
    a('s_waitcnt lgkmcnt(0)')
    a(f's_add_u32 s{S_KB}, s{S_KB}, s4')
    a(f's_addc_u32 s{S_KB+7}, s5, 0')
    Kr = lambda i: vr(VKV + 12*(i & 1), 4)
    Vr = lambda i, u: vr(VKV + 12*(i & 1) + 4 + 4*u, 4)
    ktok, vtok = {}, {}
    def ldK(i): ktok[i] = a(f'global_load_dwordx4 {Kr(i)}, v{V_L16}, {KP}')
    def ldV(i):
        a(f's_mov_b64 exec, {sr(S_VMASK,2)}')
        a(f'global_load_dwordx4 {Vr(i,0)}, v7, {KP} offset:1024')
        vtok[i] = a(f'global_load_dwordx4 {Vr(i,1)}, v7, {KP} offset:1536')
        a('s_mov_b64 exec, -1')
    adv = [f's_add_u32 s{S_IDX}, s{S_IDX}, 2048', f's_and_b32 s{S_IDX}, s{S_IDX}, 0xffff',
           f's_add_u32 s{S_KP}, s{S_IDX}, s{S_KB}', f's_addc_u32 s{S_KP+1}, s{S_KB+7}, 0']
    a(adv[2]); a(adv[3])
    ldK(0)
    qt = []
    for sl in range(4):
        qt.append(a(f'buffer_load_dwordx4 {vr(VQ+4*sl,4)}, v{V_L16}, {WS}, s{28 if sl < 2 else 25} offen offset:{1024*(sl&1)}'))
    ldV(0)
    for x in adv: a(x)
    ldK(1)
    a.lines(f'''
    s_lshl_b32 s24, s{S_L}, 15
    s_lshl_b32 s29, s{S_G}, 10
    s_add_u32 s24, s24, s29
    s_add_u32 s{S_FLINE}, s24, {FLAGS}
    s_lshl_b32 s29, s{S_J}, 2
    s_add_u32 s{S_FLAG}, s{S_FLINE}, s29
    s_getreg_b32 s{S_SLOW}, hwreg(HW_REG_XCC_ID, 0, 4)
    s_add_u32 s{S_SLOW}, s{S_SLOW}, 1
    v_and_b32 v6, 7, v0
    v_lshlrev_b32 v6, 2, v6
    v_mov_b32 v5, s{S_SLOW}
    s_cmp_lg_u32 s{S_W}, 0
    s_cbranch_scc1 XCC_DONE
    s_mov_b64 exec, 1
    ''')
    a.raw(f'buffer_store_dword v5, off, {WS}, s{S_FLAG} offset:{F_XCC} sc1')
    a('s_mov_b64 exec, -1')
    a.raw('XCC_DONE:')
    pre_rot(a); pre_p4(a)
    x_publish_addr(a, S_X1O, S_ST1O, S_GB, O_X1, O_ST1)
    x_publish_addr(a, S_X2O, S_ST2O, S_GBN, O_XIN, O_STIN)
    a.lines(f'''
    s_sub_u32 s{S_XRES}, s{S_X1O}, {O_X1 - O_XIN}
    s_lshl_b32 s24, s{S_J}, 1
    s_and_b32 s25, s{S_W}, 1
    s_add_u32 s24, s24, s25
    s_lshl_b32 s24, s24, 10
    s_lshr_b32 s25, s{S_W}, 1
    s_lshl_b32 s25, s25, 9
    s_add_u32 s24, s24, s25
    s_add_u32 s24, s24, s{S_GB}
    s_add_u32 s{S_OST}, s24, {O_O}
    s_add_u32 s{S_OST+1}, s{S_OST}, 32768
    s_add_u32 s68, s{S_OST}, 16384
    s_add_u32 s69, s{S_OST}, 49152
    s_lshr_b32 s24, s{S_J}, 1
    s_mul_i32 s24, s24, 11
    s_and_b32 s25, s{S_J}, 1
    s_lshl_b32 s26, s25, 2
    s_add_u32 s26, s26, s{S_W}
    s_add_u32 s26, s26, s24
    s_lshl_b32 s26, s26, 10
    s_add_u32 s27, s{S_GB}, {O_H}
    s_add_u32 s{S_HF}, s26, s27
    s_mul_i32 s25, s25, 3
    s_add_u32 s25, s25, s{S_W}
    s_lshl_b32 s25, s25, 9
    s_add_u32 s24, s24, 8
    s_lshl_b32 s24, s24, 10
    s_add_u32 s24, s24, s25
    s_add_u32 s24, s24, s27
    s_cmp_eq_u32 s{S_W}, 3
    s_cselect_b32 s{S_HH}, {WS_USED}, s24
    s_mul_i32 s24, s{S_W}, {11*1024}
    s_add_u32 s{S_HB}, s24, s27
    s_lshl_b32 s25, s{S_W}, 12
    s_add_u32 s26, s25, s{S_GB}
    s_add_u32 s{S_XD}, s26, {O_X1}
    s_lshl_b32 s25, s{S_W}, 10
    s_add_u32 s26, s25, s{S_GB}
    s_add_u32 s{S_STD}, s26, {O_ST1}
    s_lshl_b32 s27, s{S_W}, 12
    s_lshl_b32 s24, s{S_J}, 16
    s_add_u32 s24, s24, s27
    s_add_u32 s24, s24, {WO_P}
    s_mul_i32 s25, s{S_J}, {11*16384}
    s_mul_i32 s26, s{S_W}, {3*16384}
    s_add_u32 s25, s25, s26
    s_add_u32 s25, s25, {W1_P}
    s_mul_i32 s26, s{S_J}, 81920
    s_add_u32 s26, s26, s27
    s_add_u32 s26, s26, {WQKV_P}
    s_add_u32 s{S_WQL}, s26, 65536
    s_mul_i32 s28, s{S_J}, {44*4096}
    s_mul_i32 s29, s{S_W}, {11*4096}
    s_add_u32 s28, s28, s29
    s_add_u32 s28, s28, {W2_P}
    s_add_u32 s{S_W2L}, s28, {10*4096}
    s_mul_i32 s29, s{S_W}, 6144
    s_add_u32 s29, s29, {LDS_SCR}
    v_add_u32 v4, s29, v{V_L16}
    ''')
    groups = []
    start = lambda s: [f's_add_u32 s{S_WP}, s4, s{s}', f's_addc_u32 s{S_WP+1}, s5, 0']
    step = lambda n: [f's_add_u32 s{S_WP}, s{S_WP}, {n}', f's_addc_u32 s{S_WP+1}, s{S_WP+1}, 0']
    dma4 = [f'global_load_lds_dwordx4 v{V_L16}, {WP} offset:{1024*i}' for i in range(4)]
    for R in range(4):
        groups.append(((start(24) + [f's_add_u32 m0, s27, {LDS_WO}']) if R == 0 else (step(16384) + ['s_add_u32 m0, m0, 16384']), dma4))
    for G in range(12):
        groups.append((start(25) if G == 0 else step(4096), [f'global_load_dwordx4 {ar(16*G+4*i,4)}, v{V_L16}, {WP} offset:{1024*i}' for i in range(4)]))
    for R in range(4):
        groups.append(((start(26) + [f's_add_u32 m0, s27, {LDS_WQ}']) if R == 0 else (step(16384) + ['s_add_u32 m0, m0, 16384']), dma4))
    for G in range(11):
        groups.append((start(28) if G == 0 else step(4096), [f'global_load_dwordx4 {w2reg(4*G+i)}, v{V_L16}, {WP} offset:{1024*i}' for i in range(4) if 4*G+i < 42]))
    assert len(groups) == 31
    Sr = lambda n: VS0 if (n & 1) == 0 else VS1
    def QK(n):
        i, q = n >> 2, n & 3
        return f'{M32} {vr(Sr(n),16)}, {Kr(i)}, {vr(VQ+4*q,4)}, 0'
    def PV(n, u):
        i, q = n >> 2, n & 3
        c = '0' if (i == 0 and u == 0) else vr(VO+16*q, 16)
        return f'{M32} {vr(VO+16*q,16)}, {Vr(i,u)}, {vr(VP+4*u,4)}, {c}'
    a(groups[0][0][0]); a(groups[0][0][1])
    a.wait(ktok[0], qt[3])
    stamp(a, 'att_go')
    a(QK(0))
    a('s_nop 7')
    N = 128
    misc = {}
    def scr_w(sl):
        o = VO + 16*sl
        return [f'ds_write_b128 v4, {vr(o,4)} offset:{3072*sl}', f'ds_write_b128 v4, {vr(o+4,4)} offset:{3072*sl+1024}',
                f'ds_write_b32 v4, v{o+8} offset:{3072*sl+2048}']
    for n in range(N):
        i, q = n >> 2, n & 3
        S = Sr(n)
        e = lambda k: a(f'v_exp_f32 v{S+k}, v{S+k}')
        c = lambda k: a(f'v_cvt_pk_bf16_f32 v{VP+k}, v{S+2*k}, v{S+2*k+1}')
        x0, x1, x2 = [], [], []
        pad = lambda l, k: list(l) + [None]*(k - len(l))
        setup, loads = groups[i] if i < len(groups) else ([], [])
        setup, loads = pad(setup, 3), pad(loads, 4)
        nsetup = pad(groups[i+1][0] if i + 1 < len(groups) else [], 3)
        if q == 0:
            x0 += [lambda ii=i: a.wait(vtok[ii])]
            if i + 1 < 32: x1.append(lambda ii=i+1: ldV(ii))
            x2 += [setup[2]]
        elif q == 1:
            x0 += [adv[0], loads[0]]; x1 += [adv[1], loads[1]]; x2 += [adv[2], loads[2]]
        elif q == 2:
            x0 += [adv[3], loads[3]]
            if i + 1 < 32: x2.append(lambda ii=i+1: a.wait(ktok[ii]))
        else:
            if i + 2 < 32: x0.append(lambda ii=i+2: ldK(ii))
            x1 += [nsetup[0]]; x2 += [nsetup[1]]
        PT = OPT('PT', 0)
        if PT and i == PT and q == 3:
            x1 += [f'buffer_load_dword v5, v{V_L16}, {WS}, s{S_X1O} offen', f'buffer_load_dword v5, v{V_L16}, {WS}, s{S_X1O} offen offset:1024',
                   f'buffer_load_dword v5, off, {WS}, s{S_ST1O}']
            x2 += [f'buffer_load_dword v5, v{V_L16}, {WS}, s{S_X2O} offen', f'buffer_load_dword v5, v{V_L16}, {WS}, s{S_X2O} offen offset:1024',
                   f'buffer_load_dword v5, off, {WS}, s{S_ST2O}']
        if PT and i == PT + 1 and q == 3:
            x1 += [f'buffer_load_dword v5, v7, {WS}, s{S_OST} offen', f'buffer_load_dword v5, v7, {WS}, s{S_OST+1} offen',
                   f'buffer_load_dword v5, v{V_L16}, {WS}, s{S_FLINE} offen']
            x2 += [f'buffer_load_dword v5, v7, {WS}, s68 offen', f'buffer_load_dword v5, v7, {WS}, s69 offen']
        if n == 30*4 + 3:
            x0.append(lambda: misc.__setitem__('xcc', a(f'buffer_load_dword v5, v6, {WS}, s{S_FLINE} offen offset:{F_XCC} sc1')))
            x1.append(f'buffer_load_dwordx4 v[128:131], v{V_L16}, {WS}, s{S_XRES} offen')
        if n == 31*4: x1.append(lambda: misc.__setitem__('xt', a(f'buffer_load_dwordx4 v[132:135], v{V_L16}, {WS}, s{S_XRES} offen offset:1024')))
        if n == 126: x1 += scr_w(0)[:2]; x2 += scr_w(0)[2:]
        if n == 127: x1 += scr_w(1)[:2]; x2 += scr_w(1)[2:]
        def run(xs):
            for x in xs:
                if x is None: continue
                if callable(x): x()
                else: a(x)
        if n + 1 < N: a(QK(n+1))
        run(x0)
        e(0); e(1); e(2); e(3); c(0); e(4)
        if n > 0: a(PV(n-1, 1))
        run(x1)
        e(5); c(1); e(6); e(7); c(2); e(8); c(3); e(9); e(10)
        a(PV(n, 0))
        run(x2)
        c(4); e(11); e(12); c(5); e(13); e(14); e(15); c(6); c(7)
    a.wait_all(vm=False)
    a('s_barrier')
    a(PV(N-1, 1))
    return misc

def gen_att_epilogue(a, misc):
    a.comment('---- pair reduce, range check, normalise, publish O')
    T = 24
    O2, O3 = VO + 32, VO + 48
    a(f'v_xor_b32 v4, {2*6144}, v4' if False else f's_xor_b32 s24, s{S_W}, 2')
    a(f's_mul_i32 s24, s24, 6144')
    a(f's_add_u32 s24, s24, {LDS_SCR}')
    a(f'v_add_u32 v4, s24, v{V_L16}')
    rt = []
    for sl in (0, 1):
        a(f'ds_read_b128 {vr(T+12*sl,4)}, v4 offset:{3072*sl}')
        a(f'ds_read_b128 {vr(T+12*sl+4,4)}, v4 offset:{3072*sl+1024}')
        rt.append(a(f'ds_read_b32 v{T+12*sl+8}, v4 offset:{3072*sl+2048}'))
    a.wait(misc['xcc'])
    a.lines(f'''
    v_cmp_ne_u32 vcc, s{S_SLOW}, v5
    v_and_b32 v4, 1, v{V_G}
    v_lshlrev_b32 v4, 14, v4
    v_add_u32 v4, v4, v7
    s_cmp_lg_u64 vcc, 0
    s_cselect_b32 s{S_SLOW}, 1, {FORCE_SLOW}
    ''')
    for sl, o in ((0, O2), (1, O3)):
        a.wait(rt[sl])
        a(f'v_add_f32 v{o+8}, v{o+8}, v{T+12*sl+8}')
        for k in range(4):
            a(f'v_pk_add_f32 {vr(o+2*k,2)}, {vr(o+2*k,2)}, {vr(T+12*sl+2*k,2)}')
    a.lines(f'''
    v_minimum3_f32 v26, v{O2+8}, v{O3+8}, v{O3+8}
    v_maximum3_f32 v27, v{O2+8}, v{O3+8}, v{O3+8}
    v_maximum3_f32 v24, |v{O2}|, |v{O2+1}|, |v{O2+2}|
    v_maximum3_f32 v25, |v{O3}|, |v{O3+1}|, |v{O3+2}|
    v_cmp_le_f32 s[24:25], s{S_C}, v26
    v_cmp_ge_f32 s[26:27], s{S_C+1}, v27
    v_maximum3_f32 v24, |v{O2+3}|, |v{O2+4}|, v24
    v_maximum3_f32 v25, |v{O3+3}|, |v{O3+4}|, v25
    v_maximum3_f32 v24, |v{O2+5}|, |v{O2+6}|, v24
    v_maximum3_f32 v25, |v{O3+5}|, |v{O3+6}|, v25
    v_maximum3_f32 v24, |v{O2+7}|, |v{O3+7}|, v24
    s_and_b64 s[24:25], s[24:25], s[26:27]
    v_maximum3_f32 v24, v24, v25, v25
    v_cmp_ge_f32 vcc, s{S_C+2}, v24
    v_rcp_f32 v{O2+10}, v{O2+8}
    v_rcp_f32 v{O3+10}, v{O3+8}
    s_and_b64 s[24:25], s[24:25], vcc
    s_cmp_eq_u64 s[24:25], -1
    s_cbranch_scc0 FALLBACK
    ATT_NORM:
    ''')
    for sl, o in ((0, O2), (1, O3)):
        for k in range(4):
            a(f'v_pk_mul_f32 {vr(o+2*k,2)}, {vr(o+2*k,2)}, {vr(o+10,2)} op_sel_hi:[1,0]')
        for k in range(4):
            a(f'v_cvt_pk_bf16_f32 v{24+4*sl+k}, v{o+2*k}, v{o+2*k+1}')
        a(f'buffer_store_dwordx4 {vr(24+4*sl,4)}, v4, {WS}, s{S_OST+sl} offen {D_SC}')

def gen_fallback(a):
    a.comment('---- fallback: true-max softmax')
    a.raw('FALLBACK:')
    K, V0, V1, NM = 136, 140, 144, 64
    a.wait_all()
    for i in range(8): a(f'v_mov_b32 v{V0+i}, 0x3f803f80')
    for sl in (2, 3):
        o = VO + 16*sl
        l1 = a.label_name('FB1'); l2 = a.label_name('FB2')
        a(f'v_mov_b32 v56, 0xff800000')
        a(f's_mov_b32 s24, s{S_KV}')
        a(f's_add_u32 s25, s{S_KV}, {KV_SZ}')
        a.raw(f'{l1}:')
        a(f'buffer_load_dwordx4 {vr(K,4)}, v{V_L16}, {WS}, s24 offen')
        a.wait_all()
        a(f'{M32} {vr(VS0,16)}, {vr(K,4)}, {vr(VQ+4*sl,4)}, 0')
        for k in range(8):
            a(f'v_max3_f32 v56, v{VS0+2*k}, v{VS0+2*k+1}, v56')
        a('s_add_u32 s24, s24, 2048')
        a('s_cmp_lt_u32 s24, s25')
        a(f's_cbranch_scc1 {l1}')
        a('v_mov_b32 v57, v56')
        a('v_permlane32_swap_b32 v56, v57')
        a('v_max_f32 v56, v56, v57')
        for k in range(16):
            a(f'v_sub_f32 v{NM+k}, 0, v56')
            a(f'v_mov_b32 v{o+k}, 0')
        a(f's_mov_b32 s24, s{S_KV}')
        a.raw(f'{l2}:')
        a(f'buffer_load_dwordx4 {vr(K,4)}, v{V_L16}, {WS}, s24 offen')
        a(f's_mov_b64 exec, {sr(S_VMASK,2)}')
        a(f'buffer_load_dwordx4 {vr(V0,4)}, v7, {WS}, s24 offen offset:1024')
        a(f'buffer_load_dwordx4 {vr(V1,4)}, v7, {WS}, s24 offen offset:1536')
        a('s_mov_b64 exec, -1')
        a.wait_all()
        a(f'{M32} {vr(VS0,16)}, {vr(K,4)}, {vr(VQ+4*sl,4)}, {vr(NM,16)}')
        for k in range(16): a(f'v_exp_f32 v{VS0+k}, v{VS0+k}')
        for k in range(8): a(f'v_cvt_pk_bf16_f32 v{VP+k}, v{VS0+2*k}, v{VS0+2*k+1}')
        a(f'{M32} {vr(o,16)}, {vr(V0,4)}, {vr(VP,4)}, {vr(o,16)}')
        a(f'{M32} {vr(o,16)}, {vr(V1,4)}, {vr(VP+4,4)}, {vr(o,16)}')
        a('s_add_u32 s24, s24, 2048')
        a('s_cmp_lt_u32 s24, s25')
        a('s_nop 15')
        a(f's_cbranch_scc1 {l2}')
        a('s_nop 15')
        a(f'v_rcp_f32 v{o+10}, v{o+8}')
    a('s_nop 3')
    a('s_branch ATT_NORM')

def gen_p1(a, misc, deferred):
    a.comment('---- P1: output projection + residual')
    B, AW, NW = 24, 88, 12
    a('v_mov_b32 v7, 1')
    a.wait(misc['xt'])
    for i in range(8):
        a(f'v_lshlrev_b32 v{XR+2*i}, 16, v{128+i}')
        a(f'v_and_b32 v{XR+2*i+1}, 0xffff0000, v{128+i}')
    a(f's_add_u32 s24, s{S_GB}, {O_O}')
    a(f'v_add_u32 v136, s24, v{V_L16}')
    st_voff(a, 137)
    a(f's_lshl_b32 s25, s{S_W}, 12')
    a(f's_add_u32 m0, s25, {LDS_WQ + 65536}')
    addr = lambda k: (V_L16, LDS_WO + 1024*k)
    pre = []
    for k in range(NW):
        v, off = addr(k)
        pre.append(a(f'ds_read_b128 {vr(AW+4*k,4)}, v{v} offset:{off}'))
    hop(a, F_O, deferred, 'o', 5)
    late = [f'buffer_load_dwordx4 {w2reg(42)}, v{V_L16}, {WS}, s{S_W2L} offen offset:2048',
            f'buffer_load_dwordx4 {w2reg(43)}, v{V_L16}, {WS}, s{S_W2L} offen offset:3072']
    late += [f'buffer_load_dwordx4 v{V_L16}, {WS}, s{S_WQL} offen offset:{1024*i} lds' for i in range(4)]
    gemm_w(a, B, 136, AW, NW, 4, addr, pre, lambda s, t, A, Bq: [f'{M16} {vr(XR+4*t,4)}, {A}, {Bq}, {vr(XR+4*t,4)}'], late=late, tag='p1')
    stamp(a, 'p1_gemm')
    x_publish(a, XR, 24, 32, S_X1O, S_ST1O, 137, sc=D_SC)

def gen_p23(a, deferred):
    a.comment('---- P2: LN + FFN1 + silu')
    B0, B1, BW, NBW, ACC, TMP, PK, RS, ST = 24, 68, 68, 6, (92, 104), 116, 128, 138, 24
    a.lines(f'''
    v_lshrrev_b32 v5, 1, v{V_G}
    v_lshlrev_b32 v5, 8, v5
    v_lshl_add_u32 v5, v{V_T}, 4, v5
    v_and_b32 v4, 1, v{V_G}
    v_lshl_add_u32 v5, v4, 3, v5
    v_lshlrev_b32 v136, 3, v0
    v_add_u32 v136, {LDS_ST}, v136
    s_lshl_b32 s28, s{S_W}, 12
    s_lshl_b32 s29, s{S_W}, 10
    s_add_u32 s29, s29, {LDS_ST}
    s_add_u32 m0, s28, {LDS_WO}
    ''')
    hop(a, F_X1, deferred, 'x1', 4)
    dma = {}
    xd = lambda i: f'buffer_load_dwordx4 v{V_L16}, {WS}, s{S_XD} offen offset:{1024*i} sc1 lds'
    for i in range(4): a(xd(i))
    a('s_mov_b32 m0, s29')
    a(f's_add_u32 s{S_XD}, s{S_XD}, 16384')
    dma[0] = a(f'buffer_load_dwordx4 v{V_L16}, {WS}, s{S_STD} offen sc1 lds')
    a(f's_add_u32 m0, s28, {LDS_WO + 16384}')
    if OPT('XD_BAR', 1): a('s_barrier')
    for i in range(4): dma[1] = a(xd(i))
    dq = []
    for nt in (2, 3):
        dq += [f's_add_u32 s{S_XD}, s{S_XD}, 16384', 's_add_u32 m0, m0, 16384'] + [(nt, xd(i)) for i in range(4)]
    cost = lambda s: 8 if s.split()[0] in TRANS else 4
    def epi(nt):
        A = ACC[nt & 1]
        L = [f'v_mul_f32 v{A+k}, v{A+k}, v{RS+nt}' for k in range(12)]
        L += [f'v_exp_f32 v{TMP+k}, -v{A+k}' for k in range(12)]
        L += [f'v_add_f32 v{TMP+k}, 1.0, v{TMP+k}' for k in range(12)]
        L += [f'v_rcp_f32 v{TMP+k}, v{TMP+k}' for k in range(12)]
        L += [f'v_mul_f32 v{A+k}, v{A+k}, v{TMP+k}' for k in range(12)]
        L += [f'v_cvt_pk_bf16_f32 v{PK+k}, v{A+2*k}, v{A+2*k+1}' for k in range(6)]
        return L
    def epi_pk(nt):
        A = ACC[nt & 1]
        L = [f'v_mov_b32 v{RS}, v{RS+nt}']
        L += [f'v_pk_mul_f32 {vr(A+2*k,2)}, {vr(A+2*k,2)}, {vr(RS,2)} op_sel_hi:[1,0]' for k in range(6)]
        L += [f'v_exp_f32 v{TMP+k}, -v{A+k}' for k in range(12)]
        L += [f'v_pk_add_f32 {vr(TMP+2*k,2)}, {vr(TMP+2*k,2)}, 1.0 op_sel_hi:[1,0]' for k in range(6)]
        L += [f'v_rcp_f32 v{TMP+k}, v{TMP+k}' for k in range(12)]
        L += [f'v_pk_mul_f32 {vr(A+2*k,2)}, {vr(A+2*k,2)}, {vr(TMP+2*k,2)}' for k in range(6)]
        L += [f'v_cvt_pk_bf16_f32 v{PK+k}, v{A+2*k}, v{A+2*k+1}' for k in range(6)]
        return L
    hst = {}
    def hstore(nt):
        a(f'buffer_store_dwordx4 {vr(PK,4)}, v{V_L16}, {WS}, s{S_HF} offen {H_SC}')
        hst[nt] = a(f'buffer_store_dwordx2 {vr(PK+4,2)}, v5, {WS}, s{S_HH} offen {H_SC}')
    hadv = [f's_add_u32 s{S_HF}, s{S_HF}, {44*1024}', f's_add_u32 s{S_HH}, s{S_HH}, {44*1024}']
    ptok = {}
    def hpoll_issue(nt):
        ptok[nt] = a(f'buffer_load_dword v4, v6, {WS}, s{S_FLINE} offen offset:{F_H + 128*nt} sc1')
    def hpoll_check(nt):
        slow = a.label_name('HSLOW'); ok = a.label_name('HOK')
        a.wait(ptok[nt])
        a('v_cmp_eq_u32 vcc, 0, v4')
        a(f's_cbranch_vccnz {slow}')
        a.raw(f'{ok}:')
        acquire_slow(a, deferred)
        def d(b):
            lp = b.label_name('HLP')
            b.raw(f'{slow}:')
            b('s_mov_b32 s24, 0')
            b.raw(f'{lp}:')
            b(f'buffer_load_dword v4, v6, {WS}, s{S_FLINE} offen offset:{F_H + 128*nt} sc1')
            b('s_add_u32 s24, s24, 1')
            b('s_waitcnt vmcnt(0)')
            b(f's_cmp_gt_u32 s24, {POLL_MAX}')
            b(f's_cbranch_scc1 {ok}')
            b('v_cmp_eq_u32 vcc, 0, v4')
            b(f's_cbranch_vccnz {lp}')
            b(f's_branch {ok}')
        deferred.append(d)
    hb = {nt: [None]*11 for nt in range(4)}
    def hload(nt, s):
        Bb = B0 if (nt & 1) == 0 else B1
        if s and s % 4 == 0: a(f's_add_u32 s{S_HB}, s{S_HB}, 4096')
        hb[nt][s] = a(f'buffer_load_dwordx4 {vr(Bb+4*s,4)}, v{V_L16}, {WS}, s{S_HB} offen offset:{1024*(s%4)} sc1')
        if s == 10: a(f's_add_u32 s{S_HB}, s{S_HB}, {44*1024 - 8192}')
    hlist = lambda nt: [(lambda s=s: hload(nt, s)) for s in range(11)]
    stl = rstd_from(a, ST, RS, LOG2E)
    stl += [f'v_mov_b32 v{RS+2}, v{RS}', f'v_permlane32_swap_b32 v{RS}, v{RS+2}',
            f'v_mov_b32 v{RS+1}, v{RS}', f'v_mov_b32 v{RS+3}, v{RS+2}',
            f'v_permlane16_swap_b32 v{RS}, v{RS+1}', f'v_permlane16_swap_b32 v{RS+2}, v{RS+3}']
    btok = []
    def bread():
        k = len(btok)
        if k >= 64: return
        btok.append(a(f'ds_read_b128 {vr(BW+4*(k % NBW),4)}, v{V_L16} offset:{LDS_WO + 1024*k}'))
    a.wait(dma[0]); a('s_barrier')
    for _ in range(NBW - 1): bread()
    strd = [f'ds_read_b64 {vr(ST+2*p,2)}, v136 offset:{512*p}' for p in range(8)]
    pend = []
    KB = OPT('KB', 8)
    CR = OPT('CR10', 95) / 10
    a.wait(btok[0])
    for nt in range(4):
        stamp(a, f'f1_nt{nt}')
        A = ACC[nt & 1]
        ex = stl if nt == 0 else epi(nt-1)
        sal = list(hadv) if nt >= 2 else []
        credit = 0.0
        for ks in range(16):
            k = nt*16 + ks
            for i in range(3):
                a(f'{M16} {vr(A+4*i,4)}, {w1reg(i,ks)}, {vr(BW+4*(k % NBW),4)}, {"0" if ks == 0 else vr(A+4*i,4)}')
                credit += CR
                if i == 0:
                    if sal and ks > 0: a(sal.pop(0))
                    bread(); credit -= 4
                if i == 1 and nt == 0 and strd:
                    a(strd.pop(0)); stt = a(strd.pop(0)); credit -= 8
                if i == 1 and nt == 0 and ks >= 4 and dq:
                    x = dq.pop(0)
                    if isinstance(x, tuple): dma[x[0]] = a(x[1]); credit -= 8
                    else: a(x)
                if i == 1 and ks == KB:
                    a.wait(dma[nt+1] if nt < 3 else None, hst[nt-2] if nt >= 2 else None)
                    a('s_barrier')
                    if nt >= 2: flag_set(a, F_H + 128*(nt-2), deferred)
                if i == 1 and nt == 3:
                    if ks == 0: hpoll_issue(0)
                    if ks == 7: hpoll_check(0); pend = hlist(0)
                if i == 2 and k + 1 < 64: a.wait(btok[k+1])
                if nt == 3 and pend and i == 2: pend.pop(0)(); credit -= 8
                if nt == 3 and pend and i == 1 and ks > 12: pend.pop(0)(); credit -= 8
                if ks*3 + i < 3 or (nt == 0 and ks < 9): credit = 0; continue
                while ex and credit >= cost(ex[0]):
                    credit -= cost(ex[0]); a(ex.pop(0))
        for x in pend: x()
        pend = []
        for x in ex: a(x)
        if nt >= 1: hstore(nt-1)
    hpoll_issue(1)
    for x in hadv: a(x)
    stamp(a, 'f1_main_end')
    for x in epi_pk(3): a(x)
    hstore(3)
    AC2 = (112, 128)
    a(f'v_add_u32 v5, s28, v{V_L16}')
    hpoll_check(1)
    F2, P2I, P2C, F3, P3I, P3C = OPT('F2', 0), OPT('P2I', 5), OPT('P2C', 12), OPT('F3', 6), OPT('P3I', 13), OPT('P3C', 20)
    roll = [(1, x) for x in range(11)]
    for nt in range(4):
        if not OPT('P1_STAMPS'): stamp(a, f'f2_nt{nt}')
        A = AC2[nt & 1]; Bb = B0 if (nt & 1) == 0 else B1
        wr = []
        if nt > 0:
            P = AC2[(nt-1) & 1]
            wr = [f'ds_write_b128 v5, {vr(P+4*mt,4)} offset:{16384*(nt-1) + 1024*mt}' for mt in range(4)]
        for s in range(11):
            pos = nt*11 + s
            a.wait(hb[nt][s])
            for mt in range(4):
                a(f'{M16} {vr(A+4*mt,4)}, {w2reg(4*s+mt)}, {vr(Bb+4*s,4)}, {"0" if s == 0 else vr(A+4*mt,4)}')
                if mt == 0:
                    if pos == P2C: hpoll_check(2); roll += [(2, x) for x in range(11)]
                    if pos == P3C: hpoll_check(3); roll += [(3, x) for x in range(11)]
                    if pos == F2: a.wait(hst[2]); a('s_barrier'); flag_set(a, F_H + 128*2, deferred)
                    if pos == F3: a.wait(hst[3]); a('s_barrier'); flag_set(a, F_H + 128*3, deferred)
                free = lambda: roll and (roll[0][0]-2)*11 + roll[0][1] < pos
                behind = lambda: roll and roll[0][0]*11 + roll[0][1] < pos + 11
                if mt == 1 and free(): hload(*roll.pop(0))
                if mt == 3 and free() and behind(): hload(*roll.pop(0))
                if mt == 2:
                    if pos == P2I: hpoll_issue(2)
                    elif pos == P3I: hpoll_issue(3)
                    elif s >= 3 and wr: a(wr.pop(0))
        assert not wr
    assert not roll
    stamp(a, 'f2_mfma_end')
    P = AC2[1]
    a(f's_lshl_b32 s24, s{S_W}, 14')
    a(f'v_add_u32 v4, s24, v{V_L16}')
    a(f's_mov_b32 s24, {f32(LN2)}')
    a(f's_mov_b32 s25, {f32(LN2)}')
    for mt in range(4):
        a(f'ds_write_b128 v5, {vr(P+4*mt,4)} offset:{16384*3 + 1024*mt}')
    a.wait_all(vm=False)
    a('s_barrier')
    rt = []
    order = [(sl, mt) for mt in range(4) for sl in range(4)]
    for sl, mt in order:
        rt.append(a(f'ds_read_b128 {vr(24+16*sl+4*mt,4)}, v4 offset:{4096*sl + 1024*mt}'))
    for mt in range(4):
        a.wait(rt[4*mt+3])
        for h in range(2):
            r = lambda sl: vr(24+16*sl+4*mt+2*h, 2)
            a(f'v_pk_add_f32 {r(0)}, {r(0)}, {r(1)}')
            a(f'v_pk_add_f32 {r(2)}, {r(2)}, {r(3)}')
        for h in range(2):
            r = lambda sl: vr(24+16*sl+4*mt+2*h, 2)
            a(f'v_pk_add_f32 {r(0)}, {r(0)}, {r(2)}')
        for h in range(2):
            r = lambda sl: vr(24+16*sl+4*mt+2*h, 2)
            a(f'v_pk_fma_f32 {vr(XR+4*mt+2*h,2)}, {r(0)}, s[24:25], {vr(XR+4*mt+2*h,2)}')

def gen_out(a):
    a.comment('---- final output')
    a.lines(f'''
    s_lshl_b32 s24, s{S_G}, 16
    s_lshl_b32 s25, s{S_W}, 14
    s_add_u32 s24, s24, s25
    s_lshl_b32 s25, s{S_J}, 7
    s_add_u32 s24, s24, s25
    v_lshlrev_b32 v4, 10, v{V_T}
    v_lshl_add_u32 v4, v{V_G}, 3, v4
    ''')
    for i in range(8):
        a(f'v_cvt_pk_bf16_f32 v{24+i}, v{XR+2*i}, v{XR+2*i+1}')
    for mt in range(4):
        a(f'buffer_store_dwordx2 {vr(24+2*mt,2)}, v4, {SB}, s24 offen offset:{32*mt} {OUT_SC}')

def gen_main(a):
    deferred = []
    a.raw('MAIN:')
    if PROF:
        a('s_memrealtime s[70:71]'); a.wait_all(vm=False); a('s_mov_b32 s99, s70')
    stamp(a, 'start')
    ids(a, 'MAIN_END')
    a.lines(f'''
    s_load_dwordx2 s[8:9], s[0:1], 64
    s_mov_b32 s10, {2048*1024}
    s_mov_b32 s11, 0x20000
    s_mov_b32 s{S_C}, {f32(2.0**-60)}
    s_mov_b32 s{S_C+1}, {f32(2.0**60)}
    s_mov_b32 s{S_C+2}, {f32(2.0**120)}
    ''')
    diag_mark(a, f's_add_u32 s24, s{S_L}, 2')
    misc = gen_attention(a)
    stamp(a, 'att_end')
    gen_att_epilogue(a, misc)
    stamp(a, 'o_stored')
    gen_p1(a, misc, deferred)
    gen_p23(a, deferred)
    stamp(a, 'f2_end')
    a.lines(f'''
    s_cmp_eq_u32 s{S_L}, 0
    s_cbranch_scc1 NEXT_LAYER
    ''')
    gen_out(a)
    stamp_dump(a)
    a('s_endpgm')
    a.raw('NEXT_LAYER:')
    st_voff(a, 137)
    x_publish(a, XR, 24, 92, S_X2O, S_ST2O, 137, sc=D_SC)
    pre = gen_p4_pre(a)
    hop(a, F_X2, deferred, 'x2', 5)
    a.raw('P4_START:')
    gen_p4(a, pre)
    if PROF: a.wait_all()
    stamp(a, 'p4_end')
    stamp_dump(a)
    a.raw('MAIN_END:')
    a('s_endpgm')
    gen_fallback(a)
    for d in deferred: d(a)

KD = '''.amdhsa_kernel {name}
  .amdhsa_next_free_vgpr {nv}
  .amdhsa_next_free_sgpr 100
  .amdhsa_accum_offset {acc}
  .amdhsa_group_segment_fixed_size 0
  .amdhsa_kernarg_size 88
  .amdhsa_user_sgpr_count 2
  .amdhsa_user_sgpr_kernarg_segment_ptr 1
  .amdhsa_system_sgpr_workgroup_id_x 1
.end_amdhsa_kernel
'''
def entry(a, name):
    a.raw(f'.globl {name}'); a.raw('.p2align 8'); a.raw(f'.type {name},@function'); a.raw(f'{name}:')

def build():
    hdr = open('cdna_kernels/' + NAME + '.s.ref').read().split('; Override launch')[0]
    launches = [('pack_kernel', 20480), ('qkv0_kernel', LDS_TOTAL), ('layer0_kernel', LDS_TOTAL), ('layer1_kernel', LDS_TOTAL)]
    if DIAG >= 0: launches.append(('diag_kernel', 0))
    out = hdr
    for n, lds in launches:
        out += f'; @launch kernel={n} grid=(256,1,1) block=(256,1,1) lds={lds}\n'
    a = Asm()
    a.raw('.amdgcn_target "amdgcn-amd-amdhsa--gfx950"'); a.raw('.text')
    entry(a, 'pack_kernel'); gen_k0(a)
    entry(a, 'qkv0_kernel'); gen_k1(a)
    if DIAG >= 0: entry(a, 'diag_kernel'); gen_diag(a)
    entry(a, 'layer1_kernel'); a('s_mov_b32 s3, 1'); a('s_branch MAIN')
    entry(a, 'layer0_kernel'); a('s_mov_b32 s3, 0')
    gen_main(a)
    out += a.text()
    out += '.section .rodata,"a"\n'
    for n, nv, acc in (('pack_kernel', 64, 64), ('qkv0_kernel', 512, 256), ('layer0_kernel', 512, 256), ('layer1_kernel', 512, 256)) + ((('diag_kernel', 64, 64),) if DIAG >= 0 else ()):
        out += '.p2align 6\n' + KD.format(name=n, nv=nv, acc=acc)
    sys.stderr.write(f'instructions: {len(a.ins)}, nop states inserted: {a.nops}\n')
    return out

if __name__ == '__main__':
    dst = sys.argv[1] if len(sys.argv) > 1 else 'cdna_kernels/' + NAME + '.s'
    if len(sys.argv) > 2 and sys.argv[2].startswith('prof'): PROF = True
    if len(sys.argv) > 2 and sys.argv[2] == 'profrt': STAMP_OP = 's_memrealtime'
    open(dst, 'w').write(build())
    if PROF: open(dst + '.stamps', 'w').write(' '.join(STAMPS))
```

```python
import re

REG_RE = re.compile(r'^(-|abs\(|\|)?([vas])(?:(\d+)|\[(\d+):(\d+)\])(\)|\|)?$')
TRANS = ('v_exp_f32', 'v_log_f32', 'v_rcp_f32', 'v_rsq_f32', 'v_sqrt_f32', 'v_sin_f32', 'v_cos_f32')

def regs(tok):
    tok = tok.strip()
    if tok in ('vcc', 'vcc_lo', 'vcc_hi'): return {('s', 'vcc')}
    if tok in ('exec', 'exec_lo', 'exec_hi'): return {('s', 'exec')}
    if tok == 'm0': return {('s', 'm0')}
    m = REG_RE.match(tok)
    if not m: return set()
    k = m.group(2)
    if m.group(3) is not None: return {(k, int(m.group(3)))}
    return {(k, i) for i in range(int(m.group(4)), int(m.group(5)) + 1)}

def split_ops(s):
    out, depth, cur = [], 0, ''
    for ch in s:
        if ch in '[(': depth += 1
        if ch in '])': depth -= 1
        if ch == ',' and depth == 0:
            out.append(cur.strip()); cur = ''
        else: cur += ch
    if cur.strip(): out.append(cur.strip())
    return out

class Ins:
    def __init__(self, text):
        self.text = text
        body = text.split(';')[0].strip()
        self.label = body.endswith(':')
        self.directive = body.startswith('.') or body == ''
        self.mn = ''; self.cls = 'other'; self.rd = set(); self.wr = set()
        self.A = self.B = self.C = self.D = set(); self.passes = 0; self.states = 1
        self.wide_store = set()
        if self.label or self.directive:
            self.states = 0; self.cls = 'label' if self.label else 'dir'; return
        parts = body.split(None, 1)
        mn = self.mn = parts[0]
        rest = parts[1] if len(parts) > 1 else ''
        ops = split_ops(rest)
        mods = ''
        if ops:
            l = ops[-1].split(None, 1)
            ops[-1] = l[0]; mods = l[1] if len(l) > 1 else ''
        self.mods = mods
        R = [regs(o) for o in ops]
        U = lambda xs: set().union(*xs) if xs else set()
        base = re.sub(r'_(e32|e64|dpp|sdwa)$', '', mn)
        if mn == 's_nop':
            self.cls = 'nop'; self.states = int(ops[0], 0) + 1
        elif mn.startswith('v_mfma'):
            self.cls = 'mfma'
            self.D, self.A, self.B, self.C = R[0], R[1], R[2], R[3]
            self.passes = 8 if '32x32' in mn else 4
            self.rd = self.A | self.B | self.C; self.wr = self.D
        elif mn.startswith('v_'):
            self.cls = 'valu'
            self.trans = base in TRANS
            self.perm = base.startswith('v_permlane')
            self.dpp = mn.endswith('_dpp') or 'row_' in mods or 'quad_perm' in mods
            self.rdlane = base in ('v_readfirstlane_b32', 'v_readlane_b32')
            self.dot = base.startswith('v_dot')
            if self.perm:
                self.rd = R[0] | R[1]; self.wr = R[0] | R[1]
            elif base in ('v_add_co_u32', 'v_sub_co_u32', 'v_addc_co_u32', 'v_subb_co_u32'):
                self.wr = R[0] | R[1]; self.rd = U(R[2:])
            else:
                self.wr = R[0]; self.rd = U(R[1:])
                if base in ('v_fmac_f32', 'v_dot2c_f32_bf16', 'v_pk_fmac_f16') or self.dpp: self.rd |= R[0]
                if base == 'v_cndmask_b32' and len(R) == 3: self.rd |= {('s', 'vcc')}
        elif mn.startswith('ds_read') or mn.startswith('ds_bpermute') or mn.startswith('ds_swizzle'):
            self.cls = 'dsr'; self.wr = R[0]; self.rd = U(R[1:])
        elif mn.startswith('ds_write'):
            self.cls = 'dsw'; self.rd = U(R)
        elif mn.startswith('buffer_load') or mn.startswith('global_load'):
            if 'lds' in mods.split() or '_lds_' in mn:
                self.cls = 'dma'; self.rd = U(R) | {('s', 'm0')}
            else:
                self.cls = 'vld'; self.wr = R[0]; self.rd = U(R[1:])
        elif mn.startswith('buffer_store'):
            self.cls = 'vst'; self.rd = U(R)
            if mn.endswith('x4') or mn.endswith('x3'): self.wide_store = R[0]
        elif mn.startswith('global_store'):
            self.cls = 'vst'; self.rd = U(R)
            if mn.endswith('x4') or mn.endswith('x3'): self.wide_store = R[1]
        elif mn.startswith('s_cbranch') or mn == 's_branch' or mn == 's_endpgm' or mn == 's_setpc_b64':
            self.cls = 'branch'
            if 'vcc' in mn: self.rd = {('s', 'vcc')}
        elif mn in ('s_waitcnt', 's_barrier', 's_sleep', 's_setprio', 'buffer_wbl2', 'buffer_inv'):
            self.cls = 'sync'
        elif mn.startswith('s_cmp') or mn.startswith('s_bitcmp'):
            self.cls = 'salu'; self.rd = U(R)
        elif mn.startswith('s_'):
            self.cls = 'salu'; self.wr = R[0] if R else set(); self.rd = U(R[1:])
            if 'saveexec' in mn: self.wr = self.wr | {('s', 'exec')}
        else:
            raise ValueError('unknown instruction: ' + text)

def need_states(p, c):
    n = 0
    vec = lambda s: {r for r in s if r[0] in 'va'}
    sg = lambda s: {r for r in s if r[0] == 's'}
    mem = c.cls in ('dsr', 'dsw', 'vld', 'vst', 'dma')
    if p.cls == 'valu':
        pw = vec(p.wr); ps = sg(p.wr)
        if c.cls == 'mfma' and pw & c.rd: n = max(n, 3 if p.dot else 2)
        if c.cls == 'valu':
            if p.trans and not c.trans and pw & c.rd: n = max(n, 1)
            if (c.perm or c.dpp) and pw & c.rd: n = max(n, 2)
            if c.rdlane and pw & c.rd: n = max(n, 1)
            if ps & c.rd: n = max(n, 4 if c.rdlane else 2)
            if p.dot and (pw & (c.rd | c.wr)) and not (c.mn == p.mn): n = max(n, 3)
        if p.dot and mem and pw & c.rd: n = max(n, 3)
        if p.trans and mem and pw & c.rd: n = max(n, 1)
        if mem and ps & c.rd: n = max(n, 5)
        if c.cls in ('salu', 'branch') and ps & c.rd: n = max(n, 2)
        if ('s', 'exec') in p.wr: n = max(n, 5)
    if p.cls == 'mfma':
        big = 12 if p.passes == 8 else 8
        if c.cls == 'mfma':
            if p.D & (c.A | c.B): n = max(n, big)
            if p.D & c.C and not (p.D == c.C and p.passes == c.passes): n = max(n, big - 2)
            if p.D & c.D and not (p.D & c.C): n = max(n, big - 2)
        elif c.cls == 'valu':
            if p.D & (c.rd | c.wr): n = max(n, big)
            if p.C & c.wr: n = max(n, 7 if p.passes == 8 else 3)
        elif mem:
            if p.D & (c.rd | c.wr): n = max(n, big)
    if p.wide_store and p.wide_store & c.wr: n = max(n, 2)
    if p.cls == 'salu' and ('s', 'm0') in p.wr and c.cls == 'dma': n = max(n, 1)
    return n

class Asm:
    def __init__(self):
        self.ins = []
        self.vm = 0; self.lg = 0
        self.vm_done = 0; self.lg_done = 0
        self.nops = 0
        self.uid = 0
        self.side = []; self.side_every = 0; self.side_cnt = 0; self.in_side = False; self.scc_live = False
    def label_name(self, p='L'):
        self.uid += 1
        return f'{p}_{self.uid}'
    def raw(self, text):
        self.ins.append(Ins(text))
    def comment(self, t):
        self.ins.append(Ins('; ' + t))
    def __call__(self, text):
        c = Ins(text)
        if self.side and not self.in_side and c.cls not in ('label', 'dir'):
            uses_scc = c.mn.startswith(('s_cselect', 's_cbranch', 's_addc', 's_subb', 's_branch'))
            self.side_cnt += 1
            if self.side_cnt >= self.side_every and not uses_scc and c.cls == 'valu':
                self.in_side = True; self.side.pop(0)(); self.in_side = False; self.side_cnt = 0
        if c.cls not in ('label', 'dir'):
            dist = 0; need = 0
            for p in reversed(self.ins):
                if dist >= 20: break
                if p.states == 0: continue
                k = need_states(p, c) - dist
                if k > need: need = k
                dist += p.states
            while need > 0:
                k = min(need, 16)
                self.ins.append(Ins(f's_nop {k-1}')); self.nops += k
                need -= k
        self.ins.append(c)
        if c.cls in ('vld', 'vst', 'dma'):
            self.vm += 1; return ('vm', self.vm)
        if c.cls in ('dsr', 'dsw'):
            self.lg += 1; return ('lg', self.lg)
        return None
    def lines(self, text):
        t = None
        for l in text.strip().split('\n'):
            l = l.strip()
            if l: t = self(l)
        return t
    def wait(self, *toks):
        vm = max([t[1] for t in toks if t and t[0] == 'vm'], default=0)
        lg = max([t[1] for t in toks if t and t[0] == 'lg'], default=0)
        parts = []
        if vm > self.vm_done:
            n = self.vm - vm
            if n <= 63: parts.append(f'vmcnt({n})')
            self.vm_done = vm
        if lg > self.lg_done:
            n = self.lg - lg
            if n <= 15: parts.append(f'lgkmcnt({n})')
            self.lg_done = lg
        if parts: self('s_waitcnt ' + ' '.join(parts))
    def wait_all(self, vm=True, lg=True):
        parts = []
        if vm: parts.append('vmcnt(0)'); self.vm_done = self.vm
        if lg: parts.append('lgkmcnt(0)'); self.lg_done = self.lg
        self('s_waitcnt ' + ' '.join(parts))
    def text(self):
        out = []
        for i in self.ins:
            t = i.text
            out.append(t if (i.label or t.startswith('.')) else '    ' + t)
        return '\n'.join(out) + '\n'

def vr(b, n=1): return f'v{b}' if n == 1 else f'v[{b}:{b+n-1}]'
def ar(b, n=1): return f'a{b}' if n == 1 else f'a[{b}:{b+n-1}]'
def sr(b, n=1): return f's{b}' if n == 1 else f's[{b}:{b+n-1}]'
```

```python
import sys, struct, math, os
OPT = lambda k, d=0: int(os.environ.get(k, d))
from dsl import *
from layout import *

def f32(x): return '0x%08x' % struct.unpack('<I', struct.pack('<f', x))[0]
LOG2E = 1.4426950408889634
LN2 = 0.6931471805599453
M16 = 'v_mfma_f32_16x16x32_bf16'
M32 = 'v_mfma_f32_32x32x16_bf16'
NAME = 'interleave_layers__grouped_kv_mqa__dense_activation_silu__prompt'

S_L = 3
SRD_WS = 4
SRD_B = 8
S_G, S_J, S_W = 12, 13, 14
S_GB, S_GBN, S_KV, S_KVN = 15, 16, 17, 18
S_VMASK = 20
S_T = 24
WS = sr(SRD_WS, 4); SB = sr(SRD_B, 4)
V_L16, V_T, V_G = 1, 2, 3

PROF = False
STAMP_OP = 's_memtime'
STAMPS = []
STAMP_SKIP = os.environ.get('STAMP_SKIP', '').split(',')
def stamp(a, name, always=False):
    if not PROF or any(name.startswith(p) for p in STAMP_SKIP if p): return
    if name in STAMPS: i = STAMPS.index(name)
    else: i = len(STAMPS); STAMPS.append(name)
    assert i < 31
    a(f'{STAMP_OP} s[70:71]')
    a.wait_all(vm=False)
    if always: a(f'v_writelane_b32 v0, s70, {i}')
    else:
        a(f's_cmp_eq_u32 s{S_L}, 1')
        l = a.label_name('ST'); l2 = a.label_name('ST')
        a(f's_cbranch_scc1 {l}')
        a(f'v_writelane_b32 v0, s70, {i}')
        a(f's_branch {l2}')
        a.raw(f'{l}:')
        a(f'v_writelane_b32 v0, s70, {32+i}')
        a.raw(f'{l2}:')
def stamp_dump(a):
    if not PROF: return
    a('s_memrealtime s[70:71]')
    a.wait_all()
    a.lines(f'''
    v_writelane_b32 v0, s70, 63
    s_lshl_b32 s24, s2, 2
    s_add_u32 s24, s24, s{S_W}
    s_lshl_b32 s24, s24, 8
    s_add_u32 s24, s24, {PROF_OFF}
    v_lshrrev_b32 v4, 2, v{V_L16}
    buffer_store_dword v0, v4, {WS}, s24 offen
    ''')
    a.wait_all()

V_LANE = 23
def ids(a, end):
    a.lines(f'''
    s_cmp_ge_u32 s2, 256
    s_cbranch_scc1 {end}
    s_load_dwordx2 s[4:5], s[0:1], 80
    v_lshrrev_b32 v4, 6, v0
    s_and_b32 s24, s2, 7
    s_lshr_b32 s25, s2, 3
    v_readfirstlane_b32 s{S_W}, v4
    s_and_b32 s{S_J}, s25, 7
    s_lshr_b32 s25, s25, 3
    s_lshl_b32 s{S_G}, s24, 2
    s_add_u32 s{S_G}, s{S_G}, s25
    v_and_b32 v{V_LANE}, 63, v0
    v_lshlrev_b32 v{V_L16}, 4, v{V_LANE}
    v_and_b32 v{V_T}, 15, v{V_LANE}
    v_lshrrev_b32 v{V_G}, 4, v{V_LANE}
    s_mov_b32 s6, {WS_USED}
    s_mov_b32 s7, 0x20000
    ''')
def layer_bases(a):
    a.lines(f'''
    s_mul_i32 s{S_GB}, s{S_L}, {GB_L}
    s_mul_i32 s24, s{S_G}, {GB_G}
    s_add_u32 s{S_GB}, s{S_GB}, s24
    s_add_u32 s{S_GB}, s{S_GB}, {GB0}
    s_add_u32 s{S_GBN}, s{S_GB}, {GB_L}
    s_mul_i32 s{S_KV}, s{S_L}, {KV_SZ}
    s_add_u32 s{S_KV}, s{S_KV}, {KV0}
    s_add_u32 s{S_KVN}, s{S_KV}, {KV_SZ}
    ''')

def x_publish_addr(a, sx, sst, s_gb, o_x, o_st):
    a.lines(f'''
    s_lshl_b32 s24, s{S_W}, 14
    s_lshl_b32 s25, s{S_J}, 11
    s_add_u32 s24, s24, s25
    s_add_u32 s24, s24, s{s_gb}
    s_add_u32 s{sx}, s24, {o_x}
    s_lshl_b32 s25, s{S_J}, 9
    s_lshl_b32 s26, s{S_W}, 7
    s_add_u32 s25, s25, s26
    s_add_u32 s25, s25, s{s_gb}
    s_add_u32 s{sst}, s25, {o_st}
    ''')
def st_voff(a, v):
    a(f'v_lshrrev_b32 v{v}, 1, v{V_G}')
    a(f'v_lshlrev_b32 v{v}, 2, v{v}')
    a(f'v_lshl_add_u32 v{v}, v{V_T}, 3, v{v}')
def x_publish(a, acc, pk, tmp, sx, sst, vst, have_pk=False, sc=''):
    for h in range(2):
        if not have_pk:
            for i in range(4*h, 4*h+4):
                a(f'v_cvt_pk_bf16_f32 v{pk+i}, v{acc+2*i}, v{acc+2*i+1}')
        a(f'buffer_store_dwordx4 {vr(pk+4*h,4)}, v{V_L16}, {WS}, s{sx} offen offset:{1024*h} {sc}')
    s, q = tmp, tmp + 2
    a(f'v_pk_add_f32 {vr(s,2)}, {vr(acc,2)}, {vr(acc+2,2)}')
    a(f'v_pk_mul_f32 {vr(q,2)}, {vr(acc,2)}, {vr(acc,2)}')
    for i in range(1, 8):
        if i > 1: a(f'v_pk_add_f32 {vr(s,2)}, {vr(s,2)}, {vr(acc+2*i,2)}')
        a(f'v_pk_fma_f32 {vr(q,2)}, {vr(acc+2*i,2)}, {vr(acc+2*i,2)}, {vr(q,2)}')
    a(f'v_add_f32 v{s}, v{s}, v{s+1}')
    a(f'v_add_f32 v{q}, v{q}, v{q+1}')
    a(f'v_permlane32_swap_b32 v{s}, v{q}')
    a(f'v_add_f32 v{s}, v{s}, v{q}')
    a(f'v_mov_b32 v{q}, v{s}')
    a(f'v_permlane16_swap_b32 v{s}, v{q}')
    a(f'v_add_f32 v{s}, v{s}, v{q}')
    return a(f'buffer_store_dword v{s}, v{vst}, {WS}, s{sst} offen {sc}')

def rstd_from(a, st, out, scale):
    L = []
    for i in range(4): L.append(f'v_pk_add_f32 {vr(st+4*i,2)}, {vr(st+4*i,2)}, {vr(st+4*i+2,2)}')
    L.append(f'v_pk_add_f32 {vr(st,2)}, {vr(st,2)}, {vr(st+4,2)}')
    L.append(f'v_pk_add_f32 {vr(st+8,2)}, {vr(st+8,2)}, {vr(st+12,2)}')
    L.append(f'v_pk_add_f32 {vr(st,2)}, {vr(st,2)}, {vr(st+8,2)}')
    L.append(f'v_mul_f32 v{st}, {f32(1/512)}, v{st}')
    L.append(f'v_mul_f32 v{st+1}, {f32(1/512)}, v{st+1}')
    L.append(f'v_fma_f32 v{st+1}, -v{st}, v{st}, v{st+1}')
    L.append(f'v_max_f32 v{st+1}, 0, v{st+1}')
    L.append(f'v_add_f32 v{st+1}, {f32(1e-5)}, v{st+1}')
    L.append(f'v_rsq_f32 v{out}, v{st+1}')
    if scale != 1.0: L.append(f'v_mul_f32 v{out}, {f32(scale)}, v{out}')
    return L

LDS_WO, LDS_WQ, LDS_SCR, LDS_ST, LDS_Q = 0, 65536, 131072, 147456, 155648
LDS_TOTAL = 163840
VQ, VS0, VS1, VP, VO, VKV = 8, 24, 40, 56, 64, 128
XR = 8
OUT_SC = 'sc1' if OPT('OUT_SC1', 0) else ''
POLL_MAX = 400000
FORCE_SLOW = OPT('FORCE_SLOW', 0)
H_SC = 'sc1' if OPT('H_SC1', 1) else ''
D_SC = 'sc1' if OPT('D_SC1', 1) else ''
NEED_FENCE = not (H_SC and D_SC)
S_FLAG, S_FLINE, S_SLOW = 19, 22, 23
S_IDX, S_KB = 30, 31
S_KP, S_WP = 32, 34
S_OST = 36
S_C = 40
S_ROT = 44
S_X1O, S_ST1O, S_X2O, S_ST2O = 52, 53, 54, 55
S_HF, S_HH, S_HB, S_XD = 56, 57, 58, 59
S_QO, S_KVO, S_XRES, S_W2L, S_WQL = 60, 62, 63, 64, 65
S_STD, S_STN = 66, 67
S_NONCE, S_XLINE, S_XLW, S_XGL = 43, 39, 68, 69

def w2reg(f):
    if f < 16: return ar(192 + 4*f, 4)
    if f < 42: return vr(152 + 4*(f-16), 4)
    return vr(144 + 4*(f-42), 4)
def w1reg(i, ks): return ar((i*16 + ks)*4, 4)

def flag_set(a, line_off, deferred, sreg=None, vd=7):
    skip = a.label_name('FS'); slow = a.label_name('FSS')
    sreg = sreg or S_FLAG
    a(f's_cmp_lg_u32 s{S_W}, 0')
    a(f's_cbranch_scc1 {skip}')
    a(f's_cmp_lg_u32 s{S_SLOW}, 0')
    a(f's_cbranch_scc1 {slow}')
    a('s_mov_b64 exec, 1')
    a.raw(f'buffer_store_dword v{vd}, off, {WS}, s{sreg} offset:{line_off}')
    a('s_mov_b64 exec, -1')
    a.raw(f'{skip}:')
    def d(b):
        b.raw(f'{slow}:')
        if NEED_FENCE and sreg == S_FLAG:
            b.raw('buffer_wbl2 sc1')
            b('s_waitcnt vmcnt(0)')
        b('s_mov_b64 exec, 1')
        b(f'buffer_store_dword v{vd}, off, {WS}, s{sreg} offset:{line_off} sc1')
        b('s_mov_b64 exec, -1')
        b(f's_branch {skip}')
    deferred.append(d)

def acquire_slow(a, deferred):
    if not NEED_FENCE: return
    slow = a.label_name('AQS'); back = a.label_name('AQB')
    a(f's_cmp_lg_u32 s{S_SLOW}, 0')
    a(f's_cbranch_scc1 {slow}')
    a.raw(f'{back}:')
    def d(b):
        b.raw(f'{slow}:')
        b.raw('buffer_inv sc1')
        b('s_waitcnt vmcnt(0)')
        b(f's_branch {back}')
    deferred.append(d)

def hop(a, line_off, deferred, tag, vtmp):
    lp = a.label_name('POLL'); dn = a.label_name('POLLD'); sk = a.label_name('POLLS')
    a.wait_all(lg=False)
    stamp(a, tag + '_drained')
    a('s_barrier')
    flag_set(a, line_off, deferred)
    a(f's_cmp_lg_u32 s{S_W}, 1')
    a(f's_cbranch_scc1 {sk}')
    a('s_mov_b32 s25, 0')
    a.raw(f'{lp}:')
    a.raw(f'buffer_load_dword v{vtmp}, v6, {WS}, s{S_FLINE} offen offset:{line_off} sc1')
    a(f's_add_u32 s25, s25, 1')
    a('s_waitcnt vmcnt(0)')
    a(f's_cmp_gt_u32 s25, {POLL_MAX}')
    a(f's_cbranch_scc1 {dn}')
    a(f'v_cmp_ne_u32 vcc, s{S_NONCE}, v{vtmp}')
    a(f's_cbranch_vccnz {lp}')
    a.raw(f'{dn}:')
    acquire_slow(a, deferred)
    a.raw(f'{sk}:')
    a('s_barrier')
    stamp(a, tag + '_polled')

def pre_rot(a):
    a(f's_lshl_b32 s26, s{S_W}, 14')
    a(f's_lshl_b32 s27, s{S_J}, 11')
    for pp in range(8):
        a(f's_add_u32 s{S_ROT+pp}, s27, s26')
        if pp < 7:
            a('s_add_u32 s27, s27, 2048')
            a('s_and_b32 s27, s27, 0x3fff')

def bfrag_load(B, voff, s):
    return f'buffer_load_dwordx4 {vr(B+4*s,4)}, v{voff}, {WS}, s{S_ROT+(s>>1)} offen offset:{1024*(s&1)} sc1'

def gemm_w(a, B, voff, AW, nwin, ntile, lds_addr_fn, pre, mfmas, late=(), tag=None, extras=()):
    LA = OPT('GW_LA', 7)
    atoks = list(pre)
    btoks = [a(bfrag_load(B, voff, s)) for s in range(LA)]
    late = list(late); ltok = None; extras = list(extras)
    n = 16*ntile
    for k in range(n):
        s, t = divmod(k, ntile)
        a.wait(atoks[k], btoks[s])
        if tag and OPT('P1_STAMPS') and t == 0 and s in (0, 4, 8, 12): stamp(a, f'{tag}_s{s}')
        for m in mfmas(s, t, vr(AW + 4*(k % nwin), 4), vr(B+4*s, 4)): a(m)
        if t == 1:
            if len(btoks) < 16: btoks.append(a(bfrag_load(B, voff, len(btoks))))
            elif late: ltok = a(late.pop(0)) or ltok
        if t == 3 and len(btoks) == 16 and late: ltok = a(late.pop(0)) or ltok
        if len(atoks) < n:
            kk = len(atoks); v, off = lds_addr_fn(kk)
            atoks.append(a(f'ds_read_b128 {vr(AW + 4*(kk % nwin),4)}, v{v} offset:{off}'))
        if extras and s >= 2 and t != 1: a(extras.pop(0))
    for x in extras: a(x)
    for x in late: ltok = a(x) or ltok
    return ltok

def pre_kvo(a, s_kv=S_KVN):
    a.lines(f'''
    s_lshl_b32 s24, s{S_G}, 1
    s_lshr_b32 s25, s{S_W}, 1
    s_add_u32 s24, s24, s25
    s_lshl_b32 s24, s24, 11
    s_add_u32 s24, s24, s{s_kv}
    s_and_b32 s25, s{S_W}, 1
    s_lshl_b32 s26, s25, 8
    s_lshl_b32 s27, s25, 9
    s_add_u32 s27, s27, 1024
    s_bitcmp1_b32 s{S_J}, 0
    s_cselect_b32 s26, s27, s26
    s_add_u32 s24, s24, s26
    s_lshr_b32 s25, s{S_J}, 1
    s_cmp_eq_u32 s25, s{S_W}
    s_cselect_b32 s{S_KVO}, s24, {WS_USED}
    s_lshr_b32 s24, s{S_W}, 1
    s_lshl_b32 s24, s24, 10
    s_and_b32 s25, s{S_W}, 1
    s_lshl_b32 s25, s25, 8
    s_add_u32 s24, s24, s25
    s_add_u32 s{S_QO}, s24, {LDS_Q}
    ''')
def pre_st_n(a):
    a.lines(f'''
    s_lshl_b32 s24, s{S_W}, 7
    s_add_u32 s24, s24, s{S_GBN}
    s_add_u32 s{S_STN}, s24, {O_STIN}
    ''')
def qkv_voffs(a, vq, vv, vb, t0, t1):
    a.lines(f'''
    v_lshrrev_b32 v{t0}, 1, v{V_G}
    v_and_b32 v{t1}, 1, v{V_G}
    v_lshlrev_b32 v{vq}, 9, v{t0}
    v_lshl_add_u32 v{vq}, v{V_T}, 4, v{vq}
    v_lshl_add_u32 v{vq}, v{t1}, 3, v{vq}
    v_lshlrev_b32 v{vv}, 8, v{t1}
    v_lshl_add_u32 v{vv}, v{V_T}, 4, v{vv}
    v_lshl_add_u32 v{vv}, v{t0}, 3, v{vv}
    v_lshlrev_b32 v{vb}, 4, v{V_G}
    ''')

def cs_addr(a, sd, s_gb):
    a(f's_lshl_b32 s24, s{S_J}, 13')
    a(f's_add_u32 s24, s24, s{s_gb}')
    a(f's_add_u32 s{sd}, s24, {O_Q}')
def kv_epilogue(a, pfx, KA, VA, CS, RS, NM, T, vq, vv, vb):
    a(f's_bitcmp1_b32 s{S_J}, 0')
    a(f's_cbranch_scc1 {pfx}_EV')
    for r in range(4):
        a(f'v_mul_f32 v{KA+r}, v{KA+r}, v{RS}')
        a(f'v_fma_f32 v{KA+r}, -v{CS+r}, v{NM}, v{KA+r}')
    a(f'v_cvt_pk_bf16_f32 v{KA}, v{KA}, v{KA+1}'); a(f'v_cvt_pk_bf16_f32 v{KA+1}, v{KA+2}, v{KA+3}')
    a.raw(f'buffer_store_dwordx2 {vr(KA,2)}, v{vq}, {WS}, s{S_KVO} offen sc1')
    a(f's_branch {pfx}_EJ')
    a.raw(f'{pfx}_EV:')
    for r in range(4):
        a.raw(f'ds_bpermute_b32 v{T+r}, v{vb}, v{RS} offset:{4*r}')
        a.raw(f'ds_bpermute_b32 v{T+4+r}, v{vb}, v{NM} offset:{4*r}')
    a('s_waitcnt lgkmcnt(0)')
    for r in range(4):
        a(f'v_mul_f32 v{VA+r}, v{VA+r}, v{T+r}')
        a(f'v_fma_f32 v{VA+r}, -v{CS}, v{T+4+r}, v{VA+r}')
    a(f'v_cvt_pk_bf16_f32 v{VA}, v{VA}, v{VA+1}'); a(f'v_cvt_pk_bf16_f32 v{VA+1}, v{VA+2}, v{VA+3}')
    t = a(f'buffer_store_dwordx2 {vr(VA,2)}, v{vv}, {WS}, s{S_KVO} offen sc1')
    a.raw(f'{pfx}_EJ:')
    return t

P4_ACC, P4_B, P4_AW, P4_NW, P4_ST, P4_RS = 8, 32, 96, 6, 120, 136
P4_CS = (124, 128, 132, 144, 148)
def p4_addr(k):
    s, t = divmod(k, 5)
    off = s*5120 + t*1024
    return (140, off) if s < 8 else (141, off - 40960)
def gen_p4_pre(a):
    pre_kvo(a)
    cs_addr(a, 25, S_GB)
    a('s_add_u32 s26, s25, 4096')
    for t in range(5):
        a(f'buffer_load_dwordx4 {vr(P4_CS[t],4)}, v{V_L16}, {WS}, s{25 + (t>>2)} offen offset:{1024*(t&3)} sc1')
    a.lines(f'''
    v_add_u32 v140, {LDS_WQ}, v{V_L16}
    v_add_u32 v141, {LDS_WQ + 40960}, v{V_L16}
    v_lshlrev_b32 v142, 3, v{V_T}
    v_lshl_add_u32 v142, v{V_G}, 10, v142
    v_add_u32 v143, s{S_GBN}, v{V_L16}
    ''')
    pre = []
    for k in range(P4_NW):
        v, off = p4_addr(k)
        pre.append(a(f'ds_read_b128 {vr(P4_AW+4*k,4)}, v{v} offset:{off}'))
    return pre
def allreduce_g(r, t):
    return [f'v_mov_b32 v{t}, v{r}', f'v_permlane32_swap_b32 v{r}, v{t}', f'v_add_f32 v{r}, v{r}, v{t}',
            f'v_mov_b32 v{t}, v{r}', f'v_permlane16_swap_b32 v{r}, v{t}', f'v_add_f32 v{r}, v{r}, v{t}']
def gen_p4(a, pre):
    ACC, B, AW, NW, ST, RS = P4_ACC, P4_B, P4_AW, P4_NW, P4_ST, P4_RS
    KA, VA, NM = 24, 28, P4_RS + 1
    assert O_XIN == 0
    for p in range(2):
        a(f'buffer_load_dwordx2 {vr(ST+2*p,2)}, v142, {WS}, s{S_STN} offen offset:{512*p} sc1')
    def mf(s, t, A, Bq):
        if t < 4: return [f'{M16} {vr(ACC+4*t,4)}, {A}, {Bq}, {"0" if s == 0 else vr(ACC+4*t,4)}']
        return [f'{M16} {vr(KA,4)}, {A}, {Bq}, {"0" if s == 0 else vr(KA,4)}',
                f'{M16} {vr(VA,4)}, {Bq}, {A}, {"0" if s == 0 else vr(VA,4)}']
    ex = [f'v_add_f32 v{ST}, v{ST}, v{ST+2}', f'v_add_f32 v{ST+1}, v{ST+1}, v{ST+3}']
    ex += [x for pr in zip(allreduce_g(ST, ST+2), allreduce_g(ST+1, ST+3)) for x in pr]
    ex += rstd_from(a, ST, RS, 1.0)[7:]
    ex += [f'v_lshrrev_b32 v{ST+2}, 1, v{V_G}', f'v_mul_f32 v{NM}, v{ST}, v{RS}', f'v_and_b32 v{ST+3}, 1, v{V_G}',
           f'v_mul_f32 v{RS+2}, {f32(0.25*LOG2E)}, v{RS}', f'v_mul_f32 v{RS+3}, {f32(0.25*LOG2E)}, v{NM}',
           f'v_lshlrev_b32 v5, 9, v{ST+2}', f'v_lshl_add_u32 v5, v{V_T}, 4, v5', f'v_lshl_add_u32 v5, v{ST+3}, 3, v5',
           f'v_lshlrev_b32 v142, 8, v{ST+3}', f'v_lshl_add_u32 v142, v{V_T}, 4, v142', f'v_lshl_add_u32 v142, v{ST+2}, 3, v142',
           f'v_lshlrev_b32 v4, 4, v{V_G}']
    gemm_w(a, B, 143, AW, NW, 5, p4_addr, pre, mf, extras=ex)
    stamp(a, 'p4_gemm')
    a('s_nop 5')
    kv_epilogue(a, 'P4', KA, VA, P4_CS[4], RS, NM, B, 5, 142, 4)
    a(f'v_add_u32 v5, s{S_QO}, v5')
    for mt in range(4):
        r = ACC + 4*mt
        a(f'v_pk_mul_f32 {vr(r,2)}, {vr(r,2)}, {vr(RS+2,2)} op_sel_hi:[1,0]')
        a(f'v_pk_mul_f32 {vr(r+2,2)}, {vr(r+2,2)}, {vr(RS+2,2)} op_sel_hi:[1,0]')
        for h in range(2):
            a(f'v_pk_fma_f32 {vr(r+2*h,2)}, {vr(P4_CS[mt]+2*h,2)}, {vr(RS+2,2)}, {vr(r+2*h,2)} op_sel:[0,1,0] op_sel_hi:[1,1,1] neg_lo:[1,0,0] neg_hi:[1,0,0]')
        a(f'v_cvt_pk_bf16_f32 v{r}, v{r}, v{r+1}')
        a(f'v_cvt_pk_bf16_f32 v{r+1}, v{r+2}, v{r+3}')
        a(f'ds_write_b64 v5, {vr(r,2)} offset:{2048*mt}')

S_XW = 61
VKV2, PF = 160, 184
S_KVT = 99
def xl_addrs(a):
    a.lines(f'''
    s_and_b32 s24, s2, 7
    s_lshl_b32 s24, s24, 7
    s_lshl_b32 s25, s{S_L}, 11
    s_add_u32 s24, s24, s25
    s_add_u32 s{S_XLINE}, s24, {XFL}
    s_add_u32 s{S_XGL}, s{S_XLINE}, 1024
    s_lshr_b32 s25, s2, 3
    s_lshl_b32 s25, s25, 2
    s_add_u32 s{S_XLW}, s{S_XLINE}, s25
    ''')
def xcc_load(a, vdst, vaddr):
    a('s_and_b32 s24, s2, 7')
    a('s_lshl_b32 s24, s24, 9')
    a(f's_add_u32 s24, s24, {XFL + 4096}')
    return a(f'buffer_load_dword v{vdst}, v{vaddr}, {WS}, s24 offen sc1')
def xcc_eval(a, v):
    a(f'v_cmp_ne_u32 vcc, s{S_XW}, v{v}')
    a('s_cmp_lg_u64 vcc, 0')
    a(f's_cselect_b32 s{S_SLOW}, 1, {FORCE_SLOW}')

def layer_scalars(a):
    a.lines(f'''
    s_lshl_b32 s24, s{S_L}, 15
    s_lshl_b32 s29, s{S_G}, 10
    s_add_u32 s24, s24, s29
    s_add_u32 s{S_FLINE}, s24, {FLAGS}
    s_lshl_b32 s29, s{S_J}, 2
    s_add_u32 s{S_FLAG}, s{S_FLINE}, s29
    ''')
    pre_st_n(a)
    x_publish_addr(a, S_X1O, S_ST1O, S_GB, O_X1, O_ST1)
    x_publish_addr(a, S_X2O, S_ST2O, S_GBN, O_XIN, O_STIN)
    a.lines(f'''
    s_sub_u32 s{S_XRES}, s{S_X1O}, {O_X1 - O_XIN}
    s_lshl_b32 s24, s{S_J}, 1
    s_and_b32 s25, s{S_W}, 1
    s_add_u32 s24, s24, s25
    s_lshl_b32 s24, s24, 10
    s_lshr_b32 s25, s{S_W}, 1
    s_lshl_b32 s25, s25, 9
    s_add_u32 s24, s24, s25
    s_add_u32 s24, s24, s{S_GB}
    s_add_u32 s{S_OST}, s24, {O_O}
    s_add_u32 s{S_OST+1}, s{S_OST}, 32768
    s_lshr_b32 s24, s{S_J}, 1
    s_mul_i32 s24, s24, 11
    s_and_b32 s25, s{S_J}, 1
    s_lshl_b32 s26, s25, 2
    s_add_u32 s26, s26, s{S_W}
    s_add_u32 s26, s26, s24
    s_lshl_b32 s26, s26, 10
    s_add_u32 s27, s{S_GB}, {O_H}
    s_add_u32 s{S_HF}, s26, s27
    s_mul_i32 s25, s25, 3
    s_add_u32 s25, s25, s{S_W}
    s_lshl_b32 s25, s25, 9
    s_add_u32 s24, s24, 8
    s_lshl_b32 s24, s24, 10
    s_add_u32 s24, s24, s25
    s_add_u32 s24, s24, s27
    s_cmp_eq_u32 s{S_W}, 3
    s_cselect_b32 s{S_HH}, {WS_USED}, s24
    s_mul_i32 s24, s{S_W}, {11*1024}
    s_add_u32 s{S_HB}, s24, s27
    s_lshl_b32 s25, s{S_W}, 12
    s_add_u32 s26, s25, s{S_GB}
    s_add_u32 s{S_XD}, s26, {O_X1}
    s_lshl_b32 s25, s{S_W}, 10
    s_add_u32 s26, s25, s{S_GB}
    s_add_u32 s{S_STD}, s26, {O_ST1}
    ''')
S_WO0, S_W10, S_WQ0, S_W20, S_W4K, S_PKL = 72, 73, 74, 75, 76, 77
def const_scalars(a):
    pre_rot(a)
    a.lines(f'''
    s_lshl_b32 s{S_W4K}, s{S_W}, 12
    s_lshl_b32 s24, s{S_J}, 16
    s_lshl_b32 s25, s{S_W}, 14
    s_add_u32 s24, s24, s25
    s_add_u32 s{S_WO0}, s24, {WO_P}
    s_mul_i32 s25, s{S_J}, {11*16384}
    s_mul_i32 s26, s{S_W}, {3*16384}
    s_add_u32 s25, s25, s26
    s_add_u32 s{S_W10}, s25, {W1_P + 3072}
    s_mul_i32 s26, s{S_J}, 81920
    s_add_u32 s26, s26, s{S_W4K}
    s_add_u32 s{S_WQ0}, s26, {WQKV_P}
    s_add_u32 s{S_WQL}, s{S_WQ0}, 65536
    s_mul_i32 s28, s{S_J}, {44*4096}
    s_mul_i32 s29, s{S_W}, {11*4096}
    s_add_u32 s28, s28, s29
    s_add_u32 s{S_W20}, s28, {W2_P + 3072}
    s_add_u32 s{S_W2L}, s{S_W20}, {10*4096 - 3072}
    s_mov_b32 s{S_C}, {f32(2.0**-60)}
    s_mov_b32 s{S_C+1}, {f32(2.0**60)}
    s_mov_b32 s{S_C+2}, {f32(2.0**120)}
    s_mov_b32 s{S_VMASK}, 0xffff
    s_mov_b32 s{S_VMASK+1}, 0xffff
    ''')

class Att:
    def __init__(self, a, deferred, L):
        self.a, self.deferred, self.L = a, deferred, L
        self.ktok, self.vtok, self.misc = {}, {}, {}
        self.adv = [f's_add_u32 s{S_IDX}, s{S_IDX}, 4096', f's_and_b32 s{S_IDX}, s{S_IDX}, 0x1ffff',
                    f's_add_u32 s{S_KP}, s{S_IDX}, s{S_KB}', f's_addc_u32 s{S_KP+1}, s{S_KB+7}, 0']
    def kvb(self, i): return (VKV2 if self.L == 0 and i in (2, 3) else VKV) + 12*(i & 1)
    def Kr(self, i): return vr(self.kvb(i), 4)
    def Vr(self, i, u): return vr(self.kvb(i) + 4 + 4*u, 4)
    def ldK(self, i): self.ktok[i] = self.a(f'global_load_dwordx4 {self.Kr(i)}, v{V_L16}, {sr(S_KP,2)}')
    def ldV(self, i):
        a = self.a
        a(f's_mov_b64 exec, {sr(S_VMASK,2)}')
        a(f'global_load_dwordx4 {self.Vr(i,0)}, v7, {sr(S_KP,2)} offset:1024')
        self.vtok[i] = a(f'global_load_dwordx4 {self.Vr(i,1)}, v7, {sr(S_KP,2)} offset:1536')
        a('s_mov_b64 exec, -1')
    def ldKV(self, i):
        self.ldK(i); self.ldV(i)
    def init_regs(self):
        a = self.a
        a.lines(f'''
        s_lshr_b32 s26, s{S_W}, 1
        s_lshl_b32 s25, s26, 11
        s_add_u32 s{S_KB}, s25, s{S_KV}
        s_and_b32 s{S_IDX}, s2, 7
        s_lshl_b32 s{S_IDX}, s{S_IDX}, 14
        s_and_b32 s25, s{S_J}, 3
        s_lshl_b32 s25, s25, 2
        s_add_u32 s25, s25, s{S_W}
        s_lshl_b32 s25, s25, 13
        s_add_u32 s{S_KVT}, s25, s{S_KV}
        s_add_u32 s{S_KB}, s{S_KB}, s4
        s_addc_u32 s{S_KB+7}, s5, 0
        v_bfe_u32 v26, v{V_L16}, 2, 7
        v_lshrrev_b32 v4, 1, v{V_G}
        v_lshlrev_b32 v4, 8, v4
        v_lshl_add_u32 v7, v{V_T}, 4, v4
        v_and_b32 v4, {27*16}, v{V_L16}
        v_cmp_eq_u32 vcc, 256, v4
        v_mov_b32 v4, 0x3f803f80
        v_cndmask_b32 v4, 0, v4, vcc
        ''')
        for b in range(2):
            for i in range(8): a(f'v_mov_b32 v{VKV+12*b+4+i}, v4')
        a(self.adv[2]); a(self.adv[3])
    def xl_pass(self, skip=None):
        a = self.a
        own = skip is None
        skip = skip or f'XP{self.L}_SKIP'
        if own:
            a(f's_cmp_lg_u32 s{S_W}, 1'); a(f's_cbranch_scc1 {skip}')
        a.lines(f'''
        s_cmp_ge_u32 s2, 8
        s_cbranch_scc1 {skip}
        s_lshl_b32 s25, s2, 2
        s_add_u32 s24, s25, {XFL + 1024 + 2048*self.L}
        v_lshlrev_b32 v27, 3, v{V_L16}
        v_mov_b32 v5, s{S_NONCE}
        s_mov_b64 exec, 0xff
        ''')
        a.raw(f'buffer_store_dword v5, v27, {WS}, s24 offen sc1')
        a('s_mov_b64 exec, -1')
        a.raw(f'{skip}:')
    def xl_poll(self):
        a, p = self.a, f'XL{self.L}'
        a.lines(f'''
        s_cmp_lg_u32 s{S_W}, 1
        s_cbranch_scc1 {p}_SKIP
        s_mov_b32 s25, 0
        {p}_POLL:
        ''')
        a.raw(f'buffer_load_dword v27, v26, {WS}, s{S_XLINE} offen sc1')
        a.lines(f'''
        s_add_u32 s25, s25, 1
        s_waitcnt vmcnt(0)
        s_cmp_gt_u32 s25, {POLL_MAX}
        s_cbranch_scc1 {p}_DONE
        v_cmp_ne_u32 vcc, s{S_NONCE}, v27
        s_cbranch_vccnz {p}_POLL
        {p}_DONE:
        ''')
        self.xl_pass(f'{p}_SKIP')
    def first_loads(self):
        self.ldK(0); self.ldV(0)
        for x in self.adv: self.a(x)
        self.ldK(1)
    def more_loads(self):
        if self.L == 0:
            for b in range(2):
                for i in range(8): self.a(f'v_mov_b32 v{VKV2+12*b+4+i}, v{VKV+16}')
            self.ldV(1)
            for t in (2, 3):
                for x in self.adv: self.a(x)
                self.ldK(t); self.ldV(t)
    def q_read(self, lq=LDS_Q):
        a = self.a
        a.lines(f'''
        s_lshr_b32 s26, s{S_W}, 1
        s_and_b32 s27, s{S_W}, 1
        s_lshl_b32 s24, s27, 12
        s_add_u32 s24, s24, {lq}
        s_lshl_b32 s25, s26, 11
        s_xor_b32 s28, s25, 2048
        s_add_u32 s25, s25, s24
        s_add_u32 s28, s28, s24
        v_add_u32 v24, s28, v{V_L16}
        v_add_u32 v25, s25, v{V_L16}
        ''')
        for sl in range(4):
            self.qt = a(f'ds_read_b128 {vr(VQ+4*sl,4)}, v{24 if sl < 2 else 25} offset:{1024*(sl&1)}')
        a.lines(f'''
        s_mul_i32 s29, s{S_W}, 6144
        s_add_u32 s29, s29, {LDS_SCR}
        v_add_u32 v4, s29, v{V_L16}
        v_bfe_u32 v6, v{V_L16}, 2, 5
        ''')
    def check(self, name, load, cmp_fn):
        a, p = self.a, f'{name}{self.L}'
        a.wait(self.misc[name])
        for x in cmp_fn(): a(x)
        a(f's_cbranch_vccnz {p}_SLOW')
        a.raw(f'{p}_OK:')
        def d(b):
            b.raw(f'{p}_SLOW:')
            b('s_mov_b32 s29, 0')
            b.raw(f'{p}_LOOP:')
            b('s_sleep 8')
            b(load)
            b('s_add_u32 s29, s29, 1')
            b('s_waitcnt vmcnt(0)')
            b(f's_cmp_gt_u32 s29, {POLL_MAX}')
            b(f's_cbranch_scc1 {p}_OK')
            for x in cmp_fn(): b(x)
            b(f's_cbranch_vccnz {p}_LOOP')
            b(f's_branch {p}_OK')
        self.deferred.append(d)
    def groups(self):
        WP = sr(S_WP, 2)
        start = lambda s: [f's_add_u32 s{S_WP}, s4, s{s}', f's_addc_u32 s{S_WP+1}, s5, 0']
        step = lambda n: [f's_add_u32 s{S_WP}, s{S_WP}, {n}', f's_addc_u32 s{S_WP+1}, s{S_WP+1}, 0']
        dma = lambda n: [f'global_load_lds_dwordx4 v{V_L16}, {WP} offset:{1024*i}' for i in range(n)]
        m0wo = f's_lshl_b32 m0, s{S_W4K}, 2'
        assert LDS_WO == 0
        if self.L == 1:
            G = {2: (start(S_WO0) + [m0wo], dma(3)), 3: (step(2048) + ['s_add_u32 m0, m0, 2048'], []),
                 4: (step(1024) + ['s_add_u32 m0, m0, 1024'], dma(1)), 6: (step(1024), [])}
            return G
        g = []
        for R in range(4): g.append(((start(S_WO0) + [m0wo]) if R == 0 else (step(4096) + ['s_add_u32 m0, m0, 4096']), dma(4)))
        for G in range(7):
            g.append((start(S_W10) if G == 0 else step(7168), [f'global_load_dwordx4 {ar(28*G+4*i,4)}, v{V_L16}, {WP} offset:{1024*i-3072}' for i in range(7) if 7*G+i < 48]))
        for G in range(6):
            g.append((start(S_W20) if G == 0 else step(7168), [f'global_load_dwordx4 {w2reg(7*G+i)}, v{V_L16}, {WP} offset:{1024*i-3072}' for i in range(7)]))
        for R in range(4):
            g.append(((start(S_WQ0) + [f's_add_u32 m0, s{S_W4K}, {LDS_WQ}']) if R == 0 else (step(16384) + ['s_add_u32 m0, m0, 16384']), dma(4)))
        W0 = OPT('W0', 10)
        assert W0 + len(g) <= 31
        return {W0 + k: x for k, x in enumerate(g)}
    def loop(self):
        a, L, misc = self.a, self.L, self.misc
        G = self.groups()
        Sr = lambda n: VS0 if (n & 1) == 0 else VS1
        QK = lambda n: f'{M32} {vr(Sr(n),16)}, {self.Kr(n >> 2)}, {vr(VQ+4*(n & 3),4)}, 0'
        def PV(n, u):
            i, q = n >> 2, n & 3
            c = '0' if (i == 0 and u == 0) else vr(VO+16*q, 16)
            return f'{M32} {vr(VO+16*q,16)}, {self.Vr(i,u)}, {vr(VP+4*u,4)}, {c}'
        def scr_w(sl):
            o = VO + 16*sl
            return [f'ds_write_b128 v4, {vr(o,4)} offset:{3072*sl}', f'ds_write_b128 v4, {vr(o+4,4)} offset:{3072*sl+1024}',
                    f'ds_write_b32 v4, v{o+8} offset:{3072*sl+2048}']
        pad = lambda l, k: list(l) + [None]*(k - len(l))
        XG = f'buffer_load_dword v5, v6, {WS}, s{S_XGL} offen sc1'
        PKL = f'buffer_load_dwordx4 v[152:155], v156, {WS}, 0 offen sc1'
        pk_cmp = lambda: [f'v_xor_b32 v152, s{S_NONCE}, v152', f'v_xor_b32 v153, s{S_NONCE}, v153', f'v_xor_b32 v154, s{S_NONCE}, v154',
                          f'v_xor_b32 v155, s{S_NONCE}, v155', 'v_or3_b32 v152, v152, v153, v154', 'v_or_b32 v152, v152, v155', 'v_cmp_ne_u32 vcc, 0, v152']
        a.wait(self.ktok[0], self.qt)
        stamp(a, 'att_go')
        a(QK(0))
        a('s_nop 7')
        N = 128
        periods = list(range(32)) if L == 0 else [0, 1, 2, 3, 4, 5, 30, 31]
        for i in periods:
            if L == 1 and i == 4:
                a('s_mov_b32 s28, 13'); a.raw('.p2align 6'); a.raw('ATT1_LOOP:')
            if L == 1 and i == 30:
                self.ktok[31], self.vtok[30] = self.ktok[7], self.vtok[6]
            if OPT('ATT_STAMPS') and L == 0 and i in (1, 2, 3, 4, 5, 7, 9, 10, 14, 21): stamp(a, f'a0_p{i}', True)
            if OPT('ATT_STAMPS') and L == 1 and i in (1, 2, 3, 30): stamp(a, f'a1_p{i}', True)
            setup, loads = G.get(i, ([], []))
            setup, loads = pad(setup, 3), pad(loads, 7)
            adv = [None]*4 if (L == 0 and i < 2) else self.adv
            nsetup = pad(G.get(i+1, ([], []))[0], 3)
            for q in range(4):
                n = 4*i + q
                S = Sr(n)
                e = lambda k: a(f'v_exp_f32 v{S+k}, v{S+k}')
                c = lambda k: a(f'v_cvt_pk_bf16_f32 v{VP+k}, v{S+2*k}, v{S+2*k+1}')
                x0, x1, x2 = [], [], []
                if q == 0:
                    x0 += [lambda: a.wait(self.vtok[i])]
                    if i + 1 < 32 and i + 1 not in self.vtok: x1.append(lambda: self.ldV(i+1))
                    x2 += [setup[2]]
                elif q == 1:
                    x0 += [adv[0]]; x1 += loads[:4]; x2 += [adv[1]]
                elif q == 2:
                    x0 += [adv[2]]; x1 += [adv[3]]
                    if i + 1 < 32: x2.append(lambda: a.wait(self.ktok[i+1]))
                else:
                    if i + 2 < 32 and i + 2 not in self.ktok: x0.append(lambda: self.ldK(i+2))
                    x0 += loads[4:]
                    x1 += [nsetup[0]]; x2 += [nsetup[1]]
                if n == OPT('XGI', 7): x0.append(lambda: misc.__setitem__('XG', a(XG)))
                if n == 10: x2.append(lambda: self.check('XG', XG, lambda: [f'v_cmp_ne_u32 vcc, s{S_NONCE}, v5']))
                if n == 11 and OPT('KVT', 1):
                    x1 += [f'v_lshlrev_b32 v5, 3, v{V_L16}']
                    x2 += [f'buffer_load_dword v5, v5, {WS}, s{S_KVT} offen']
                if L == 0:
                    PKP = OPT('PKP', 4)
                    if n == 4*PKP - 1:
                        x1 += [lambda: a.wait(misc['pk'])] + [f'ds_read_b64_tr_b16 {vr(PF+2*k,2)}, v{self.VPT+k}' for k in range(4)]
                        x2 += [f'ds_read_b64_tr_b16 {vr(PF+2*k,2)}, v{self.VPT+k}' for k in range(4, 8)]
                    if i == PKP:
                        def pkst():
                            if q == 0: a.wait_all(vm=False)
                            a('s_and_b32 s24, s101, 15'); a('s_mul_i32 s24, s24, s100'); a('s_add_u32 s24, s24, s95'); a('s_add_u32 s101, s101, 1')
                            misc['pack'] = a(f'buffer_store_dwordx4 {vr(PF+4*q,4)}, v{V_L16}, {WS}, s24 offen sc1')
                        x2.append(pkst)
                    if n == 4*OPT('PKF', 6) + 2:
                        def pkflag():
                            a.wait(misc['pack']); a('s_barrier')
                            a(f's_cmp_lg_u32 s{S_W}, 0'); a('s_cbranch_scc1 PKF_SKIP'); a('s_mov_b64 exec, 1')
                            a.raw(f'buffer_store_dword v157, off, {WS}, s{S_PKL} sc1')
                            a('s_mov_b64 exec, -1'); a.raw('PKF_SKIP:')
                        x2.append(pkflag)
                    W0 = OPT('W0', 10)
                    if n == 4*10 + 2: x2.append(lambda: misc.__setitem__('xcc', xcc_load(a, 159, 158)))
                    if n == 4*12 + 2: x2 += [lambda: a.wait(misc['xcc']), lambda: xcc_eval(a, 159)]
                    if n == 4*(W0-2) + 3: x0.append(lambda: misc.__setitem__('PK', a(PKL)))
                    if n == 4*(W0-1) + 2: x2.append(lambda: self.check('PK', PKL, pk_cmp))
                if n == 30*4 + 3: x0.append(f'buffer_load_dwordx4 v[128:131], v{V_L16}, {WS}, s{S_XRES} offen sc1')
                if n == 31*4: x1.append(lambda: misc.__setitem__('xt', a(f'buffer_load_dwordx4 v[132:135], v{V_L16}, {WS}, s{S_XRES} offen offset:1024 sc1')))
                if n == 126: x1 += scr_w(0)[:2]; x2 += scr_w(0)[2:]
                if n == 127: x1 += scr_w(1)[:2]; x2 += scr_w(1)[2:]
                if L == 1 and i == 5 and q == 0: x2.append('s_sub_u32 s28, s28, 1')
                def run(xs):
                    for x in xs:
                        if x is None: continue
                        if callable(x): x()
                        else: a(x)
                if n + 1 < N: a(QK(n+1))
                run(x0)
                e(0); e(1); e(2); e(3); c(0); e(4)
                if n > 0: a(PV(n-1, 1))
                run(x1)
                e(5); c(1); e(6); e(7); c(2); e(8); c(3); e(9); e(10)
                a(PV(n, 0))
                run(x2)
                c(4); e(11); e(12); c(5); e(13); e(14); e(15); c(6); c(7)
            if L == 1 and i == 5:
                a('s_cmp_lg_u32 s28, 0'); a('s_cbranch_scc1 ATT1_LOOP')
        a.wait_all(vm=False)
        a('s_barrier')
        a(PV(N-1, 1))
        return misc

def gen_att_epilogue(a, misc):
    a.comment('---- pair reduce, range check, normalise, publish O')
    T = 24
    O2, O3 = VO + 32, VO + 48
    a(f'v_xor_b32 v4, {2*6144}, v4' if False else f's_xor_b32 s24, s{S_W}, 2')
    a(f's_mul_i32 s24, s24, 6144')
    a(f's_add_u32 s24, s24, {LDS_SCR}')
    a(f'v_add_u32 v4, s24, v{V_L16}')
    rt = []
    for sl in (0, 1):
        a(f'ds_read_b128 {vr(T+12*sl,4)}, v4 offset:{3072*sl}')
        a(f'ds_read_b128 {vr(T+12*sl+4,4)}, v4 offset:{3072*sl+1024}')
        rt.append(a(f'ds_read_b32 v{T+12*sl+8}, v4 offset:{3072*sl+2048}'))
    a.lines(f'''
    v_and_b32 v4, 1, v{V_G}
    v_lshlrev_b32 v4, 14, v4
    v_add_u32 v4, v4, v7
    ''')
    for sl, o in ((0, O2), (1, O3)):
        a.wait(rt[sl])
        a(f'v_add_f32 v{o+8}, v{o+8}, v{T+12*sl+8}')
        for k in range(4):
            a(f'v_pk_add_f32 {vr(o+2*k,2)}, {vr(o+2*k,2)}, {vr(T+12*sl+2*k,2)}')
    a.lines(f'''
    v_minimum3_f32 v26, v{O2+8}, v{O3+8}, v{O3+8}
    v_maximum3_f32 v27, v{O2+8}, v{O3+8}, v{O3+8}
    v_maximum3_f32 v24, |v{O2}|, |v{O2+1}|, |v{O2+2}|
    v_maximum3_f32 v25, |v{O3}|, |v{O3+1}|, |v{O3+2}|
    v_cmp_le_f32 s[24:25], s{S_C}, v26
    v_cmp_ge_f32 s[26:27], s{S_C+1}, v27
    v_maximum3_f32 v24, |v{O2+3}|, |v{O2+4}|, v24
    v_maximum3_f32 v25, |v{O3+3}|, |v{O3+4}|, v25
    v_maximum3_f32 v24, |v{O2+5}|, |v{O2+6}|, v24
    v_maximum3_f32 v25, |v{O3+5}|, |v{O3+6}|, v25
    v_maximum3_f32 v24, |v{O2+7}|, |v{O3+7}|, v24
    s_and_b64 s[24:25], s[24:25], s[26:27]
    v_maximum3_f32 v24, v24, v25, v25
    v_cmp_ge_f32 vcc, s{S_C+2}, v24
    v_rcp_f32 v{O2+10}, v{O2+8}
    v_rcp_f32 v{O3+10}, v{O3+8}
    s_and_b64 s[24:25], s[24:25], vcc
    s_cmp_eq_u64 s[24:25], -1
    s_cbranch_scc0 FALLBACK
    ATT_NORM:
    ''')
    for sl, o in ((0, O2), (1, O3)):
        for k in range(4):
            a(f'v_pk_mul_f32 {vr(o+2*k,2)}, {vr(o+2*k,2)}, {vr(o+10,2)} op_sel_hi:[1,0]')
        for k in range(4):
            a(f'v_cvt_pk_bf16_f32 v{24+4*sl+k}, v{o+2*k}, v{o+2*k+1}')
        a(f'buffer_store_dwordx4 {vr(24+4*sl,4)}, v4, {WS}, s{S_OST+sl} offen {D_SC}')

def gen_fallback(a):
    a.comment('---- fallback: true-max softmax')
    a.raw('FALLBACK:')
    K, V0, V1, NM = 136, 140, 144, 64
    a.wait_all()
    for i in range(8): a(f'v_mov_b32 v{V0+i}, 0x3f803f80')
    for sl in (2, 3):
        o = VO + 16*sl
        l1 = a.label_name('FB1'); l2 = a.label_name('FB2')
        a(f'v_mov_b32 v56, 0xff800000')
        a(f's_mov_b32 s24, s{S_KV}')
        a(f's_add_u32 s25, s{S_KV}, {KV_SZ}')
        a.raw(f'{l1}:')
        a(f'buffer_load_dwordx4 {vr(K,4)}, v{V_L16}, {WS}, s24 offen')
        a.wait_all()
        a(f'{M32} {vr(VS0,16)}, {vr(K,4)}, {vr(VQ+4*sl,4)}, 0')
        for k in range(8):
            a(f'v_max3_f32 v56, v{VS0+2*k}, v{VS0+2*k+1}, v56')
        a('s_add_u32 s24, s24, 2048')
        a('s_cmp_lt_u32 s24, s25')
        a(f's_cbranch_scc1 {l1}')
        a('v_mov_b32 v57, v56')
        a('v_permlane32_swap_b32 v56, v57')
        a('v_max_f32 v56, v56, v57')
        for k in range(16):
            a(f'v_sub_f32 v{NM+k}, 0, v56')
            a(f'v_mov_b32 v{o+k}, 0')
        a(f's_mov_b32 s24, s{S_KV}')
        a.raw(f'{l2}:')
        a(f'buffer_load_dwordx4 {vr(K,4)}, v{V_L16}, {WS}, s24 offen')
        a(f's_mov_b64 exec, {sr(S_VMASK,2)}')
        a(f'buffer_load_dwordx4 {vr(V0,4)}, v7, {WS}, s24 offen offset:1024')
        a(f'buffer_load_dwordx4 {vr(V1,4)}, v7, {WS}, s24 offen offset:1536')
        a('s_mov_b64 exec, -1')
        a.wait_all()
        a(f'{M32} {vr(VS0,16)}, {vr(K,4)}, {vr(VQ+4*sl,4)}, {vr(NM,16)}')
        for k in range(16): a(f'v_exp_f32 v{VS0+k}, v{VS0+k}')
        for k in range(8): a(f'v_cvt_pk_bf16_f32 v{VP+k}, v{VS0+2*k}, v{VS0+2*k+1}')
        a(f'{M32} {vr(o,16)}, {vr(V0,4)}, {vr(VP,4)}, {vr(o,16)}')
        a(f'{M32} {vr(o,16)}, {vr(V1,4)}, {vr(VP+4,4)}, {vr(o,16)}')
        a('s_add_u32 s24, s24, 2048')
        a('s_cmp_lt_u32 s24, s25')
        a('s_nop 15')
        a(f's_cbranch_scc1 {l2}')
        a('s_nop 15')
        a(f'v_rcp_f32 v{o+10}, v{o+8}')
    a('s_nop 3')
    a('s_branch ATT_NORM')

def gen_p1(a, misc, deferred):
    a.comment('---- P1: output projection + residual')
    B, AW, NW = 24, 88, 12
    a(f'v_mov_b32 v7, s{S_NONCE}')
    a.wait(misc['xt'])
    for i in range(8):
        a(f'v_lshlrev_b32 v{XR+2*i}, 16, v{128+i}')
        a(f'v_and_b32 v{XR+2*i+1}, 0xffff0000, v{128+i}')
    a(f's_add_u32 s24, s{S_GB}, {O_O}')
    a(f'v_add_u32 v136, s24, v{V_L16}')
    st_voff(a, 137)
    a(f's_lshl_b32 s25, s{S_W}, 12')
    a(f's_add_u32 m0, s25, {LDS_WQ + 65536}')
    addr = lambda k: (V_L16, LDS_WO + 1024*k)
    pre = []
    for k in range(NW):
        v, off = addr(k)
        pre.append(a(f'ds_read_b128 {vr(AW+4*k,4)}, v{v} offset:{off}'))
    hop(a, F_O, deferred, 'o', 5)
    late = [f'buffer_load_dwordx4 {w2reg(42)}, v{V_L16}, {WS}, s{S_W2L} offen offset:2048',
            f'buffer_load_dwordx4 {w2reg(43)}, v{V_L16}, {WS}, s{S_W2L} offen offset:3072']
    late += [f'buffer_load_dwordx4 v{V_L16}, {WS}, s{S_WQL} offen offset:{1024*i} lds' for i in range(4)]
    gemm_w(a, B, 136, AW, NW, 4, addr, pre, lambda s, t, A, Bq: [f'{M16} {vr(XR+4*t,4)}, {A}, {Bq}, {vr(XR+4*t,4)}'], late=late, tag='p1')
    stamp(a, 'p1_gemm')
    x_publish(a, XR, 24, 32, S_X1O, S_ST1O, 137, sc=D_SC)

def gen_p23(a, deferred):
    a.comment('---- P2: LN + FFN1 + silu')
    B0, B1, BW, NBW, ACC, TMP, PK, RS, ST = 24, 68, 68, 6, (92, 104), 116, 128, 138, 24
    a.lines(f'''
    v_lshrrev_b32 v5, 1, v{V_G}
    v_lshlrev_b32 v5, 8, v5
    v_lshl_add_u32 v5, v{V_T}, 4, v5
    v_and_b32 v4, 1, v{V_G}
    v_lshl_add_u32 v5, v4, 3, v5
    v_lshrrev_b32 v136, 1, v{V_L16}
    v_add_u32 v136, {LDS_ST}, v136
    s_lshl_b32 s28, s{S_W}, 12
    s_lshl_b32 s29, s{S_W}, 10
    s_add_u32 s29, s29, {LDS_ST}
    s_add_u32 m0, s28, {LDS_WO}
    v_mov_b32 v68, 0x3f803f80
    v_mov_b32 v69, 0x3f803f80
    v_mov_b32 v70, 0x3f803f80
    v_mov_b32 v71, 0x3f803f80
    ''')
    CS1, NM = 56, (134, 135, 142, 143)
    for ks in range(16):
        for i in range(3):
            a(f'{M16} {vr(CS1+4*i,4)}, {w1reg(i,ks)}, v[68:71], {"0" if ks == 0 else vr(CS1+4*i,4)}')
    hop(a, F_X1, deferred, 'x1', 4)
    dma = {}
    xd = lambda i: f'buffer_load_dwordx4 v{V_L16}, {WS}, s{S_XD} offen offset:{1024*i} sc1 lds'
    for i in range(4): a(xd(i))
    a('s_mov_b32 m0, s29')
    a(f's_add_u32 s{S_XD}, s{S_XD}, 16384')
    dma[0] = a(f'buffer_load_dwordx4 v{V_L16}, {WS}, s{S_STD} offen sc1 lds')
    a(f's_add_u32 m0, s28, {LDS_WO + 16384}')
    if OPT('XD_BAR', 1): a('s_barrier')
    for i in range(4): dma[1] = a(xd(i))
    dq = []
    for nt in (2, 3):
        dq += [f's_add_u32 s{S_XD}, s{S_XD}, 16384', 's_add_u32 m0, m0, 16384'] + [(nt, xd(i)) for i in range(4)]
    cost = lambda s: 8 if s.split()[0] in TRANS else 4
    def epi(nt):
        A = ACC[nt & 1]
        L = [f'v_mul_f32 v{A+k}, v{A+k}, v{RS+nt}' for k in range(12)]
        L += [f'v_fma_f32 v{A+k}, -v{CS1+k}, v{NM[nt]}, v{A+k}' for k in range(12)]
        L += [f'v_exp_f32 v{TMP+k}, -v{A+k}' for k in range(12)]
        L += [f'v_add_f32 v{TMP+k}, 1.0, v{TMP+k}' for k in range(12)]
        L += [f'v_rcp_f32 v{TMP+k}, v{TMP+k}' for k in range(12)]
        L += [f'v_mul_f32 v{A+k}, v{A+k}, v{TMP+k}' for k in range(12)]
        L += [f'v_cvt_pk_bf16_f32 v{PK+k}, v{A+2*k}, v{A+2*k+1}' for k in range(6)]
        return L
    def epi_pk(nt):
        A = ACC[nt & 1]
        assert nt == 3
        L = [f'v_pk_mul_f32 {vr(A+2*k,2)}, {vr(A+2*k,2)}, {vr(RS+2,2)} op_sel:[0,1] op_sel_hi:[1,1]' for k in range(6)]
        L += [f'v_pk_fma_f32 {vr(A+2*k,2)}, {vr(CS1+2*k,2)}, {vr(NM[2],2)}, {vr(A+2*k,2)} op_sel:[0,1,0] op_sel_hi:[1,1,1] neg_lo:[1,0,0] neg_hi:[1,0,0]' for k in range(6)]
        L += [f'v_exp_f32 v{TMP+k}, -v{A+k}' for k in range(12)]
        L += [f'v_pk_add_f32 {vr(TMP+2*k,2)}, {vr(TMP+2*k,2)}, 1.0 op_sel_hi:[1,0]' for k in range(6)]
        L += [f'v_rcp_f32 v{TMP+k}, v{TMP+k}' for k in range(12)]
        L += [f'v_pk_mul_f32 {vr(A+2*k,2)}, {vr(A+2*k,2)}, {vr(TMP+2*k,2)}' for k in range(6)]
        L += [f'v_cvt_pk_bf16_f32 v{PK+k}, v{A+2*k}, v{A+2*k+1}' for k in range(6)]
        return L
    hst = {}
    def hstore(nt):
        a(f'buffer_store_dwordx4 {vr(PK,4)}, v{V_L16}, {WS}, s{S_HF} offen {H_SC}')
        hst[nt] = a(f'buffer_store_dwordx2 {vr(PK+4,2)}, v5, {WS}, s{S_HH} offen {H_SC}')
    hadv = [f's_add_u32 s{S_HF}, s{S_HF}, {44*1024}', f's_add_u32 s{S_HH}, s{S_HH}, {44*1024}']
    ptok = {}
    def hpoll_issue(nt):
        ptok[nt] = a(f'buffer_load_dword v4, v6, {WS}, s{S_FLINE} offen offset:{F_H + 128*nt} sc1')
    def hpoll_check(nt):
        slow = a.label_name('HSLOW'); ok = a.label_name('HOK')
        a.wait(ptok[nt])
        a(f'v_cmp_ne_u32 vcc, s{S_NONCE}, v4')
        a(f's_cbranch_vccnz {slow}')
        a.raw(f'{ok}:')
        acquire_slow(a, deferred)
        def d(b):
            lp = b.label_name('HLP')
            b.raw(f'{slow}:')
            b('s_mov_b32 s24, 0')
            b.raw(f'{lp}:')
            b(f'buffer_load_dword v4, v6, {WS}, s{S_FLINE} offen offset:{F_H + 128*nt} sc1')
            b('s_add_u32 s24, s24, 1')
            b('s_waitcnt vmcnt(0)')
            b(f's_cmp_gt_u32 s24, {POLL_MAX}')
            b(f's_cbranch_scc1 {ok}')
            b(f'v_cmp_ne_u32 vcc, s{S_NONCE}, v4')
            b(f's_cbranch_vccnz {lp}')
            b(f's_branch {ok}')
        deferred.append(d)
    hb = {nt: [None]*11 for nt in range(4)}
    def hload(nt, s):
        Bb = B0 if (nt & 1) == 0 else B1
        if s and s % 4 == 0: a(f's_add_u32 s{S_HB}, s{S_HB}, 4096')
        hb[nt][s] = a(f'buffer_load_dwordx4 {vr(Bb+4*s,4)}, v{V_L16}, {WS}, s{S_HB} offen offset:{1024*(s%4)} sc1')
        if s == 10: a(f's_add_u32 s{S_HB}, s{S_HB}, {44*1024 - 8192}')
    hlist = lambda nt: [(lambda s=s: hload(nt, s)) for s in range(11)]
    stl = rstd_from(a, ST, RS, LOG2E)
    stl += [f'v_mul_f32 v{NM[0]}, v{ST}, v{RS}', f'v_mov_b32 v{RS+2}, v{RS}', f'v_mov_b32 v{NM[2]}, v{NM[0]}',
            f'v_permlane32_swap_b32 v{RS}, v{RS+2}', f'v_permlane32_swap_b32 v{NM[0]}, v{NM[2]}',
            f'v_mov_b32 v{RS+1}, v{RS}', f'v_mov_b32 v{RS+3}, v{RS+2}', f'v_mov_b32 v{NM[1]}, v{NM[0]}', f'v_mov_b32 v{NM[3]}, v{NM[2]}',
            f'v_permlane16_swap_b32 v{RS}, v{RS+1}', f'v_permlane16_swap_b32 v{RS+2}, v{RS+3}',
            f'v_permlane16_swap_b32 v{NM[0]}, v{NM[1]}', f'v_permlane16_swap_b32 v{NM[2]}, v{NM[3]}']
    btok = []
    def bread():
        k = len(btok)
        if k >= 64: return
        btok.append(a(f'ds_read_b128 {vr(BW+4*(k % NBW),4)}, v{V_L16} offset:{LDS_WO + 1024*k}'))
    a.wait(dma[0]); a('s_barrier')
    for _ in range(NBW - 1): bread()
    strd = [f'ds_read_b64 {vr(ST+2*p,2)}, v136 offset:{512*p}' for p in range(8)]
    pend = []
    KB = OPT('KB', 8)
    CR = OPT('CR10', 105) / 10
    a.wait(btok[0])
    for nt in range(4):
        stamp(a, f'f1_nt{nt}')
        A = ACC[nt & 1]
        ex = stl if nt == 0 else epi(nt-1)
        sal = list(hadv) if nt >= 2 else []
        credit = 0.0
        for ks in range(16):
            k = nt*16 + ks
            for i in range(3):
                a(f'{M16} {vr(A+4*i,4)}, {w1reg(i,ks)}, {vr(BW+4*(k % NBW),4)}, {"0" if ks == 0 else vr(A+4*i,4)}')
                credit += CR
                if i == 0:
                    if sal and ks > 0: a(sal.pop(0))
                    bread(); credit -= 4
                if i == 1 and nt == 0 and strd:
                    a(strd.pop(0)); stt = a(strd.pop(0)); credit -= 8
                if i == 1 and nt == 0 and ks >= 4 and dq:
                    x = dq.pop(0)
                    if isinstance(x, tuple): dma[x[0]] = a(x[1]); credit -= 8
                    else: a(x)
                if i == 1 and ks == KB:
                    a.wait(dma[nt+1] if nt < 3 else None, hst[nt-2] if nt >= 2 else None)
                    a('s_barrier')
                    if nt >= 2: flag_set(a, F_H + 128*(nt-2), deferred)
                if i == 1 and nt == 3:
                    if ks == 0: hpoll_issue(0)
                    if ks == 7: hpoll_check(0); pend = hlist(0)[:8]
                if i == 2 and k + 1 < 64: a.wait(btok[k+1])
                if nt == 3 and pend and i == 2: pend.pop(0)(); credit -= 8
                if nt == 3 and pend and i == 1 and ks > 12: pend.pop(0)(); credit -= 8
                if ks*3 + i < 3 or (nt == 0 and ks < 9): credit = 0; continue
                while ex and credit >= cost(ex[0]):
                    credit -= cost(ex[0]); a(ex.pop(0))
        for x in pend: x()
        pend = []
        for x in ex: a(x)
        if nt >= 1: hstore(nt-1)
    hpoll_issue(1)
    for x in hadv: a(x)
    stamp(a, 'f1_main_end')
    ep = epi_pk(3)
    for x in ep[:12]: a(x)
    for s in range(8, 11): hload(0, s)
    for x in ep[12:]: a(x)
    hstore(3)
    AC2 = (112, 128)
    a(f'v_add_u32 v5, s28, v{V_L16}')
    hpoll_check(1)
    F2, P2I, P2C, F3, P3I, P3C = OPT('F2', 0), OPT('P2I', 5), OPT('P2C', 12), OPT('F3', 6), OPT('P3I', 13), OPT('P3C', 20)
    roll = [(1, x) for x in range(11)]
    for nt in range(4):
        if not OPT('P1_STAMPS'): stamp(a, f'f2_nt{nt}')
        A = AC2[nt & 1]; Bb = B0 if (nt & 1) == 0 else B1
        wr = []
        if nt > 0:
            P = AC2[(nt-1) & 1]
            wr = [f'ds_write_b128 v5, {vr(P+4*mt,4)} offset:{16384*(nt-1) + 1024*mt}' for mt in range(4)]
        for s in range(11):
            pos = nt*11 + s
            a.wait(hb[nt][s])
            for mt in range(4):
                a(f'{M16} {vr(A+4*mt,4)}, {w2reg(4*s+mt)}, {vr(Bb+4*s,4)}, {"0" if s == 0 else vr(A+4*mt,4)}')
                if mt == 0:
                    if pos == P2C: hpoll_check(2); roll += [(2, x) for x in range(11)]
                    if pos == P3C: hpoll_check(3); roll += [(3, x) for x in range(11)]
                    if pos == F2: a.wait(hst[2]); a('s_barrier'); flag_set(a, F_H + 128*2, deferred)
                    if pos == F3: a.wait(hst[3]); a('s_barrier'); flag_set(a, F_H + 128*3, deferred)
                free = lambda: roll and (roll[0][0]-2)*11 + roll[0][1] < pos
                behind = lambda: roll and roll[0][0]*11 + roll[0][1] < pos + 11
                if mt == 1 and free(): hload(*roll.pop(0))
                if mt == 3 and free() and behind(): hload(*roll.pop(0))
                if mt == 2:
                    if pos == P2I: hpoll_issue(2)
                    elif pos == P3I: hpoll_issue(3)
                    elif s >= 3 and wr: a(wr.pop(0))
        assert not wr
    assert not roll
    stamp(a, 'f2_mfma_end')
    P = AC2[1]
    a(f's_lshl_b32 s24, s{S_W}, 14')
    a(f'v_add_u32 v4, s24, v{V_L16}')
    a(f's_mov_b32 s24, {f32(LN2)}')
    a(f's_mov_b32 s25, {f32(LN2)}')
    for mt in range(4):
        a(f'ds_write_b128 v5, {vr(P+4*mt,4)} offset:{16384*3 + 1024*mt}')
    a.wait_all(vm=False)
    a('s_barrier')
    rt = []
    order = [(sl, mt) for mt in range(4) for sl in range(4)]
    for sl, mt in order:
        rt.append(a(f'ds_read_b128 {vr(24+16*sl+4*mt,4)}, v4 offset:{4096*sl + 1024*mt}'))
    for mt in range(4):
        a.wait(rt[4*mt+3])
        for h in range(2):
            r = lambda sl: vr(24+16*sl+4*mt+2*h, 2)
            a(f'v_pk_add_f32 {r(0)}, {r(0)}, {r(1)}')
            a(f'v_pk_add_f32 {r(2)}, {r(2)}, {r(3)}')
        for h in range(2):
            r = lambda sl: vr(24+16*sl+4*mt+2*h, 2)
            a(f'v_pk_add_f32 {r(0)}, {r(0)}, {r(2)}')
        for h in range(2):
            r = lambda sl: vr(24+16*sl+4*mt+2*h, 2)
            a(f'v_pk_fma_f32 {vr(XR+4*mt+2*h,2)}, {r(0)}, s[24:25], {vr(XR+4*mt+2*h,2)}')

def gen_out(a):
    a.comment('---- final output')
    a.lines(f'''
    s_lshl_b32 s24, s{S_G}, 16
    s_lshl_b32 s25, s{S_W}, 14
    s_add_u32 s24, s24, s25
    s_lshl_b32 s25, s{S_J}, 7
    s_add_u32 s24, s24, s25
    v_lshlrev_b32 v4, 10, v{V_T}
    v_lshl_add_u32 v4, v{V_G}, 3, v4
    ''')
    for i in range(8):
        a(f'v_cvt_pk_bf16_f32 v{24+i}, v{XR+2*i}, v{XR+2*i+1}')
    for mt in range(4):
        a(f'buffer_store_dwordx2 {vr(24+2*mt,2)}, v4, {SB}, s24 offen offset:{32*mt} {OUT_SC}')

def gen_phase0(a, deferred, att):
    a.comment('---- phase 0')
    L_WQ, L_X, L_KV, L_CS, L_PK = 0, 65536, 131072, 131072, 147456
    SX, SWQ, SDBG, SKV = sr(80, 4), sr(84, 4), sr(88, 4), sr(92, 4)
    RHO, XB, QB, W1K, XL = 78, 79, 96, 97, 98
    ONES, B, KA, CS, SXR, GR, AW, QA, CQ, AQ, VQT, VPT, XRES, WIN = 28, 32, 112, 116, 120, 124, 184, 208, 224, 104, 228, 233, 244, 160
    RS, NM = 252, 253
    LQ0 = L_KV + 4096
    Ln = V_LANE
    a('s_getpc_b64 s[24:25]')
    a.raw('CPF_HERE:')
    a.lines(f"""
    s_load_dwordx2 s[80:81], s[0:1], 0
    s_load_dwordx4 s[44:47], s[0:1], 16
    s_load_dwordx2 s[84:85], s[0:1], 8
    s_load_dwordx2 s[48:49], s[0:1], 32
    s_load_dwordx4 s[52:55], s[0:1], 48
    s_load_dwordx2 s[88:89], s[0:1], 72
    s_memrealtime s[60:61]
    s_mov_b32 s26, CODE_END-CPF_HERE
    s_mov_b32 s27, 0x20000
    s_lshr_b32 s28, s2, 3
    s_lshl_b32 s28, s28, 2
    s_add_u32 s28, s28, s{S_W}
    s_lshl_b32 s28, s28, 9
    v_lshlrev_b32 v9, 3, v{V_L16}
    s_mov_b64 exec, 15
    buffer_load_dword v159, v9, s[24:27], s28 offen
    s_mov_b64 exec, -1
    s_and_b32 s24, s{S_G}, 3
    s_lshl_b32 s24, s24, 1
    s_add_u32 s24, s24, s{S_J}
    s_lshl_b32 s24, s24, 1
    s_and_b32 s{RHO}, s24, 15
    s_lshl_b32 s{XB}, s{S_G}, 16
    s_lshl_b32 s25, s{S_W}, 14
    s_add_u32 s{XB}, s{XB}, s25
    s_add_u32 s{XL}, s25, {L_X}
    v_lshrrev_b32 v11, 3, v{Ln}
    v_lshlrev_b32 v10, 10, v11
    v_and_b32 v20, 7, v{Ln}
    v_xor_b32 v8, v20, v11
    v_lshl_add_u32 v8, v8, 4, v10
    v_add_u32 v8, s{XB}, v8
    v_add_u32 v242, 7168, v8
    s_lshl_b32 s{XB}, s{RHO}, 6
    s_mov_b32 s82, {2048*1024}
    s_mov_b32 s83, 0x20000
    s_mov_b32 s94, {512*32}
    s_mov_b32 s95, 0x20000
    s_lshl_b32 s{S_W4K}, s{S_W}, 12
    s_waitcnt lgkmcnt(0)
    """)
    xtok = []
    def xload():
        p = len(xtok)
        a(f's_add_u32 m0, s{XL}, {2048*p}')
        if p: a(f's_add_u32 s{XB}, s{XB}, 128'); a(f's_and_b32 s{XB}, s{XB}, 1023')
        a(f'buffer_load_dwordx4 v8, {SX}, s{XB} offen lds')
        xtok.append(a(f'buffer_load_dwordx4 v242, {SX}, s{XB} offen offset:1024 lds'))
    qtok = []
    def qparts():
        s = len(qtok)
        return [f's_add_u32 m0, s{W1K}, {L_WQ + 4096*s}', f's_add_u32 s{QB}, s{QB}, 32768', f's_and_b32 s{QB}, s{QB}, 0x7ffff',
                lambda: qtok.append(a(f'buffer_load_dwordx4 v9, {SWQ}, s{QB} offen lds'))]
    def qload():
        for x in qparts(): (x() if callable(x) else a(x))
    a.lines(f"""
    s_lshl_b32 s60, s60, 4
    s_or_b32 s60, s60, 8
    s_mov_b32 s90, 256
    s_mov_b32 s91, 0x20000
    s_or_b32 s24, s2, s{S_W}
    s_cmp_lg_u32 s24, 0
    s_cbranch_scc1 P0_NOTAG
    v_mov_b32 v12, s60
    s_mov_b64 exec, 1
    """)
    a.raw(f'buffer_store_dword v12, off, {SDBG}, 0 sc1')
    a('s_mov_b64 exec, -1')
    a.raw('P0_NOTAG:')
    xload()
    a.lines(f"""
    s_bitcmp1_b32 s{S_J}, 0
    s_cselect_b32 s92, s46, s44
    s_cselect_b32 s93, s47, s45
    s_lshl_b32 s24, s{S_W}, 2
    s_add_u32 s24, s24, s{RHO}
    s_add_u32 m0, s{S_W4K}, {L_KV}
    """)
    for i in range(4):
        a('s_and_b32 s25, s24, 15'); a('s_lshl_b32 s25, s25, 10')
        kv = a(f'buffer_load_dwordx4 v{V_L16}, {SKV}, s25 offen lds')
        if i < 3: a('s_add_u32 s24, s24, 1'); a('s_add_u32 m0, m0, 1024')
    for _ in range(OPT('X_FIRST', 2)): xload()
    def touch():
        a(f's_and_b32 s71, s{S_G}, 3'); a('s_lshl_b32 s71, s71, 2'); a(f's_add_u32 s71, s71, s{S_W}'); a('s_lshl_b32 s71, s71, 8')
        a(f's_add_u32 s71, s71, s{S_J}'); a('s_lshl_b32 s71, s71, 7')
        a(f'v_and_b32 v255, 31, v{Ln}'); a('v_lshlrev_b32 v255, 10, v255')
        a(f'buffer_load_dword v255, v255, {SWQ}, s71 offen')
    a(f's_mov_b32 s86, {512*1024}'); a('s_mov_b32 s87, 0x20000')
    stamp(a, 'p0_issued', True)
    a.lines(f"""
    v_bfe_u32 v11, v{Ln}, 1, 2
    v_and_b32 v9, 1, v{V_G}
    s_and_b32 s25, s{S_W}, 1
    s_lshl_b32 s25, s25, 1
    v_or_b32 v9, s25, v9
    v_xor_b32 v11, v11, v9
    v_lshl_add_u32 v9, v11, 5, v10
    v_and_b32 v11, 1, v{Ln}
    v_lshl_add_u32 v9, v11, 4, v9
    s_lshl_b32 s{QB}, s{S_W}, 13
    s_lshl_b32 s25, s{S_J}, 7
    s_add_u32 s{QB}, s{QB}, s25
    v_add_u32 v9, s{QB}, v9
    s_sub_u32 s{QB}, s{RHO}, 1
    s_lshl_b32 s{QB}, s{QB}, 15
    s_lshl_b32 s{W1K}, s{S_W}, 10
    s_mov_b32 s86, {512*1024}
    s_mov_b32 s87, 0x20000
    """)
    a.lines(f"""
    s_lshl_b32 s56, s2, 2
    s_add_u32 s56, s56, s{S_W}
    s_mov_b32 s58, 3
    s_mov_b32 s57, 1024
    s_mov_b32 s100, 1024
    s_mov_b32 s101, 0
    s_mov_b32 s59, 0x100408
    s_mov_b32 s11, 0x20000
    s_cmp_ge_u32 s56, 352
    s_cbranch_scc1 P0_J1
    s_mov_b32 s8, s54
    s_mov_b32 s9, s55
    s_mov_b32 s10, {1376*1024}
    s_mul_i32 s24, s56, 5958
    s_lshr_b32 s24, s24, 16
    s_mul_i32 s25, s24, 11
    s_sub_u32 s25, s56, s25
    s_lshr_b32 s28, s24, 2
    s_and_b32 s27, s24, 3
    s_lshl_b32 s95, s56, 12
    s_add_u32 s95, s95, {W2_P}
    s_mul_i32 s27, s27, 22
    s_lshr_b32 s26, s25, 2
    s_mul_i32 s26, s26, 11
    s_and_b32 s24, s25, 3
    s_mul_i32 s24, s24, 3
    s_add_u32 s92, s26, s24
    s_add_u32 s93, s92, 1
    s_cmp_eq_u32 s25, 8
    s_cselect_b32 s92, 2, s92
    s_cselect_b32 s93, 5, s93
    s_cmp_eq_u32 s25, 9
    s_cselect_b32 s92, 8, s92
    s_cselect_b32 s93, 13, s93
    s_cmp_eq_u32 s25, 10
    s_cselect_b32 s92, 16, s92
    s_cselect_b32 s93, 19, s93
    s_add_u32 s92, s92, s27
    s_add_u32 s93, s93, s27
    s_cmp_ge_u32 s25, 8
    s_cselect_b32 s59, 0x040810, s59
    s_branch P0_JGO
    P0_J1:
    s_cmp_ge_u32 s56, 704
    s_cbranch_scc1 P0_J2
    s_mov_b32 s8, s52
    s_mov_b32 s9, s53
    s_mov_b32 s10, {512*2752}
    s_mov_b32 s57, 2752
    s_sub_u32 s24, s56, 352
    s_lshr_b32 s28, s24, 4
    s_and_b32 s26, s24, 15
    s_lshl_b32 s95, s28, 16
    s_lshl_b32 s25, s26, 10
    s_add_u32 s95, s95, s25
    s_add_u32 s95, s95, {W1_P}
    s_mov_b32 s100, 16384
    s_lshl_b32 s92, s26, 1
    s_add_u32 s93, s92, 1
    s_branch P0_JGO
    P0_J2:
    s_cmp_ge_u32 s56, 960
    s_cbranch_scc1 P0_J3
    s_sub_u32 s24, s56, 704
    s_and_b32 s27, s24, 127
    s_lshr_b32 s28, s27, 4
    s_lshl_b32 s26, s28, 1
    s_add_u32 s26, s26, s27
    s_and_b32 s26, s26, 15
    s_lshl_b32 s92, s26, 1
    s_add_u32 s93, s92, 1
    s_mov_b32 s10, {512*1024}
    s_lshl_b32 s95, s27, 12
    s_add_u32 s95, s95, {WO_P}
    s_mul_i32 s25, s27, 5120
    s_add_u32 s25, s25, {WQKV_P}
    s_cmp_ge_u32 s24, 128
    s_cselect_b32 s8, s84, s48
    s_cselect_b32 s9, s85, s49
    s_cselect_b32 s95, s25, s95
    s_cselect_b32 s59, s59, 0x080410
    s_branch P0_JGO
    P0_J3:
    s_sub_u32 s24, s2, 240
    s_bitcmp1_b32 s24, 0
    s_cselect_b32 s8, s46, s44
    s_cselect_b32 s9, s47, s45
    s_mul_i32 s95, s24, 81920
    s_add_u32 s95, s95, {WQKV_P + 4096}
    s_cmp_lt_u32 s24, 8
    s_cselect_b32 s10, {512*32}, 0
    s_cselect_b32 s95, s95, {WS_USED}
    s_mov_b32 s58, 1
    s_mov_b32 s57, 32
    s_mov_b32 s100, 5120
    s_lshl_b32 s24, s24, 1
    s_lshl_b32 s101, s{S_W}, 2
    s_sub_u32 s101, s101, s24
    s_lshl_b32 s92, s{S_W}, 3
    s_add_u32 s93, s92, 4
    s_mov_b32 s28, 0
    P0_JGO:
    s_lshl_b32 s24, s57, 4
    s_lshl_b32 s28, s28, 7
    s_mul_i32 s92, s92, s24
    s_add_u32 s92, s92, s28
    s_mul_i32 s93, s93, s24
    s_add_u32 s93, s93, s28
    s_sub_u32 s24, 6, s58
    s_lshl_b32 s94, s57, s24
    v_lshrrev_b32 v10, s58, v{V_LANE}
    v_mul_lo_u32 v10, v10, s57
    s_lshl_b32 s24, 1, s58
    s_sub_u32 s24, s24, 1
    v_and_b32 v11, s24, v{V_LANE}
    v_lshl_add_u32 v10, v11, 4, v10
    s_and_b32 s24, s59, 0xff
    s_bfe_u32 s25, s59, 0x80008
    s_lshr_b32 s59, s59, 16
    v_lshrrev_b32 v12, 1, v{V_G}
    v_mul_lo_u32 v12, v12, s24
    v_and_b32 v13, 1, v{V_G}
    v_mul_lo_u32 v13, v13, s25
    v_add_u32 v12, v12, v13
    v_lshrrev_b32 v13, 2, v{V_T}
    v_add_u32 v12, v12, v13
    s_add_u32 s24, s58, 4
    v_lshlrev_b32 v12, s24, v12
    v_and_b32 v13, 3, v{Ln}
    v_lshl_add_u32 v12, v13, 3, v12
    s_add_u32 s25, s{S_W4K}, {L_PK}
    v_add_u32 v{VPT}, s25, v12
    s_lshl_b32 s59, s59, s24
    v_add_u32 v{VPT+1}, s59, v{VPT}
    s_cmp_eq_u32 s58, 1
    s_cselect_b32 s24, 1024, 32
    """)
    tk = {}
    def pkload(i):
        def f():
            s = 92 + (i >> 1)
            a(f's_add_u32 m0, s{S_W4K}, {L_PK + 1024*i}')
            if i in (1, 3): a(f's_add_u32 s{s}, s{s}, s94')
            tk['pk'] = a(f'buffer_load_dwordx4 v241, {SB}, s{s} offen lds')
        return f
    for i in range(2, 8): a(f'v_add_u32 v{VPT+i}, s24, v{VPT+i-2}')
    for i in range(4): a(f'v_mov_b32 v{ONES+i}, 0x3f803f80')
    a.lines(f"""
    v_lshlrev_b32 v22, 8, v{V_G}
    v_lshl_add_u32 v22, v{V_T}, 3, v22
    v_add_u32 v22, {L_KV}, v22
    v_lshlrev_b32 v21, 7, v{V_T}
    v_add_u32 v21, s{XL}, v21
    v_xor_b32 v24, v{V_G}, v20
    v_xor_b32 v25, 4, v24
    v_lshl_add_u32 v24, v24, 4, v21
    v_lshl_add_u32 v25, v25, 4, v21
    s_lshr_b32 s24, s{RHO}, 1
    s_sub_u32 s24, s{S_J}, s24
    s_and_b32 s24, s24, 7
    s_lshl_b32 s24, s24, 11
    v_add_u32 v21, s24, v21
    v_and_b32 v18, 1, v{V_G}
    v_lshl_add_u32 v21, v18, 3, v21
    v_lshrrev_b32 v18, 1, v{V_G}
    v_xor_b32 v18, v18, v20
    """)
    for mt in range(4):
        a(f'v_xor_b32 v19, {2*mt}, v18'); a(f'v_lshl_add_u32 v{14+mt}, v19, 4, v21')
    a.lines(f"""
    v_lshrrev_b32 v12, 2, v{V_T}
    v_lshl_add_u32 v12, v{V_G}, 3, v12
    v_lshlrev_b32 v12, 7, v12
    v_and_b32 v13, 3, v{Ln}
    v_lshl_add_u32 v12, v13, 3, v12
    v_bfe_u32 v13, v{Ln}, 3, 1
    v_and_b32 v18, 1, v{V_G}
    v_lshl_add_u32 v13, v18, 1, v13
    """)
    a(f'v_xor_b32 v18, s{S_W}, v13'); a(f'v_lshl_add_u32 v{VQT}, v18, 5, v12')
    for k in range(1, 4):
        a(f's_add_u32 s24, s{S_W}, {k}'); a('s_and_b32 s24, s24, 3'); a(f's_sub_u32 s24, s24, s{S_W}'); a('s_lshl_b32 s24, s24, 14')
        a(f'v_add_u32 v{94+2*k}, s24, v24'); a(f'v_add_u32 v{95+2*k}, s24, v25')
    qkv_voffs(a, 12, 13, 18, 19, 21)
    a('s_mov_b32 s3, 0')
    layer_bases(a); const_scalars(a); layer_scalars(a); xl_addrs(a); pre_kvo(a, S_KV)
    a(f's_load_dword s{S_NONCE}, s[88:89], 0')
    att.init_regs()
    a.lines(f"""
    s_mov_b32 s{S_SLOW}, 1
    s_add_u32 s{S_PKL}, s{S_FLAG}, {F_XCC}
    v_lshrrev_b32 v156, 1, v{Ln}
    v_lshlrev_b32 v156, 10, v156
    v_and_b32 v19, 1, v{Ln}
    v_lshl_add_u32 v156, v19, 4, v156
    v_add_u32 v156, {FLAGS + F_XCC}, v156
    v_bfe_u32 v158, v{Ln}, 3, 2
    v_lshlrev_b32 v158, 7, v158
    v_lshl_add_u32 v158, v20, 2, v158
    v_lshlrev_b32 v{VQT+3}, 3, v{V_T}
    v_add_u32 v{VQT+3}, {L_KV}, v{VQT+3}
    s_lshl_b32 s24, s{S_W}, 7
    v_add_u32 v{VQT+4}, s24, v{VQT+3}
    s_lshl_b32 s24, s{S_W}, 11
    s_add_u32 s24, s24, {LQ0}
    v_add_u32 v243, s24, v12
    v_and_b32 v19, 3, v{V_T}
    """)
    stamp(a, 'p0_setup', True)
    rest = [xload]*(8 - len(xtok)) + [touch]
    a('s_waitcnt lgkmcnt(0)')
    a(f's_cmp_eq_u32 s{S_NONCE}, 0')
    a('s_cbranch_scc1 TAG_SLOW')
    a.raw('TAG_OK:')
    def d(b):
        b.raw('TAG_SLOW:')
        b('s_mov_b32 s24, 0')
        b.raw('TAG_LOOP:')
        b(f'buffer_load_dword v254, off, {SDBG}, 0 sc1')
        b('s_add_u32 s24, s24, 1')
        b('s_waitcnt vmcnt(0)')
        b(f'v_readfirstlane_b32 s{S_NONCE}, v254')
        b(f's_cmp_gt_u32 s24, {POLL_MAX}')
        b('s_cbranch_scc1 TAG_OK')
        b(f's_cmp_eq_u32 s{S_NONCE}, 0')
        b('s_cbranch_scc1 TAG_LOOP')
        b('s_branch TAG_OK')
    deferred.append(d)
    a.lines(f"""
    s_getreg_b32 s24, hwreg(HW_REG_XCC_ID, 0, 3)
    s_add_u32 s{S_XW}, s{S_NONCE}, s24
    s_lshl_b32 s24, s{S_G}, 7
    s_lshl_b32 s25, s{S_J}, 2
    s_add_u32 s24, s24, s25
    s_add_u32 s90, s24, {XFL + 4096}
    v_mov_b32 v254, s{S_XW}
    v_mov_b32 v157, s{S_NONCE}
    """)
    for x in rest: x()
    a.lines(f"""
    s_lshl_b32 s27, s{S_W}, 15
    s_add_u32 s27, s27, s{S_FLINE}
    s_cmp_ge_u32 s{S_W}, 2
    s_cselect_b32 s27, s{S_XLINE}, s27
    s_cselect_b32 s26, 6, 3
    v_lshlrev_b32 v241, s26, v{V_L16}
    s_mov_b64 exec, 0xff
    s_cselect_b32 exec_lo, 15, exec_lo
    buffer_load_dword v241, v241, {WS}, s27 offen sc1
    s_mov_b64 exec, -1
    """)
    a.wait(kv)
    a('s_barrier')
    stamp(a, 'p0_kv', True)
    a(f's_bitcmp1_b32 s{S_J}, 0')
    a('s_cbranch_scc1 P0_S1V')
    state = (a.vm, a.vm_done, a.lg, a.lg_done, list(qtok))
    for var in 'KV':
        if var == 'V':
            a('s_branch P0_S1J'); a.raw('P0_S1V:')
            a.vm, a.vm_done, a.lg, a.lg_done = state[:4]; qtok[:] = state[4]
        at = []
        def kvread():
            s = len(at)
            if s >= 16: return
            a.wait(xtok[s >> 1])
            a(f'ds_read_b128 {vr(B+4*s,4)}, v{24+(s&1)} offset:{2048*(s>>1)}')
            a(f'ds_read_b64_tr_b16 {vr(AW+4*(s&3),2)}, v22 offset:{1024*s}')
            at.append(a(f'ds_read_b64_tr_b16 {vr(AW+4*(s&3)+2,2)}, v22 offset:{1024*s+128}'))
        for _ in range(3): kvread()
        for s in range(16):
            W, X = vr(AW+4*(s&3), 4), vr(B+4*s, 4)
            c = lambda r: '0' if s == 0 else vr(r, 4)
            qp = qparts() if s >= OPT('Q_FROM', 8) else None
            if s == 0: a.wait(at[0])
            a(f'{M16} {vr(KA,4)}, {W}, {X}, {c(KA)}' if var == 'K' else f'{M16} {vr(KA,4)}, {X}, {W}, {c(KA)}')
            if qp: a(qp[0])
            kvread()
            a(f'{M16} {vr(CS,4)}, {W}, {vr(ONES,4)}, {c(CS)}' if var == 'K' else f'{M16} {vr(CS,4)}, {vr(ONES,4)}, {W}, {c(CS)}')
            if qp: a(qp[1]); a(qp[2])
            a(f'{M16} {vr(SXR,4)}, {vr(ONES,4)}, {X}, {c(SXR)}')
            if qp: qp[3]()
            a(f'{M16} {vr(GR,4)}, {X}, {X}, {c(GR)}')
            if s < 15: a.wait(at[s+1])
    a.raw('P0_S1J:')
    for mt in range(4): xr = a(f'ds_read_b64 {vr(XRES+2*mt,2)}, v{14+mt}')
    a.lines(f"""
    v_lshrrev_b32 v21, 2, v{V_T}
    v_cmp_eq_u32 s[24:25], v21, v{V_G}
    v_cmp_eq_u32 s[26:27], 1, v19
    v_cmp_eq_u32 s[28:29], 2, v19
    v_cmp_eq_u32 vcc, 3, v19
    v_mul_f32 v{SXR}, {f32(1/512)}, v{SXR}
    v_cndmask_b32 v{GR}, v{GR}, v{GR+1}, s[26:27]
    v_cndmask_b32 v{GR}, v{GR}, v{GR+2}, s[28:29]
    v_cndmask_b32 v{GR}, v{GR}, v{GR+3}, vcc
    v_cndmask_b32 v{GR}, 0, v{GR}, s[24:25]
    """)
    for x in allreduce_g(GR, GR+1): a(x)
    a.lines(f"""
    v_mul_f32 v{GR}, {f32(1/512)}, v{GR}
    v_fma_f32 v{GR}, -v{SXR}, v{SXR}, v{GR}
    v_max_f32 v{GR}, 0, v{GR}
    v_add_f32 v{GR}, {f32(1e-5)}, v{GR}
    v_rsq_f32 v{RS}, v{GR}
    v_mul_f32 v{NM}, v{SXR}, v{RS}
    """)
    last = kv_epilogue(a, 'P0', KA, KA, CS, RS, NM, AW, 12, 13, 18)
    stamp(a, 'p0_s1', True)
    while len(qtok) < OPT('Q_PRE', 10): qload()
    a.wait(xr)
    cs_addr(a, 79, S_GB)
    for k in range(4):
        a(f's_add_u32 s24, s{S_W}, {k}'); a('s_and_b32 s25, s24, 1'); a('s_lshl_b32 s25, s25, 8'); a('s_and_b32 s24, s24, 2'); a('s_lshl_b32 s24, s24, 9')
        a('s_add_u32 s24, s24, s25'); a(f'v_add_u32 v{14+k}, s24, v243')
    side = []
    side += [f'buffer_store_dwordx4 {vr(XRES,4)}, v{V_L16}, {WS}, s{S_XRES} offen sc1',
             f'buffer_store_dwordx4 {vr(XRES+4,4)}, v{V_L16}, {WS}, s{S_XRES} offen offset:1024 sc1',
             's_add_u32 s27, s79, 4096', f'buffer_store_dwordx4 {vr(CS,4)}, v{V_L16}, {WS}, s27 offen sc1']
    a(f'v_mul_f32 v{RS}, {f32(0.25*LOG2E)}, v{RS}')
    a(f'v_mul_f32 v{NM}, {f32(0.25*LOG2E)}, v{NM}')
    FLAG_AT = OPT('FLAG_AT', 8)
    SN = AQ
    rd = []
    XLD = f'buffer_load_dword v27, v26, {WS}, s{S_XLINE} offen sc1'
    def sreads(s):
        if s >= 16: return []
        R = WIN + 16*(s % 3)
        L = []
        if s % 4 == 0:
            def sync():
                a.wait(qtok[s+3], last if s == FLAG_AT else None)
                a('s_barrier')
                if s == 0: a(f'ds_write_b64 v{VQT+4}, {vr(RS,2)}'); a(f'ds_write_b64 v{VQT+4}, {vr(RS,2)} offset:512')
                if s == 8:
                    for nt in range(4): a(f'ds_read_b64 {vr(SN+2*nt,2)}, v{VQT+4} offset:{128*nt}')
                if s == FLAG_AT:
                    a.lines(f"""
                    s_cmp_eq_u32 s{S_W}, 0
                    s_cselect_b32 s24, s{S_XLW}, {WS_USED}
                    s_cmp_eq_u32 s{S_W}, 2
                    s_cselect_b32 s90, s90, {WS_USED}
                    s_mov_b64 exec, 1
                    buffer_store_dword v157, off, {WS}, s24
                    s_mov_b64 exec, -1
                    """)
            L.append(sync)
        def ar_():
            a(f'ds_read_b64_tr_b16 {vr(R,2)}, v{VQT} offset:{L_WQ + 4096*s}')
            a(f'ds_read_b64_tr_b16 {vr(R+2,2)}, v{VQT} offset:{L_WQ + 4096*s + 512}')
        if L: f0 = L.pop(); L.append(lambda: (f0(), ar_()))
        else: L.append(ar_)
        for nt in range(1, 4):
            def br_(nt=nt):
                t = a(f'ds_read_b128 {vr(R+4*nt,4)}, v{94+2*nt+(s&1)} offset:{2048*(s>>1)}')
                if nt == 3: rd.append(t)
            L.append(br_)
        return L
    for s in range(2):
        for x in sreads(s): x()
    a.wait(rd[0])
    for s in range(16):
        R = WIN + 16*(s % 3)
        nx = sreads(s+2)
        for t in range(5):
            if t < 4: a(f'{M16} {vr(QA+4*t,4)}, {vr(R,4)}, {vr(R+4*t,4) if t else vr(B+4*s,4)}, {"0" if s == 0 else vr(QA+4*t,4)}')
            else: a(f'{M16} {vr(CQ,4)}, {vr(R,4)}, {vr(ONES,4)}, {"0" if s == 0 else vr(CQ,4)}')
            if t == 4 and s < 15: a.wait(rd[s+1])
            if nx: nx.pop(0)()
            if t == 1 and len(qtok) < 16: qload()
            elif side and t in (1, 3) and len(qtok) == 16: a(side.pop(0))
            if s == OPT('XLI', 13) and t == 1: xlt = a(XLD)
    stamp(a, 'p0_q', True)
    a.wait(xlt)
    a(f'v_cmp_ne_u32 vcc, s{S_NONCE}, v27')
    a('s_cbranch_vccnz XL0_SLOW')
    a.raw('XL0_OK:')
    def d(b):
        b.raw('XL0_SLOW:')
        b('s_mov_b32 s25, 0')
        b.raw('XL0_POLL:')
        b(XLD)
        b('s_add_u32 s25, s25, 1')
        b('s_waitcnt vmcnt(0)')
        b(f's_cmp_gt_u32 s25, {POLL_MAX}')
        b('s_cbranch_scc1 XL0_OK')
        b(f'v_cmp_ne_u32 vcc, s{S_NONCE}, v27')
        b('s_cbranch_vccz XL0_OK')
        b('s_cmp_lt_u32 s25, 16')
        b('s_cbranch_scc1 XL0_POLL')
        b('s_cmp_lg_u32 s25, 16')
        b('s_cbranch_scc1 XL0_NOST')
        b('s_mov_b64 exec, 1')
        b(f'buffer_store_dword v254, off, {WS}, s90 sc1')
        b('s_mov_b64 exec, -1')
        b.raw('XL0_NOST:')
        b('s_sleep 8')
        xcc_load(b, 27, 158)
        b('s_waitcnt vmcnt(0)')
        b('v_and_b32 v27, -8, v27')
        b(f'v_cmp_ne_u32 vcc, s{S_NONCE}, v27')
        b('s_cbranch_vccnz XL0_POLL')
        b('s_branch XL0_OK')
    deferred.append(d)
    stamp(a, 'xl_polled')
    att.first_loads()
    att.xl_pass()
    a('v_mov_b32 v241, v10')
    a('s_load_dwordx2 s[80:81], s[0:1], 64')
    for nt in range(4):
        for h in range(2):
            r = vr(QA+4*nt+2*h, 2)
            a(f'v_pk_mul_f32 {r}, {r}, {vr(SN+2*nt,2)} op_sel_hi:[1,0]')
        for h in range(2):
            r = vr(QA+4*nt+2*h, 2)
            a(f'v_pk_fma_f32 {r}, {vr(CQ+2*h,2)}, {vr(SN+2*nt,2)}, {r} op_sel:[0,1,0] op_sel_hi:[1,1,1] neg_lo:[1,0,0] neg_hi:[1,0,0]')
        a(f'v_cvt_pk_bf16_f32 v{QA+4*nt}, v{QA+4*nt}, v{QA+4*nt+1}'); a(f'v_cvt_pk_bf16_f32 v{QA+4*nt+1}, v{QA+4*nt+2}, v{QA+4*nt+3}')
        a(f'ds_write_b64 v{14+nt}, {vr(QA+4*nt,2)}')
    a.wait_all(vm=False)
    a('s_barrier')
    att.q_read(LQ0)
    att.more_loads()
    for i in range(4): pkload(i)()
    att.misc['pk'] = tk['pk']; att.VPT = VPT
    a('s_mov_b64 exec, 1')
    a(f'buffer_store_dword v254, off, {WS}, s90 sc1')
    a('s_mov_b64 exec, -1')
    a(f's_add_u32 s24, s79, s{W1K}')
    a(f'buffer_store_dwordx4 {vr(CQ,4)}, v{V_L16}, {WS}, s24 offen sc1')
    a.lines(f"""
    s_mov_b32 s8, s80
    s_mov_b32 s9, s81
    s_mov_b32 s10, {2048*1024}
    s_mov_b32 s11, 0x20000
    """)

def gen_main(a):
    deferred = []
    ids(a, 'MAIN_END')
    if PROF:
        a('s_memrealtime s[70:71]'); a.wait_all(vm=False); a('v_writelane_b32 v0, s70, 31')
    stamp(a, 'start', True)
    att0 = Att(a, deferred, 0)
    gen_phase0(a, deferred, att0)
    misc = att0.loop()
    a.raw('ATT_EPI:')
    join = (a.vm - misc['xt'][1])
    stamp(a, 'att_end')
    gen_att_epilogue(a, misc)
    stamp(a, 'o_stored')
    gen_p1(a, misc, deferred)
    gen_p23(a, deferred)
    stamp(a, 'f2_end')
    a.lines(f"""
    s_cmp_eq_u32 s{S_L}, 0
    s_cbranch_scc1 NEXT_LAYER
    """)
    gen_out(a)
    stamp_dump(a)
    a.raw('MAIN_END:')
    a('s_endpgm')
    a.raw('NEXT_LAYER:')
    st_voff(a, 137)
    x_publish(a, XR, 24, 92, S_X2O, S_ST2O, 137, sc=D_SC)
    pre = gen_p4_pre(a)
    hop(a, F_X2, deferred, 'x2', 5)
    gen_p4(a, pre)
    stamp(a, 'p4_end')
    a(f's_mov_b32 s{S_L}, 1')
    a(f'v_mov_b32 v28, s{S_NONCE}')
    layer_bases(a); xl_addrs(a)
    att1 = Att(a, deferred, 1)
    att1.init_regs()
    a.wait_all()
    a('s_barrier')
    flag_set(a, 0, deferred, sreg=S_XLW, vd=28)
    att1.q_read()
    att1.xl_poll()
    a('s_barrier')
    stamp(a, 'xl_polled')
    att1.first_loads()
    layer_scalars(a)
    m1 = att1.loop()
    assert a.vm - m1['xt'][1] == join
    a('s_branch ATT_EPI')
    gen_fallback(a)
    for d in deferred: d(a)
    a.raw('CODE_END:')

KD = '''.amdhsa_kernel {name}
  .amdhsa_next_free_vgpr {nv}
  .amdhsa_next_free_sgpr 102
  .amdhsa_accum_offset {acc}
  .amdhsa_group_segment_fixed_size 0
  .amdhsa_kernarg_size 88
  .amdhsa_user_sgpr_count 2
  .amdhsa_user_sgpr_kernarg_segment_ptr 1
  .amdhsa_system_sgpr_workgroup_id_x 1
.end_amdhsa_kernel
'''
def build():
    hdr = open('cdna_kernels/' + NAME + '.s.ref').read().split('; Override launch')[0]
    kn = NAME + '_kernel'
    out = hdr + f'; @launch grid=(256,1,1) block=(256,1,1) lds={LDS_TOTAL}\n'
    a = Asm()
    a.raw('.amdgcn_target "amdgcn-amd-amdhsa--gfx950"'); a.raw('.text')
    a.raw(f'.globl {kn}'); a.raw('.p2align 8'); a.raw(f'.type {kn},@function'); a.raw(f'{kn}:')
    gen_main(a)
    out += a.text()
    out += '.section .rodata,"a"\n.p2align 6\n' + KD.format(name=kn, nv=512, acc=256)
    sys.stderr.write(f'instructions: {len(a.ins)}, nop states inserted: {a.nops}\n')
    return out

if __name__ == '__main__':
    dst = sys.argv[1] if len(sys.argv) > 1 else 'cdna_kernels/' + NAME + '.s'
    if len(sys.argv) > 2 and sys.argv[2].startswith('prof'): PROF = True
    if len(sys.argv) > 2 and sys.argv[2] == 'profrt': STAMP_OP = 's_memrealtime'
    open(dst, 'w').write(build())
    if PROF: open(dst + '.stamps', 'w').write(' '.join(STAMPS))
```

```python
WQKV_P = 0x000000
WO_P   = 0x0A0000
W1_P   = 0x120000
W2_P   = 0x280000
KV0    = 0x3E0000
KV_SZ  = 0x20000
GB0    = 0x800000
GB_L   = 0
GB_G   = 0x80000
O_XIN, O_Q, O_O, O_X1, O_H = 0x0, 0x10000, 0x20000, 0x0, 0x40000
O_STIN, O_ST1 = 0x6C000, 0x6C000
FLAGS = 0x420000
F_OA, F_X1, F_H, F_X2, F_OB = 0, 128, 256, 768, 896
F_PK = 32768 + 768
XFL = 0x430000
PROF_OFF = 0x600000
WS_USED = GB0 + 32 * GB_G
assert WO_P == WQKV_P + 8 * 81920 and W1_P == WO_P + 0x80000 and W2_P == W1_P + 88 * 16384
assert KV0 == W2_P + 352 * 4096 and KV0 + 2 * KV_SZ <= GB0
```

```python
import sys, struct, math, os
OPT = lambda k, d=0: int(os.environ.get(k, d))
from dsl import *
from layout import *

def f32(x): return '0x%08x' % struct.unpack('<I', struct.pack('<f', x))[0]
LOG2E = 1.4426950408889634
LN2 = 0.6931471805599453
M16 = 'v_mfma_f32_16x16x32_bf16'
M32 = 'v_mfma_f32_32x32x16_bf16'
NAME = 'interleave_layers__grouped_kv_mqa__dense_activation_silu__prompt'

S_L = 3
SRD_WS = 4
SRD_B = 8
S_G, S_J, S_W = 12, 13, 14
S_GB, S_GBN, S_KV, S_KVN = 15, 16, 17, 18
S_VMASK = 20
S_T = 24
WS = sr(SRD_WS, 4); SB = sr(SRD_B, 4)
V_L16, V_T, V_G = 1, 2, 3

PROF = False
STAMP_OP = 's_memtime'
STAMPS = []
STAMP_SKIP = os.environ.get('STAMP_SKIP', '').split(',')
def stamp(a, name, always=False):
    if not PROF or any(name.startswith(p) for p in STAMP_SKIP if p): return
    if name in STAMPS: i = STAMPS.index(name)
    else: i = len(STAMPS); STAMPS.append(name)
    assert i < 31
    a(f'{STAMP_OP} s[70:71]')
    a.wait_all(vm=False)
    if always: a(f'v_writelane_b32 v0, s70, {i}')
    else:
        a(f's_cmp_eq_u32 s{S_L}, 1')
        l = a.label_name('ST'); l2 = a.label_name('ST')
        a(f's_cbranch_scc1 {l}')
        a(f'v_writelane_b32 v0, s70, {i}')
        a(f's_branch {l2}')
        a.raw(f'{l}:')
        a(f'v_writelane_b32 v0, s70, {32+i}')
        a.raw(f'{l2}:')
def stamp_dump(a):
    if not PROF: return
    a('s_memrealtime s[70:71]')
    a.wait_all()
    a.lines(f'''
    v_writelane_b32 v0, s70, 63
    s_lshl_b32 s24, s2, 2
    s_add_u32 s24, s24, s{S_W}
    s_lshl_b32 s24, s24, 8
    s_add_u32 s24, s24, {PROF_OFF}
    v_lshrrev_b32 v4, 2, v{V_L16}
    buffer_store_dword v0, v4, {WS}, s24 offen
    ''')
    a.wait_all()

V_LANE = 23
def ids(a, end):
    a.lines(f'''
    s_cmp_ge_u32 s2, 256
    s_cbranch_scc1 {end}
    s_load_dwordx2 s[4:5], s[0:1], 80
    v_lshrrev_b32 v4, 6, v0
    s_and_b32 s24, s2, 7
    s_lshr_b32 s25, s2, 3
    v_readfirstlane_b32 s{S_W}, v4
    s_and_b32 s{S_J}, s25, 7
    s_lshr_b32 s25, s25, 3
    s_lshl_b32 s{S_G}, s24, 2
    s_add_u32 s{S_G}, s{S_G}, s25
    v_and_b32 v{V_LANE}, 63, v0
    v_lshlrev_b32 v{V_L16}, 4, v{V_LANE}
    v_and_b32 v{V_T}, 15, v{V_LANE}
    v_lshrrev_b32 v{V_G}, 4, v{V_LANE}
    s_mov_b32 s6, {WS_USED}
    s_mov_b32 s7, 0x20000
    ''')
def layer_bases(a):
    a.lines(f'''
    s_mul_i32 s{S_GB}, s{S_L}, {GB_L}
    s_mul_i32 s24, s{S_G}, {GB_G}
    s_add_u32 s{S_GB}, s{S_GB}, s24
    s_add_u32 s{S_GB}, s{S_GB}, {GB0}
    s_add_u32 s{S_GBN}, s{S_GB}, {GB_L}
    s_mul_i32 s{S_KV}, s{S_L}, {KV_SZ}
    s_add_u32 s{S_KV}, s{S_KV}, {KV0}
    s_add_u32 s{S_KVN}, s{S_KV}, {KV_SZ}
    ''')

def x_publish_addr(a, sx, sst, s_gb, o_x, o_st):
    a.lines(f'''
    s_lshl_b32 s24, s{S_W}, 14
    s_lshl_b32 s25, s{S_J}, 11
    s_add_u32 s24, s24, s25
    s_add_u32 s24, s24, s{s_gb}
    s_add_u32 s{sx}, s24, {o_x}
    s_lshl_b32 s25, s{S_J}, 9
    s_lshl_b32 s26, s{S_W}, 7
    s_add_u32 s25, s25, s26
    s_add_u32 s25, s25, s{s_gb}
    s_add_u32 s{sst}, s25, {o_st}
    ''')
def st_voff(a, v):
    a(f'v_lshrrev_b32 v{v}, 1, v{V_G}')
    a(f'v_lshlrev_b32 v{v}, 2, v{v}')
    a(f'v_lshl_add_u32 v{v}, v{V_T}, 3, v{v}')
def x_publish(a, acc, pk, tmp, sx, sst, vst, have_pk=False, sc='', deferred=None):
    for h in range(2):
        if not have_pk:
            for i in range(4*h, 4*h+4):
                a(f'v_cvt_pk_bf16_f32 v{pk+i}, v{acc+2*i}, v{acc+2*i+1}')
        a(f'buffer_store_dwordx4 {vr(pk+4*h,4)}, v{V_L16}, {WS}, s{sx} offen offset:{1024*h} {sc}')
    s, q = tmp, tmp + 2
    a(f'v_pk_add_f32 {vr(s,2)}, {vr(acc,2)}, {vr(acc+2,2)}')
    a(f'v_pk_mul_f32 {vr(q,2)}, {vr(acc,2)}, {vr(acc,2)}')
    for i in range(1, 8):
        if i > 1: a(f'v_pk_add_f32 {vr(s,2)}, {vr(s,2)}, {vr(acc+2*i,2)}')
        a(f'v_pk_fma_f32 {vr(q,2)}, {vr(acc+2*i,2)}, {vr(acc+2*i,2)}, {vr(q,2)}')
    a(f'v_add_f32 v{s}, v{s}, v{s+1}')
    a(f'v_add_f32 v{q}, v{q}, v{q+1}')
    a(f'v_permlane32_swap_b32 v{s}, v{q}')
    a(f'v_add_f32 v{s}, v{s}, v{q}')
    a(f'v_mov_b32 v{q}, v{s}')
    a(f'v_permlane16_swap_b32 v{s}, v{q}')
    a(f'v_add_f32 v{s}, v{s}, v{q}')
    t = a(f'buffer_store_dword v{s}, v{vst}, {WS}, s{sst} offen {sc}')
    if not sc:
        dup_slow(a, deferred, [f'buffer_store_dwordx4 {vr(pk+4*h,4)}, v{V_L16}, {WS}, s{sx} offen offset:{1024*h}' for h in range(2)]
                 + [f'buffer_store_dword v{s}, v{vst}, {WS}, s{sst} offen'])
    return t

def rstd_from(a, st, out, scale, pk=True):
    L = []
    for i in range(4): L.append(f'v_pk_add_f32 {vr(st+4*i,2)}, {vr(st+4*i,2)}, {vr(st+4*i+2,2)}')
    L.append(f'v_pk_add_f32 {vr(st,2)}, {vr(st,2)}, {vr(st+4,2)}')
    L.append(f'v_pk_add_f32 {vr(st+8,2)}, {vr(st+8,2)}, {vr(st+12,2)}')
    L.append(f'v_pk_add_f32 {vr(st,2)}, {vr(st,2)}, {vr(st+8,2)}')
    if not pk:
        L = []
        for d, s in [(4*i, 4*i+2) for i in range(4)] + [(0, 4), (8, 12), (0, 8)]:
            L += [f'v_add_f32 v{st+d}, v{st+d}, v{st+s}', f'v_add_f32 v{st+d+1}, v{st+d+1}, v{st+s+1}']
    L.append(f'v_mul_f32 v{st}, {f32(1/512)}, v{st}')
    L.append(f'v_mul_f32 v{st+1}, {f32(1/512)}, v{st+1}')
    L.append(f'v_fma_f32 v{st+1}, -v{st}, v{st}, v{st+1}')
    L.append(f'v_max_f32 v{st+1}, 0, v{st+1}')
    L.append(f'v_add_f32 v{st+1}, {f32(1e-5)}, v{st+1}')
    L.append(f'v_rsq_f32 v{out}, v{st+1}')
    if scale != 1.0: L.append(f'v_mul_f32 v{out}, {f32(scale)}, v{out}')
    return L

LDS_WO, LDS_WQ, LDS_SCR, LDS_ST, LDS_Q = 0, 65536, 131072, 147456, 155648
LDS_TOTAL = 163840
VQ, VS0, VS1, VP, VO, VKV = 8, 24, 40, 56, 64, 128
XR = 8
OUT_SC = 'sc1' if OPT('OUT_SC1', 0) else ''
POLL_MAX = 400000
FORCE_SLOW = OPT('FORCE_SLOW', 0)
H_SC = 'sc1' if OPT('H_SC1', 1) else ''
D_SC = 'sc1' if OPT('D_SC1', 0) else ''
NEED_FENCE = False
S_FLAG, S_FLINE, S_SLOW = 19, 22, 23
S_IDX, S_KB = 30, 31
S_KP, S_WP = 32, 34
S_OST = 36
S_C = 40
S_ROT = 44
S_X1O, S_ST1O, S_X2O, S_ST2O = 52, 53, 54, 55
S_HF, S_HH, S_HB, S_XD = 56, 57, 58, 59
S_QO, S_KVO, S_XRES, S_W2L, S_WQL = 60, 62, 63, 64, 65
S_STD, S_STN = 66, 67
S_NONCE, S_XLINE, S_XLW, S_XGL = 43, 39, 68, 69

def w2reg(f):
    if f < 16: return ar(192 + 4*f, 4)
    if f < 42: return vr(152 + 4*(f-16), 4)
    return vr(144 + 4*(f-42), 4)
def w1reg(i, ks): return ar((i*16 + ks)*4, 4)

def flag_set(a, line_off, deferred, sreg=None, vd=7):
    skip = a.label_name('FS'); slow = a.label_name('FSS')
    sreg = sreg or S_FLAG
    a(f's_cmp_lg_u32 s{S_W}, 0')
    a(f's_cbranch_scc1 {skip}')
    a(f's_cmp_lg_u32 s{S_SLOW}, 0')
    a(f's_cbranch_scc1 {slow}')
    a('s_mov_b64 exec, 1')
    a.raw(f'buffer_store_dword v{vd}, off, {WS}, s{sreg} offset:{line_off}')
    a('s_mov_b64 exec, -1')
    a.raw(f'{skip}:')
    def d(b):
        b.raw(f'{slow}:')
        if NEED_FENCE and sreg == S_FLAG:
            b.raw('buffer_wbl2 sc1')
            b('s_waitcnt vmcnt(0)')
        b('s_mov_b64 exec, 1')
        b(f'buffer_store_dword v{vd}, off, {WS}, s{sreg} offset:{line_off} sc1')
        b('s_mov_b64 exec, -1')
        b(f's_branch {skip}')
    deferred.append(d)

def dup_slow(a, deferred, stores):
    slow = a.label_name('DS'); back = a.label_name('DB')
    a(f's_cmp_lg_u32 s{S_SLOW}, 0')
    a(f's_cbranch_scc1 {slow}')
    a.raw(f'{back}:')
    def d(b):
        b.raw(f'{slow}:')
        b('s_waitcnt vmcnt(0)')
        for s in stores: b(s + ' sc1')
        b('s_waitcnt vmcnt(0)')
        b(f's_branch {back}')
    deferred.append(d)

def acquire_slow(a, deferred):
    if not NEED_FENCE: return
    slow = a.label_name('AQS'); back = a.label_name('AQB')
    a(f's_cmp_lg_u32 s{S_SLOW}, 0')
    a(f's_cbranch_scc1 {slow}')
    a.raw(f'{back}:')
    def d(b):
        b.raw(f'{slow}:')
        b.raw('buffer_inv sc1')
        b('s_waitcnt vmcnt(0)')
        b(f's_branch {back}')
    deferred.append(d)

def hop(a, line_off, deferred, tag, vtmp):
    lp = a.label_name('POLL'); dn = a.label_name('POLLD'); sk = a.label_name('POLLS')
    a.wait_all(lg=False)
    stamp(a, tag + '_drained')
    a('s_barrier')
    flag_set(a, line_off, deferred)
    a(f's_cmp_lg_u32 s{S_W}, 1')
    a(f's_cbranch_scc1 {sk}')
    a('s_mov_b32 s25, 0')
    a.raw(f'{lp}:')
    a.raw(f'buffer_load_dword v{vtmp}, v6, {WS}, s{S_FLINE} offen offset:{line_off} sc1')
    a(f's_add_u32 s25, s25, 1')
    a('s_waitcnt vmcnt(0)')
    a(f's_cmp_gt_u32 s25, {POLL_MAX}')
    a(f's_cbranch_scc1 {dn}')
    a(f'v_cmp_ne_u32 vcc, s{S_NONCE}, v{vtmp}')
    a(f's_cbranch_vccnz {lp}')
    a.raw(f'{dn}:')
    acquire_slow(a, deferred)
    a.raw(f'{sk}:')
    a('s_barrier')
    stamp(a, tag + '_polled')

def pre_rot(a):
    a(f's_lshl_b32 s26, s{S_W}, 14')
    a(f's_lshl_b32 s27, s{S_J}, 11')
    for pp in range(8):
        a(f's_add_u32 s{S_ROT+pp}, s27, s26')
        if pp < 7:
            a('s_add_u32 s27, s27, 2048')
            a('s_and_b32 s27, s27, 0x3fff')

NBS = 8
def bfrag_load(B, voff, s):
    return f'buffer_load_dwordx4 {vr(B+4*(s % NBS),4)}, v{voff}, {WS}, s{S_ROT+(s>>1)} offen offset:{1024*(s&1)} sc1'

def gemm_w(a, B, voff, AW, nwin, ntile, lds_addr_fn, pre, mfmas, late=(), tag=None, extras=()):
    LA = OPT('GW_LA', 7)
    assert LA < NBS and nwin >= 2*ntile + 1
    atoks = list(pre)
    btoks = [a(bfrag_load(B, voff, s)) for s in range(LA)]
    late = list(late); ltok = None; extras = list(extras)
    n = 16*ntile
    a.wait(atoks[ntile-1], btoks[0])
    for k in range(n):
        s, t = divmod(k, ntile)
        if tag and OPT('P1_STAMPS') and t == 0 and s in (0, 4, 8, 12): stamp(a, f'{tag}_s{s}')
        for m in mfmas(s, t, vr(AW + 4*(k % nwin), 4), vr(B+4*(s % NBS), 4)): a(m)
        if t == ntile - 1 and s < 15: a.wait(atoks[k + ntile], btoks[s+1])
        if t == 1:
            if len(btoks) < 16: btoks.append(a(bfrag_load(B, voff, len(btoks))))
            elif late: ltok = a(late.pop(0)) or ltok
        if len(atoks) < n:
            kk = len(atoks); v, off = lds_addr_fn(kk)
            atoks.append(a(f'ds_read_b128 {vr(AW + 4*(kk % nwin),4)}, v{v} offset:{off}'))
        if extras and s >= 2 and t != 1: a(extras.pop(0))
    for x in extras: a(x)
    for x in late: ltok = a(x) or ltok
    return ltok

def pre_kvo(a, s_kv=S_KVN):
    a.lines(f'''
    s_lshl_b32 s24, s{S_G}, 1
    s_lshr_b32 s25, s{S_W}, 1
    s_add_u32 s24, s24, s25
    s_lshl_b32 s24, s24, 11
    s_add_u32 s24, s24, s{s_kv}
    s_and_b32 s25, s{S_W}, 1
    s_lshl_b32 s26, s25, 8
    s_lshl_b32 s27, s25, 9
    s_add_u32 s27, s27, 1024
    s_bitcmp1_b32 s{S_J}, 0
    s_cselect_b32 s26, s27, s26
    s_add_u32 s24, s24, s26
    s_lshr_b32 s25, s{S_J}, 1
    s_cmp_eq_u32 s25, s{S_W}
    s_cselect_b32 s{S_KVO}, s24, {WS_USED}
    s_lshr_b32 s24, s{S_W}, 1
    s_lshl_b32 s24, s24, 10
    s_and_b32 s25, s{S_W}, 1
    s_lshl_b32 s25, s25, 8
    s_add_u32 s24, s24, s25
    s_add_u32 s{S_QO}, s24, {LDS_Q}
    ''')
def pre_st_n(a):
    a.lines(f'''
    s_lshl_b32 s24, s{S_W}, 7
    s_add_u32 s24, s24, s{S_GBN}
    s_add_u32 s{S_STN}, s24, {O_STIN}
    ''')
def qkv_voffs(a, vq, vv, vb, t0, t1):
    a.lines(f'''
    v_lshrrev_b32 v{t0}, 1, v{V_G}
    v_and_b32 v{t1}, 1, v{V_G}
    v_lshlrev_b32 v{vq}, 9, v{t0}
    v_lshl_add_u32 v{vq}, v{V_T}, 4, v{vq}
    v_lshl_add_u32 v{vq}, v{t1}, 3, v{vq}
    v_lshlrev_b32 v{vv}, 8, v{t1}
    v_lshl_add_u32 v{vv}, v{V_T}, 4, v{vv}
    v_lshl_add_u32 v{vv}, v{t0}, 3, v{vv}
    v_lshlrev_b32 v{vb}, 4, v{V_G}
    ''')

def cs_addr(a, sd, s_gb):
    a(f's_lshl_b32 s24, s{S_J}, 13')
    a(f's_add_u32 s24, s24, s{s_gb}')
    a(f's_add_u32 s{sd}, s24, {O_Q}')
def kv_epilogue(a, pfx, KA, VA, CS, RS, NM, T, vq, vv, vb):
    a(f's_bitcmp1_b32 s{S_J}, 0')
    a(f's_cbranch_scc1 {pfx}_EV')
    for r in range(4):
        a(f'v_mul_f32 v{KA+r}, v{KA+r}, v{RS}')
        a(f'v_fma_f32 v{KA+r}, -v{CS+r}, v{NM}, v{KA+r}')
    a(f'v_cvt_pk_bf16_f32 v{KA}, v{KA}, v{KA+1}'); a(f'v_cvt_pk_bf16_f32 v{KA+1}, v{KA+2}, v{KA+3}')
    a.raw(f'buffer_store_dwordx2 {vr(KA,2)}, v{vq}, {WS}, s{S_KVO} offen sc1')
    a(f's_branch {pfx}_EJ')
    a.raw(f'{pfx}_EV:')
    for r in range(4):
        a.raw(f'ds_bpermute_b32 v{T+r}, v{vb}, v{RS} offset:{4*r}')
        a.raw(f'ds_bpermute_b32 v{T+4+r}, v{vb}, v{NM} offset:{4*r}')
    a('s_waitcnt lgkmcnt(0)')
    for r in range(4):
        a(f'v_mul_f32 v{VA+r}, v{VA+r}, v{T+r}')
        a(f'v_fma_f32 v{VA+r}, -v{CS}, v{T+4+r}, v{VA+r}')
    a(f'v_cvt_pk_bf16_f32 v{VA}, v{VA}, v{VA+1}'); a(f'v_cvt_pk_bf16_f32 v{VA+1}, v{VA+2}, v{VA+3}')
    t = a(f'buffer_store_dwordx2 {vr(VA,2)}, v{vv}, {WS}, s{S_KVO} offen sc1')
    a.raw(f'{pfx}_EJ:')
    return t

P4_ACC, P4_B, P4_AW, P4_NW, P4_ST, P4_RS = 8, 32, 64, 14, 120, 136
P4_CS = (124, 128, 132, 144, 148)
def p4_addr(k):
    s, t = divmod(k, 5)
    off = s*5120 + t*1024
    return (140, off) if s < 8 else (141, off - 40960)
def gen_p4_pre(a):
    a.lines(f'''
    v_add_u32 v140, {LDS_WQ}, v{V_L16}
    v_add_u32 v141, {LDS_WQ + 40960}, v{V_L16}
    v_lshlrev_b32 v142, 3, v{V_T}
    v_lshl_add_u32 v142, v{V_G}, 10, v142
    v_add_u32 v143, s{S_GBN}, v{V_L16}
    ''')
    pre = []
    for k in range(P4_NW):
        v, off = p4_addr(k)
        pre.append(a(f'ds_read_b128 {vr(P4_AW+4*k,4)}, v{v} offset:{off}'))
    return pre
def allreduce_g(r, t):
    return [f'v_mov_b32 v{t}, v{r}', f'v_permlane32_swap_b32 v{r}, v{t}', f'v_add_f32 v{r}, v{r}, v{t}',
            f'v_mov_b32 v{t}, v{r}', f'v_permlane16_swap_b32 v{r}, v{t}', f'v_add_f32 v{r}, v{r}, v{t}']
def gen_p4(a, pre):
    ACC, B, AW, NW, ST, RS = P4_ACC, P4_B, P4_AW, P4_NW, P4_ST, P4_RS
    KA, VA, NM = 24, 28, P4_RS + 1
    assert O_XIN == 0
    for p in range(2):
        a(f'buffer_load_dwordx2 {vr(ST+2*p,2)}, v142, {WS}, s{S_STN} offen offset:{512*p} sc1')
    ex = [f'v_add_f32 v{ST}, v{ST}, v{ST+2}', f'v_add_f32 v{ST+1}, v{ST+1}, v{ST+3}']
    ex += [x for pr in zip(allreduce_g(ST, ST+2), allreduce_g(ST+1, ST+3)) for x in pr]
    ex += rstd_from(a, ST, RS, 1.0)[7:]
    ex += [f'v_lshrrev_b32 v{ST+2}, 1, v{V_G}', f'v_mul_f32 v{NM}, v{ST}, v{RS}', f'v_and_b32 v{ST+3}, 1, v{V_G}',
           f'v_mul_f32 v{RS+2}, {f32(0.25*LOG2E)}, v{RS}', f'v_mul_f32 v{RS+3}, {f32(0.25*LOG2E)}, v{NM}',
           f'v_lshlrev_b32 v5, 9, v{ST+2}', f'v_lshl_add_u32 v5, v{V_T}, 4, v5', f'v_lshl_add_u32 v5, v{ST+3}, 3, v5',
           f'v_lshlrev_b32 v142, 8, v{ST+3}', f'v_lshl_add_u32 v142, v{V_T}, 4, v142', f'v_lshl_add_u32 v142, v{ST+2}, 3, v142',
           f'v_lshlrev_b32 v4, 4, v{V_G}']
    a(f's_bitcmp1_b32 s{S_J}, 0')
    a('s_cbranch_scc1 P4_GV')
    state = (a.vm, a.vm_done, a.lg, a.lg_done)
    for var in 'KV':
        if var == 'V':
            a('s_branch P4_GJ'); a.raw('P4_GV:')
            a.vm, a.vm_done, a.lg, a.lg_done = state
        def mf(s, t, A, Bq):
            if t < 4: return [f'{M16} {vr(ACC+4*t,4)}, {A}, {Bq}, {"0" if s == 0 else vr(ACC+4*t,4)}']
            if var == 'V': A, Bq = Bq, A
            return [f'{M16} {vr(KA,4)}, {A}, {Bq}, {"0" if s == 0 else vr(KA,4)}']
        gemm_w(a, B, 143, AW, NW, 5, p4_addr, pre, mf, extras=ex)
    a.raw('P4_GJ:')
    stamp(a, 'p4_gemm')
    a('s_nop 5')
    kv_epilogue(a, 'P4', KA, KA, P4_CS[4], RS, NM, AW, 5, 142, 4)
    a(f'v_add_u32 v5, s{S_QO}, v5')
    for mt in range(4):
        r = ACC + 4*mt
        a(f'v_pk_mul_f32 {vr(r,2)}, {vr(r,2)}, {vr(RS+2,2)} op_sel_hi:[1,0]')
        a(f'v_pk_mul_f32 {vr(r+2,2)}, {vr(r+2,2)}, {vr(RS+2,2)} op_sel_hi:[1,0]')
        for h in range(2):
            a(f'v_pk_fma_f32 {vr(r+2*h,2)}, {vr(P4_CS[mt]+2*h,2)}, {vr(RS+2,2)}, {vr(r+2*h,2)} op_sel:[0,1,0] op_sel_hi:[1,1,1] neg_lo:[1,0,0] neg_hi:[1,0,0]')
        a(f'v_cvt_pk_bf16_f32 v{r}, v{r}, v{r+1}')
        a(f'v_cvt_pk_bf16_f32 v{r+1}, v{r+2}, v{r+3}')
        a(f'ds_write_b64 v5, {vr(r,2)} offset:{2048*mt}')

S_XW = 61
JOINT = OPT('JOINT', 0)
S_HWT = 98
S_CSA = 96
S_CLN = 92
SPOLL = OPT('SPOLL', 1)
S_FH, S_N2 = 88, 100
VKV2, PF = 160, 184
S_KVT = 99
def xl_addrs(a):
    a.lines(f'''
    s_and_b32 s24, s2, 7
    s_lshl_b32 s24, s24, 7
    s_lshl_b32 s25, s{S_L}, 11
    s_add_u32 s24, s24, s25
    s_add_u32 s{S_XLINE}, s24, {XFL}
    s_add_u32 s{S_XGL}, s{S_XLINE}, 1024
    s_lshr_b32 s25, s2, 3
    s_lshl_b32 s25, s25, 2
    s_add_u32 s{S_XLW}, s{S_XLINE}, s25
    ''')
def xcc_load(a, vdst, vaddr):
    a('s_and_b32 s24, s2, 7')
    a('s_lshl_b32 s24, s24, 9')
    a(f's_add_u32 s24, s24, {XFL + 4096}')
    return a(f'buffer_load_dword v{vdst}, v{vaddr}, {WS}, s24 offen sc1')
def xcc_eval(a, v):
    a(f'v_cmp_ne_u32 vcc, s{S_XW}, v{v}')
    a('s_cmp_lg_u64 vcc, 0')
    a(f's_cselect_b32 s{S_SLOW}, 1, {FORCE_SLOW}')

def layer_scalars(a):
    a.lines(f'''
    s_lshl_b32 s24, s{S_L}, 15
    s_lshl_b32 s29, s{S_G}, 10
    s_add_u32 s24, s24, s29
    s_add_u32 s{S_FLINE}, s24, {FLAGS}
    s_lshl_b32 s29, s{S_J}, 2
    s_add_u32 s{S_FLAG}, s{S_FLINE}, s29
    ''')
    pre_st_n(a)
    x_publish_addr(a, S_X1O, S_ST1O, S_GB, O_X1, O_ST1)
    x_publish_addr(a, S_X2O, S_ST2O, S_GBN, O_XIN, O_STIN)
    a.lines(f'''
    s_sub_u32 s{S_XRES}, s{S_X1O}, {O_X1 - O_XIN}
    s_lshl_b32 s24, s{S_J}, 1
    s_and_b32 s25, s{S_W}, 1
    s_add_u32 s24, s24, s25
    s_lshl_b32 s24, s24, 10
    s_lshr_b32 s25, s{S_W}, 1
    s_lshl_b32 s25, s25, 9
    s_add_u32 s24, s24, s25
    s_add_u32 s24, s24, s{S_GB}
    s_add_u32 s{S_OST}, s24, {O_O}
    s_add_u32 s{S_OST+1}, s{S_OST}, 32768
    s_lshr_b32 s24, s{S_J}, 1
    s_mul_i32 s24, s24, 11
    s_and_b32 s25, s{S_J}, 1
    s_lshl_b32 s26, s25, 2
    s_add_u32 s26, s26, s{S_W}
    s_add_u32 s26, s26, s24
    s_lshl_b32 s26, s26, 10
    s_add_u32 s27, s{S_GB}, {O_H}
    s_add_u32 s{S_HF}, s26, s27
    s_mul_i32 s25, s25, 3
    s_add_u32 s25, s25, s{S_W}
    s_lshl_b32 s25, s25, 9
    s_add_u32 s24, s24, 8
    s_lshl_b32 s24, s24, 10
    s_add_u32 s24, s24, s25
    s_add_u32 s24, s24, s27
    s_cmp_eq_u32 s{S_W}, 3
    s_cselect_b32 s{S_HH}, {WS_USED}, s24
    s_mul_i32 s24, s{S_W}, {11*1024}
    s_add_u32 s{S_HB}, s24, s27
    s_lshl_b32 s25, s{S_W}, 12
    s_add_u32 s26, s25, s{S_GB}
    s_add_u32 s{S_XD}, s26, {O_X1}
    s_lshl_b32 s25, s{S_W}, 10
    s_add_u32 s26, s25, s{S_GB}
    s_add_u32 s{S_STD}, s26, {O_ST1}
    ''')
S_WO0, S_W10, S_WQ0, S_W20, S_W4K, S_PKL = 72, 73, 74, 75, 76, 77
def const_scalars(a):
    pre_rot(a)
    a.lines(f'''
    s_lshl_b32 s{S_W4K}, s{S_W}, 12
    s_lshl_b32 s24, s{S_J}, 16
    s_lshl_b32 s25, s{S_W}, 14
    s_add_u32 s24, s24, s25
    s_add_u32 s{S_WO0}, s24, {WO_P}
    s_mul_i32 s25, s{S_J}, {11*16384}
    s_mul_i32 s26, s{S_W}, {3*16384}
    s_add_u32 s25, s25, s26
    s_add_u32 s{S_W10}, s25, {W1_P + 3072}
    s_mul_i32 s26, s{S_J}, 81920
    s_add_u32 s26, s26, s{S_W4K}
    s_add_u32 s{S_WQ0}, s26, {WQKV_P}
    s_add_u32 s{S_WQL}, s{S_WQ0}, 65536
    s_mul_i32 s28, s{S_J}, {44*4096}
    s_mul_i32 s29, s{S_W}, {11*4096}
    s_add_u32 s28, s28, s29
    s_add_u32 s{S_W20}, s28, {W2_P + 3072}
    s_add_u32 s{S_W2L}, s{S_W20}, {10*4096 - 3072}
    s_mov_b32 s{S_C}, {f32(2.0**-60)}
    s_mov_b32 s{S_C+1}, {f32(2.0**60)}
    s_mov_b32 s{S_C+2}, {f32(2.0**120)}
    s_mov_b32 s{S_VMASK}, 0xffff
    s_mov_b32 s{S_VMASK+1}, 0xffff
    ''')

def all8():
    return ['s_and_b64 s[24:25], s[80:81], s[82:83]', 's_and_b64 s[26:27], s[84:85], s[86:87]', 's_and_b64 s[24:25], s[24:25], s[26:27]',
            's_or_b64 s[80:81], s[80:81], s[82:83]', 's_or_b64 s[84:85], s[84:85], s[86:87]', 's_or_b64 s[80:81], s[80:81], s[84:85]',
            's_and_b32 s24, s24, s25', 's_or_b32 s25, s80, s81', f's_mov_b32 s26, s{S_NONCE}', f's_mov_b32 s27, s{S_NONCE}',
            's_cmp_eq_u64 s[24:25], s[26:27]']

class Att:
    def __init__(self, a, deferred, L):
        self.a, self.deferred, self.L = a, deferred, L
        self.ktok, self.vtok, self.misc = {}, {}, {}
        self.adv = [f's_add_u32 s{S_IDX}, s{S_IDX}, 4096', f's_and_b32 s{S_IDX}, s{S_IDX}, 0x1ffff',
                    f's_add_u32 s{S_KP}, s{S_IDX}, s{S_KB}', f's_addc_u32 s{S_KP+1}, s{S_KB+7}, 0']
    def kvb(self, i): return (VKV2 if self.L == 0 and i in (2, 3) else VKV) + 12*(i & 1)
    def Kr(self, i): return vr(self.kvb(i), 4)
    def Vr(self, i, u): return vr(self.kvb(i) + 4 + 4*u, 4)
    def ldK(self, i): self.ktok[i] = self.a(f'global_load_dwordx4 {self.Kr(i)}, v{V_L16}, {sr(S_KP,2)}')
    def ldV(self, i):
        a = self.a
        a(f's_mov_b64 exec, {sr(S_VMASK,2)}')
        a(f'global_load_dwordx4 {self.Vr(i,0)}, v7, {sr(S_KP,2)} offset:1024')
        self.vtok[i] = a(f'global_load_dwordx4 {self.Vr(i,1)}, v7, {sr(S_KP,2)} offset:1536')
        a('s_mov_b64 exec, -1')
    def ldKV(self, i):
        if i not in self.ktok: self.ldK(i)
        self.ldV(i)
    def init_regs(self):
        a = self.a
        a.lines(f'''
        s_lshr_b32 s26, s{S_W}, 1
        s_lshl_b32 s25, s26, 11
        s_add_u32 s{S_KB}, s25, s{S_KV}
        s_and_b32 s{S_IDX}, s2, 7
        s_lshl_b32 s{S_IDX}, s{S_IDX}, 14
        s_and_b32 s25, s{S_J}, 3
        s_lshl_b32 s25, s25, 2
        s_add_u32 s25, s25, s{S_W}
        s_lshl_b32 s25, s25, 13
        s_add_u32 s{S_KVT}, s25, s{S_KV}
        s_add_u32 s{S_KB}, s{S_KB}, s4
        s_addc_u32 s{S_KB+7}, s5, 0
        v_bfe_u32 v26, v{V_L16}, 2, 7
        v_lshrrev_b32 v4, 1, v{V_G}
        v_lshlrev_b32 v4, 8, v4
        v_lshl_add_u32 v7, v{V_T}, 4, v4
        v_and_b32 v4, {27*16}, v{V_L16}
        v_cmp_eq_u32 vcc, 256, v4
        v_mov_b32 v4, 0x3f803f80
        v_cndmask_b32 v4, 0, v4, vcc
        ''')
        for b in range(2):
            for i in range(8): a(f'v_mov_b32 v{VKV+12*b+4+i}, v4')
        a(self.adv[2]); a(self.adv[3])
    def xl_pass(self, skip=None):
        a = self.a
        own = skip is None
        skip = skip or f'XP{self.L}_SKIP'
        if own:
            a(f's_cmp_lg_u32 s{S_W}, 1'); a(f's_cbranch_scc1 {skip}')
        a.lines(f'''
        s_cmp_ge_u32 s2, 8
        s_cbranch_scc1 {skip}
        s_lshl_b32 s25, s2, 2
        s_add_u32 s24, s25, {XFL + 1024 + 2048*self.L}
        v_lshlrev_b32 v27, 3, v{V_L16}
        v_mov_b32 v5, s{S_NONCE}
        s_mov_b64 exec, 0xff
        ''')
        a.raw(f'buffer_store_dword v5, v27, {WS}, s24 offen sc1')
        a('s_mov_b64 exec, -1')
        a.raw(f'{skip}:')
    def xl_poll(self):
        a, p = self.a, f'XL{self.L}'
        a.lines(f'''
        s_cmp_lg_u32 s{S_W}, 1
        s_cbranch_scc1 {p}_SKIP
        s_mov_b32 s25, 0
        {p}_POLL:
        ''')
        a.raw(f'buffer_load_dword v27, v26, {WS}, s{S_XLINE} offen sc1')
        a.lines(f'''
        s_add_u32 s25, s25, 1
        s_waitcnt vmcnt(0)
        s_cmp_gt_u32 s25, {POLL_MAX}
        s_cbranch_scc1 {p}_DONE
        v_cmp_ne_u32 vcc, s{S_NONCE}, v27
        s_cbranch_vccnz {p}_POLL
        {p}_DONE:
        ''')
        self.xl_pass(f'{p}_SKIP')
    def first_loads(self):
        self.ldK(0); self.ldV(0)
        for x in self.adv: self.a(x)
        self.ldK(1)
    def more_loads(self):
        if self.L == 0:
            for b in range(2):
                for i in range(8): self.a(f'v_mov_b32 v{VKV2+12*b+4+i}, v{VKV+16}')
            self.ldV(1)
            for t in (2, 3):
                for x in self.adv: self.a(x)
                self.ldK(t); self.ldV(t)
    def q_read(self, lq=LDS_Q):
        a = self.a
        a.lines(f'''
        s_lshr_b32 s26, s{S_W}, 1
        s_and_b32 s27, s{S_W}, 1
        s_lshl_b32 s24, s27, 12
        s_add_u32 s24, s24, {lq}
        s_lshl_b32 s25, s26, 11
        s_xor_b32 s28, s25, 2048
        s_add_u32 s25, s25, s24
        s_add_u32 s28, s28, s24
        v_add_u32 v24, s28, v{V_L16}
        v_add_u32 v25, s25, v{V_L16}
        ''')
        for sl in range(4):
            self.qt = a(f'ds_read_b128 {vr(VQ+4*sl,4)}, v{24 if sl < 2 else 25} offset:{1024*(sl&1)}')
        a.lines(f'''
        s_mul_i32 s29, s{S_W}, 6144
        s_add_u32 s29, s29, {LDS_SCR}
        v_add_u32 v4, s29, v{V_L16}
        v_bfe_u32 v6, v{V_L16}, 2, 5
        ''')
    def check(self, name, load, cmp_fn, sleep=8):
        a, p = self.a, f'{name}{self.L}'
        if name == 'XG':
            a.wait_all(vm=False)
            for x in all8(): a(x)
            a(f's_cbranch_scc0 {p}_SLOW')
        else:
            a.wait(self.misc[name])
            for x in cmp_fn(): a(x)
            a(f's_cbranch_vccnz {p}_SLOW')
        a.raw(f'{p}_OK:')
        def d(b):
            b.raw(f'{p}_SLOW:')
            b('s_mov_b32 s29, 0')
            b.raw(f'{p}_LOOP:')
            b(f's_sleep {sleep}')
            b(load)
            b('s_add_u32 s29, s29, 1')
            b('s_waitcnt vmcnt(0)')
            b(f's_cmp_gt_u32 s29, {POLL_MAX}')
            b(f's_cbranch_scc1 {p}_OK')
            for x in cmp_fn(): b(x)
            b(f's_cbranch_vccnz {p}_LOOP')
            b(f's_branch {p}_OK')
        self.deferred.append(d)
    def groups(self):
        WP = sr(S_WP, 2)
        start = lambda s: [f's_add_u32 s{S_WP}, s4, s{s}', f's_addc_u32 s{S_WP+1}, s5, 0']
        step = lambda n: [f's_add_u32 s{S_WP}, s{S_WP}, {n}', f's_addc_u32 s{S_WP+1}, s{S_WP+1}, 0']
        dma = lambda n: [f'global_load_lds_dwordx4 v{V_L16}, {WP} offset:{1024*i}' for i in range(n)]
        m0wo = f's_lshl_b32 m0, s{S_W4K}, 2'
        assert LDS_WO == 0
        if self.L == 1:
            G = {2: (start(S_WO0) + [m0wo], dma(3)), 3: (step(2048) + ['s_add_u32 m0, m0, 2048'], []),
                 4: (step(1024) + ['s_add_u32 m0, m0, 1024'], dma(1)), 6: (step(1024), [])}
            return G
        g = []
        for R in range(4): g.append(((start(S_WO0) + [m0wo]) if R == 0 else (step(4096) + ['s_add_u32 m0, m0, 4096']), dma(4)))
        for G in range(7):
            g.append((start(S_W10) if G == 0 else step(7168), [f'global_load_dwordx4 {ar(28*G+4*i,4)}, v{V_L16}, {WP} offset:{1024*i-3072}' for i in range(7) if 7*G+i < 48]))
        for G in range(6):
            g.append((start(S_W20) if G == 0 else step(7168), [f'global_load_dwordx4 {w2reg(7*G+i)}, v{V_L16}, {WP} offset:{1024*i-3072}' for i in range(7)]))
        for R in range(4):
            g.append(((start(S_WQ0) + [f's_add_u32 m0, s{S_W4K}, {LDS_WQ}']) if R == 0 else (step(16384) + ['s_add_u32 m0, m0, 16384']), dma(4)))
        W0 = OPT('W0', 10)
        assert W0 + len(g) <= 31
        return {W0 + k: x for k, x in enumerate(g)}
    def loop(self):
        a, L, misc = self.a, self.L, self.misc
        G = self.groups()
        Sr = lambda n: VS0 if (n & 1) == 0 else VS1
        QK = lambda n: f'{M32} {vr(Sr(n),16)}, {self.Kr(n >> 2)}, {vr(VQ+4*(n & 3),4)}, 0'
        def PV(n, u):
            i, q = n >> 2, n & 3
            c = '0' if (i == 0 and u == 0) else vr(VO+16*q, 16)
            return f'{M32} {vr(VO+16*q,16)}, {self.Vr(i,u)}, {vr(VP+4*u,4)}, {c}'
        def scr_w(sl):
            o = VO + 16*sl
            return [f'ds_write_b128 v4, {vr(o,4)} offset:{3072*sl}', f'ds_write_b128 v4, {vr(o+4,4)} offset:{3072*sl+1024}',
                    f'ds_write_b32 v4, v{o+8} offset:{3072*sl+2048}']
        pad = lambda l, k: list(l) + [None]*(k - len(l))
        XG = f'buffer_load_dword v5, v6, {WS}, s{S_XGL} offen sc1'
        PKL = f'buffer_load_dwordx4 v[152:155], v156, {WS}, s27 offen sc1'
        pk_cmp = lambda: [f'v_xor_b32 v152, s{S_NONCE}, v152', f'v_xor_b32 v153, s{S_NONCE}, v153', f'v_xor_b32 v154, s{S_NONCE}, v154',
                          f'v_xor_b32 v155, s{S_NONCE}, v155', 'v_or3_b32 v152, v152, v153, v154', 'v_or_b32 v152, v152, v155', 'v_cmp_ne_u32 vcc, 0, v152']
        a.wait(self.ktok[0], self.qt)
        stamp(a, 'att_go')
        a(QK(0))
        a('s_nop 7')
        N = 128
        periods = list(range(32)) if L == 0 else [0, 1, 2, 3, 4, 5, 30, 31]
        for i in periods:
            if L == 1 and i == 4:
                a('s_mov_b32 s28, 13'); a.raw('.p2align 6'); a.raw('ATT1_LOOP:')
            if L == 1 and i == 30:
                self.vtok[30] = self.vtok[6]
                if not JOINT: self.ktok[31] = self.ktok[7]
            if OPT('ATT_STAMPS') and L == 0 and i in (1, 2, 3, 4, 5, 7, 9, 10, 14, 21): stamp(a, f'a0_p{i}', True)
            if OPT('ATT_STAMPS') and L == 1 and i in (1, 2, 3, 30): stamp(a, f'a1_p{i}', True)
            setup, loads = G.get(i, ([], []))
            setup, loads = pad(setup, 3), pad(loads, 7)
            adv = [None]*4 if (L == 0 and i < 2) else self.adv
            nsetup = pad(G.get(i+1, ([], []))[0], 3)
            for q in range(4):
                n = 4*i + q
                S = Sr(n)
                e = lambda k: a(f'v_exp_f32 v{S+k}, v{S+k}')
                c = lambda k: a(f'v_cvt_pk_bf16_f32 v{VP+k}, v{S+2*k}, v{S+2*k+1}')
                x0, x1, x2 = [], [], []
                if q == 0:
                    x0 += [lambda: a.wait(('vm', a.vm) if (L == 1 and i == 4 and JOINT) else self.vtok[i])]
                    if i + 1 < 32 and i + 1 not in self.vtok: x1.append(lambda: self.ldKV(i+1))
                    x2 += [setup[2]]
                elif q == 1:
                    x0 += [adv[0]]; x1 += loads[:4]; x2 += [adv[1]]
                elif q == 2:
                    x0 += [adv[2]]; x1 += [adv[3]]
                    if i + 1 < 32: x2.append(lambda: a.wait(self.ktok[i+1]))
                else:
                    if i + 2 < 32 and i + 2 not in self.ktok and not JOINT and not (L == 0 and i == 2): x0.append(lambda: self.ldK(i+2))
                    x0 += loads[4:]
                    x1 += [nsetup[0]]; x2 += [nsetup[1]]
                XGC = 11 if (JOINT or L == 0) else 10
                if n == OPT('XGI', XGC - 2): x2.append(f's_buffer_load_dwordx8 s[80:87], {WS}, s{S_XGL}')
                if n == XGC: x2.append(lambda: self.check('XG', XG, lambda: [f'v_cmp_ne_u32 vcc, s{S_NONCE}, v5']))
                if n == XGC + 1 and OPT('KVT', 1):
                    x1 += [f'v_lshlrev_b32 v5, 3, v{V_L16}']
                    x2 += [f'buffer_load_dword v5, v5, {WS}, s{S_KVT} offen']
                if L == 0 and q == 2 and 0 <= i - OPT('SIDEP', 10) < len(self.early): x2.append(self.early[i - OPT('SIDEP', 10)])
                if L == 0:
                    PKP = OPT('PKP', 4)
                    if n == 4*PKP - 1:
                        x1 += [lambda: a.wait(misc['pk'])] + [f'ds_read_b64_tr_b16 {vr(PF+2*k,2)}, v{self.VPT+k}' for k in range(4)]
                        x2 += [f'ds_read_b64_tr_b16 {vr(PF+2*k,2)}, v{self.VPT+k}' for k in range(4, 8)]
                    if i == PKP:
                        def pkst():
                            if q == 0: a.wait_all(vm=False)
                            a('s_and_b32 s24, s101, 15'); a('s_mul_i32 s24, s24, s100'); a('s_add_u32 s24, s24, s95'); a('s_add_u32 s101, s101, 1')
                            misc['pack'] = a(f'buffer_store_dwordx4 {vr(PF+4*q,4)}, v{V_L16}, {WS}, s24 offen sc1')
                        x2.append(pkst)
                    if n == 4*OPT('PKF', 6) + 2:
                        def pkflag():
                            a.wait(misc['pack']); a('s_barrier')
                            a(f's_cmp_lg_u32 s{S_W}, 0'); a('s_cbranch_scc1 PKF_SKIP'); a('s_mov_b64 exec, 1')
                            a.raw(f'buffer_store_dword v157, off, {WS}, s{S_PKL} sc1')
                            a('s_mov_b64 exec, -1'); a.raw('PKF_SKIP:')
                        x2.append(pkflag)
                    W0 = OPT('W0', 10)
                    if n == 4*18 + 2: x2.append(lambda: misc.__setitem__('xcc', xcc_load(a, 159, 158)))
                    if n == 4*20 + 2: x2 += [lambda: a.wait(misc['xcc']), lambda: xcc_eval(a, 159)]
                    if n == 4*(W0-2) + 2:
                        x2 += [f's_cmp_eq_u32 s{S_W}, 1', f's_cselect_b32 s27, 0, {WS_USED}', lambda: misc.__setitem__('PK', a(PKL))]
                    if n == 4*(W0-1) + 2:
                        def pkcheck():
                            a(f's_cmp_lg_u32 s{S_W}, 1'); a('s_cbranch_scc1 PK_SKIP')
                            done = (a.vm_done)
                            self.check('PK', PKL, pk_cmp, sleep=24)
                            a.vm_done = done
                            a.raw('PK_SKIP:'); a('s_barrier')
                        x2.append(pkcheck)
                if L == 0 and OPT('OPT_PT', 1) and n == 4*OPT('PT2', 28) + 1:
                    x0 += [f'v_and_b32 v5, 3, v{V_T}', 'v_lshlrev_b32 v5, 7, v5', f'v_lshl_add_u32 v5, v{V_G}, 14, v5']
                    x2 += [f'buffer_load_dword v5, v5, {WS}, s{S_OST} offen', f'buffer_load_dword v5, off, {WS}, s{S_ST1O}']
                if n == 30*4 + 3: x0.append(f'buffer_load_dwordx4 v[128:131], v{V_L16}, {WS}, s{S_XRES} offen sc1')
                if n == 31*4: x1.append(lambda: misc.__setitem__('xt', a(f'buffer_load_dwordx4 v[132:135], v{V_L16}, {WS}, s{S_XRES} offen offset:1024 sc1')))
                if n == 126: x1 += scr_w(0)[:2]; x2 += scr_w(0)[2:]
                if n == 127: x1 += scr_w(1)[:2]; x2 += scr_w(1)[2:]
                if L == 1 and i == 5 and q == 0: x2.append('s_sub_u32 s28, s28, 1')
                def run(xs):
                    for x in xs:
                        if x is None: continue
                        if callable(x): x()
                        else: a(x)
                if n + 1 < N: a(QK(n+1))
                run(x0)
                e(0); e(1); e(2); e(3); c(0); e(4)
                if n > 0: a(PV(n-1, 1))
                run(x1)
                e(5); c(1); e(6); e(7); c(2); e(8); c(3); e(9); e(10)
                a(PV(n, 0))
                run(x2)
                c(4); e(11); e(12); c(5); e(13); e(14); e(15); c(6); c(7)
            if L == 1 and i == 5:
                a('s_cmp_lg_u32 s28, 0'); a('s_cbranch_scc1 ATT1_LOOP')
        a.wait_all(vm=False)
        a('s_barrier')
        a(PV(N-1, 1))
        return misc

def gen_att_epilogue(a, misc, deferred):
    a.comment('---- pair reduce, range check, normalise, publish O')
    T = 24
    O2, O3 = VO + 32, VO + 48
    a(f'v_xor_b32 v4, {2*6144}, v4' if False else f's_xor_b32 s24, s{S_W}, 2')
    a(f's_mul_i32 s24, s24, 6144')
    a(f's_add_u32 s24, s24, {LDS_SCR}')
    a(f'v_add_u32 v4, s24, v{V_L16}')
    rt = []
    for sl in (0, 1):
        a(f'ds_read_b128 {vr(T+12*sl,4)}, v4 offset:{3072*sl}')
        a(f'ds_read_b128 {vr(T+12*sl+4,4)}, v4 offset:{3072*sl+1024}')
        rt.append(a(f'ds_read_b32 v{T+12*sl+8}, v4 offset:{3072*sl+2048}'))
    a.lines(f'''
    v_and_b32 v4, 1, v{V_G}
    v_lshlrev_b32 v4, 14, v4
    v_add_u32 v4, v4, v7
    ''')
    for sl, o in ((0, O2), (1, O3)):
        a.wait(rt[sl])
        a(f'v_add_f32 v{o+8}, v{o+8}, v{T+12*sl+8}')
        for k in range(4):
            a(f'v_pk_add_f32 {vr(o+2*k,2)}, {vr(o+2*k,2)}, {vr(T+12*sl+2*k,2)}')
    a.lines(f'''
    v_minimum3_f32 v26, v{O2+8}, v{O3+8}, v{O3+8}
    v_maximum3_f32 v27, v{O2+8}, v{O3+8}, v{O3+8}
    v_maximum3_f32 v24, |v{O2}|, |v{O2+1}|, |v{O2+2}|
    v_maximum3_f32 v25, |v{O3}|, |v{O3+1}|, |v{O3+2}|
    v_cmp_le_f32 s[24:25], s{S_C}, v26
    v_cmp_ge_f32 s[26:27], s{S_C+1}, v27
    v_maximum3_f32 v24, |v{O2+3}|, |v{O2+4}|, v24
    v_maximum3_f32 v25, |v{O3+3}|, |v{O3+4}|, v25
    v_maximum3_f32 v24, |v{O2+5}|, |v{O2+6}|, v24
    v_maximum3_f32 v25, |v{O3+5}|, |v{O3+6}|, v25
    v_maximum3_f32 v24, |v{O2+7}|, |v{O3+7}|, v24
    s_and_b64 s[24:25], s[24:25], s[26:27]
    v_maximum3_f32 v24, v24, v25, v25
    v_cmp_ge_f32 vcc, s{S_C+2}, v24
    v_rcp_f32 v{O2+10}, v{O2+8}
    v_rcp_f32 v{O3+10}, v{O3+8}
    s_and_b64 s[24:25], s[24:25], vcc
    s_cmp_eq_u64 s[24:25], -1
    s_cbranch_scc0 FALLBACK
    ATT_NORM:
    ''')
    for sl, o in ((0, O2), (1, O3)):
        for k in range(4):
            a(f'v_pk_mul_f32 {vr(o+2*k,2)}, {vr(o+2*k,2)}, {vr(o+10,2)} op_sel_hi:[1,0]')
        for k in range(4):
            a(f'v_cvt_pk_bf16_f32 v{24+4*sl+k}, v{o+2*k}, v{o+2*k+1}')
        a(f'buffer_store_dwordx4 {vr(24+4*sl,4)}, v4, {WS}, s{S_OST+sl} offen {D_SC}')
    if not D_SC: dup_slow(a, deferred, [f'buffer_store_dwordx4 {vr(24+4*sl,4)}, v4, {WS}, s{S_OST+sl} offen' for sl in range(2)])

def gen_fallback(a):
    a.comment('---- fallback: true-max softmax')
    a.raw('FALLBACK:')
    K, V0, V1, NM = 136, 140, 144, 64
    a.wait_all()
    for i in range(8): a(f'v_mov_b32 v{V0+i}, 0x3f803f80')
    for sl in (2, 3):
        o = VO + 16*sl
        l1 = a.label_name('FB1'); l2 = a.label_name('FB2')
        a(f'v_mov_b32 v56, 0xff800000')
        a(f's_mov_b32 s24, s{S_KV}')
        a(f's_add_u32 s25, s{S_KV}, {KV_SZ}')
        a.raw(f'{l1}:')
        a(f'buffer_load_dwordx4 {vr(K,4)}, v{V_L16}, {WS}, s24 offen')
        a.wait_all()
        a(f'{M32} {vr(VS0,16)}, {vr(K,4)}, {vr(VQ+4*sl,4)}, 0')
        for k in range(8):
            a(f'v_max3_f32 v56, v{VS0+2*k}, v{VS0+2*k+1}, v56')
        a('s_add_u32 s24, s24, 2048')
        a('s_cmp_lt_u32 s24, s25')
        a(f's_cbranch_scc1 {l1}')
        a('v_mov_b32 v57, v56')
        a('v_permlane32_swap_b32 v56, v57')
        a('v_max_f32 v56, v56, v57')
        for k in range(16):
            a(f'v_sub_f32 v{NM+k}, 0, v56')
            a(f'v_mov_b32 v{o+k}, 0')
        a(f's_mov_b32 s24, s{S_KV}')
        a.raw(f'{l2}:')
        a(f'buffer_load_dwordx4 {vr(K,4)}, v{V_L16}, {WS}, s24 offen')
        a(f's_mov_b64 exec, {sr(S_VMASK,2)}')
        a(f'buffer_load_dwordx4 {vr(V0,4)}, v7, {WS}, s24 offen offset:1024')
        a(f'buffer_load_dwordx4 {vr(V1,4)}, v7, {WS}, s24 offen offset:1536')
        a('s_mov_b64 exec, -1')
        a.wait_all()
        a(f'{M32} {vr(VS0,16)}, {vr(K,4)}, {vr(VQ+4*sl,4)}, {vr(NM,16)}')
        for k in range(16): a(f'v_exp_f32 v{VS0+k}, v{VS0+k}')
        for k in range(8): a(f'v_cvt_pk_bf16_f32 v{VP+k}, v{VS0+2*k}, v{VS0+2*k+1}')
        a(f'{M32} {vr(o,16)}, {vr(V0,4)}, {vr(VP,4)}, {vr(o,16)}')
        a(f'{M32} {vr(o,16)}, {vr(V1,4)}, {vr(VP+4,4)}, {vr(o,16)}')
        a('s_add_u32 s24, s24, 2048')
        a('s_cmp_lt_u32 s24, s25')
        a('s_nop 15')
        a(f's_cbranch_scc1 {l2}')
        a('s_nop 15')
        a(f'v_rcp_f32 v{o+10}, v{o+8}')
    a('s_nop 3')
    a('s_branch ATT_NORM')

def gen_p1(a, misc, deferred):
    a.comment('---- P1: output projection + residual')
    B, AW, NW = 32, 64, 15
    a(f'v_mov_b32 v7, s{S_NONCE}')
    a.wait(misc['xt'])
    for i in range(8):
        a(f'v_lshlrev_b32 v{XR+2*i}, 16, v{128+i}')
        a(f'v_and_b32 v{XR+2*i+1}, 0xffff0000, v{128+i}')
    a(f's_add_u32 s24, s{S_GB}, {O_O}')
    a(f'v_add_u32 v136, s24, v{V_L16}')
    st_voff(a, 137)
    a(f's_lshl_b32 s25, s{S_W}, 12')
    a(f's_add_u32 m0, s25, {LDS_WQ + 65536}')
    addr = lambda k: (V_L16, LDS_WO + 1024*k)
    pre = []
    for k in range(NW):
        v, off = addr(k)
        pre.append(a(f'ds_read_b128 {vr(AW+4*k,4)}, v{v} offset:{off}'))
    hop(a, F_O, deferred, 'o', 5)
    late = [f'buffer_load_dwordx4 {w2reg(42)}, v{V_L16}, {WS}, s{S_W2L} offen offset:2048',
            f'buffer_load_dwordx4 {w2reg(43)}, v{V_L16}, {WS}, s{S_W2L} offen offset:3072']
    late += [f'buffer_load_dwordx4 v{V_L16}, {WS}, s{S_WQL} offen offset:{1024*i} lds' for i in range(4)]
    gemm_w(a, B, 136, AW, NW, 4, addr, pre, lambda s, t, A, Bq: [f'{M16} {vr(XR+4*t,4)}, {A}, {Bq}, {vr(XR+4*t,4)}'], late=late, tag='p1')
    stamp(a, 'p1_gemm')
    x_publish(a, XR, 24, 32, S_X1O, S_ST1O, 137, sc=D_SC, deferred=deferred)

def gen_p23(a, deferred):
    a.comment('---- P2: LN + FFN1 + silu')
    B0, B1, BW, NBW, ACC, TMP, PK, RS, ST = 24, 68, 68, 6, (92, 104), 116, 128, 138, 24
    a.lines(f'''
    v_lshrrev_b32 v5, 1, v{V_G}
    v_lshlrev_b32 v5, 8, v5
    v_lshl_add_u32 v5, v{V_T}, 4, v5
    v_and_b32 v4, 1, v{V_G}
    v_lshl_add_u32 v5, v4, 3, v5
    v_lshrrev_b32 v136, 1, v{V_L16}
    v_add_u32 v136, {LDS_ST}, v136
    s_lshl_b32 s28, s{S_W}, 12
    s_lshl_b32 s29, s{S_W}, 10
    s_add_u32 s29, s29, {LDS_ST}
    s_add_u32 m0, s28, {LDS_WO}
    s_mov_b32 s{S_CLN}, s{S_HF}
    s_mov_b32 s{S_CLN+1}, s{S_HH}
    s_lshr_b32 s24, s2, {OPT('WB_SH', 3)}
    s_xor_b32 s25, s{S_W}, 3
    s_or_b32 s24, s24, s25
    s_xor_b32 s25, s{S_L}, 1
    s_or_b32 s{S_CLN+2}, s24, s25
    s_add_u32 s{S_FH}, s{S_FLINE}, {F_H}
    s_add_u32 s{S_FH+1}, s{S_FLINE}, {F_H + 128}
    s_add_u32 s{S_FH+2}, s{S_FLINE}, {F_H + 256}
    s_add_u32 s{S_FH+3}, s{S_FLINE}, {F_H + 384}
    s_mov_b32 s{S_N2}, s{S_NONCE}
    s_mov_b32 s{S_N2+1}, s{S_NONCE}
    s_xor_b32 s{S_HWT}, s{S_L}, 1
    s_or_b32 s{S_HWT}, s{S_HWT}, s{S_SLOW}
    v_mov_b32 v68, 0x3f803f80
    v_mov_b32 v69, 0x3f803f80
    v_mov_b32 v70, 0x3f803f80
    v_mov_b32 v71, 0x3f803f80
    ''')
    CS1, NM = 56, (134, 135, 142, 143)
    def colsum(k0, k1):
        for ks in range(k0, k1):
            for i in range(3):
                a(f'{M16} {vr(CS1+4*i,4)}, {w1reg(i,ks)}, v[68:71], {"0" if ks == 0 else vr(CS1+4*i,4)}')
    CSA = OPT('CSA', 8)
    colsum(0, CSA)
    hop(a, F_X1, deferred, 'x1', 4)
    dma = {}
    xd = lambda i: f'buffer_load_dwordx4 v{V_L16}, {WS}, s{S_XD} offen offset:{1024*i} sc1 lds'
    for i in range(4): a(xd(i))
    a('s_mov_b32 m0, s29')
    a(f's_add_u32 s{S_XD}, s{S_XD}, 16384')
    dma[0] = a(f'buffer_load_dwordx4 v{V_L16}, {WS}, s{S_STD} offen sc1 lds')
    a(f's_add_u32 m0, s28, {LDS_WO + 16384}')
    if OPT('XD_BAR', 1): a('s_barrier')
    for i in range(4): dma[1] = a(xd(i))
    colsum(CSA, 16)
    dq = []
    for nt in (2, 3):
        dq += [f's_add_u32 s{S_XD}, s{S_XD}, 16384', 's_add_u32 m0, m0, 16384'] + [(nt, xd(i)) for i in range(4)]
    cost = lambda s: 8 if s.split()[0] in TRANS else 4
    def epi(nt):
        A = ACC[nt & 1]
        st = [[f'v_mul_f32 v{A+k}, v{A+k}, v{RS+nt}' for k in range(12)],
              [f'v_fma_f32 v{A+k}, -v{CS1+k}, v{NM[nt]}, v{A+k}' for k in range(12)],
              [f'v_exp_f32 v{TMP+k}, -v{A+k}' for k in range(12)],
              [f'v_add_f32 v{TMP+k}, 1.0, v{TMP+k}' for k in range(12)],
              [f'v_rcp_f32 v{TMP+k}, v{TMP+k}' for k in range(12)],
              [f'v_mul_f32 v{A+k}, v{A+k}, v{TMP+k}' for k in range(12)],
              [(f'v_cvt_pk_bf16_f32 v{PK+k//2}, v{A+k-1}, v{A+k}' if k & 1 else None) for k in range(12)]]
        L = []
        for t in range(12 + 2*6):
            for j in (0, 2, 1, 3, 4, 5, 6):
                k = t - 2*j
                if 0 <= k < 12 and st[j][k]: L.append(st[j][k])
        return L
    def epi_pk(nt):
        A = ACC[nt & 1]
        assert nt == 3
        L = [f'v_pk_mul_f32 {vr(A+2*k,2)}, {vr(A+2*k,2)}, {vr(RS+2,2)} op_sel:[0,1] op_sel_hi:[1,1]' for k in range(6)]
        L += [f'v_pk_fma_f32 {vr(A+2*k,2)}, {vr(CS1+2*k,2)}, {vr(NM[2],2)}, {vr(A+2*k,2)} op_sel:[0,1,0] op_sel_hi:[1,1,1] neg_lo:[1,0,0] neg_hi:[1,0,0]' for k in range(6)]
        L += [f'v_exp_f32 v{TMP+k}, -v{A+k}' for k in range(12)]
        L += [f'v_pk_add_f32 {vr(TMP+2*k,2)}, {vr(TMP+2*k,2)}, 1.0 op_sel_hi:[1,0]' for k in range(6)]
        L += [f'v_rcp_f32 v{TMP+k}, v{TMP+k}' for k in range(12)]
        L += [f'v_pk_mul_f32 {vr(A+2*k,2)}, {vr(A+2*k,2)}, {vr(TMP+2*k,2)}' for k in range(6)]
        L += [f'v_cvt_pk_bf16_f32 v{PK+k}, v{A+2*k}, v{A+2*k+1}' for k in range(6)]
        return L
    hst = {}
    def hstore(nt):
        if OPT('X_NOST'): hst[nt] = None; return
        st = [f'buffer_store_dwordx4 {vr(PK,4)}, v{V_L16}, {WS}, s{S_HF} offen', f'buffer_store_dwordx2 {vr(PK+4,2)}, v5, {WS}, s{S_HH} offen']
        if H_SC:
            a(st[0] + ' sc1'); hst[nt] = a(st[1] + ' sc1'); return
        wt = a.label_name('HW'); back = a.label_name('HB')
        a(f's_cmp_lg_u32 s{S_HWT}, 0')
        a(f's_cbranch_scc1 {wt}')
        a(st[0]); hst[nt] = a(st[1])
        a.raw(f'{back}:')
        def d(b):
            b.raw(f'{wt}:')
            for s in st: b(s + ' sc1')
            b(f's_branch {back}')
        deferred.append(d)
    def htouch():
        if not OPT('HTOUCH', 0): return
        a(f'buffer_load_dword v4, v{V_L16}, {WS}, s{S_CLN} offen')
        a(f'buffer_load_dword v4, v5, {WS}, s{S_CLN+1} offen')
        a(f's_add_u32 s{S_CLN}, s{S_CLN}, {44*1024}'); a(f's_add_u32 s{S_CLN+1}, s{S_CLN+1}, {44*1024}')
    def early_wb():
        l = a.label_name('WB')
        a(f's_cmp_lg_u32 s{S_CLN+2}, 0'); a(f's_cbranch_scc1 {l}')
        a.raw('buffer_wbl2 sc1')
        a.raw(f'{l}:')
    hadv = [f's_add_u32 s{S_HF}, s{S_HF}, {44*1024}', f's_add_u32 s{S_HH}, s{S_HH}, {44*1024}']
    ptok = {}
    def hpoll_issue(nt):
        if OPT('X_NOSYNC'): return
        if SPOLL: a(f's_buffer_load_dwordx8 s[80:87], {WS}, s{S_FH + nt}'); return
        ptok[nt] = a(f'buffer_load_dword v4, v6, {WS}, s{S_FLINE} offen offset:{F_H + 128*nt} sc1')
    def hpoll_check(nt):
        if OPT('X_NOSYNC'): return
        slow = a.label_name('HSLOW'); ok = a.label_name('HOK')
        if SPOLL:
            a.wait_all(vm=False)
            a('s_and_b64 s[24:25], s[80:81], s[82:83]'); a('s_and_b64 s[26:27], s[84:85], s[86:87]'); a('s_and_b64 s[24:25], s[24:25], s[26:27]')
            a('s_or_b64 s[80:81], s[80:81], s[82:83]'); a('s_or_b64 s[84:85], s[84:85], s[86:87]'); a('s_or_b64 s[80:81], s[80:81], s[84:85]')
            a('s_and_b32 s24, s24, s25'); a('s_or_b32 s25, s80, s81')
            a(f's_cmp_eq_u64 s[24:25], {sr(S_N2,2)}')
            a(f's_cbranch_scc0 {slow}')
        else:
            a.wait(ptok[nt])
            a(f'v_cmp_ne_u32 vcc, s{S_NONCE}, v4')
            a(f's_cbranch_vccnz {slow}')
        a.raw(f'{ok}:')
        acquire_slow(a, deferred)
        def d(b):
            lp = b.label_name('HLP')
            b.raw(f'{slow}:')
            b('s_mov_b32 s24, 0')
            b.raw(f'{lp}:')
            b(f'buffer_load_dword v4, v6, {WS}, s{S_FLINE} offen offset:{F_H + 128*nt} sc1')
            b('s_add_u32 s24, s24, 1')
            b('s_waitcnt vmcnt(0)')
            b(f's_cmp_gt_u32 s24, {POLL_MAX}')
            b(f's_cbranch_scc1 {ok}')
            b(f'v_cmp_ne_u32 vcc, s{S_NONCE}, v4')
            b(f's_cbranch_vccnz {lp}')
            b(f's_branch {ok}')
        deferred.append(d)
    hb = {nt: [None]*11 for nt in range(4)}
    def hload(nt, s):
        Bb = B0 if (nt & 1) == 0 else B1
        if s and s % 4 == 0: a(f's_add_u32 s{S_HB}, s{S_HB}, 4096')
        hb[nt][s] = a(f'buffer_load_dwordx4 {vr(Bb+4*s,4)}, v{V_L16}, {WS}, s{S_HB} offen offset:{1024*(s%4)} sc1')
        if s == 10: a(f's_add_u32 s{S_HB}, s{S_HB}, {44*1024 - 8192}')
    hlist = lambda nt: [(lambda s=s: hload(nt, s)) for s in range(11)]
    stl = rstd_from(a, ST, RS, LOG2E, pk=False)
    stl += [f'v_mul_f32 v{NM[0]}, v{ST}, v{RS}', f'v_mov_b32 v{RS+2}, v{RS}', f'v_mov_b32 v{NM[2]}, v{NM[0]}',
            f'v_permlane32_swap_b32 v{RS}, v{RS+2}', f'v_permlane32_swap_b32 v{NM[0]}, v{NM[2]}',
            f'v_mov_b32 v{RS+1}, v{RS}', f'v_mov_b32 v{RS+3}, v{RS+2}', f'v_mov_b32 v{NM[1]}, v{NM[0]}', f'v_mov_b32 v{NM[3]}, v{NM[2]}',
            f'v_permlane16_swap_b32 v{RS}, v{RS+1}', f'v_permlane16_swap_b32 v{RS+2}, v{RS+3}',
            f'v_permlane16_swap_b32 v{NM[0]}, v{NM[1]}', f'v_permlane16_swap_b32 v{NM[2]}, v{NM[3]}']
    btok = []
    def bread():
        k = len(btok)
        if k >= 64: return
        btok.append(a(f'ds_read_b128 {vr(BW+4*(k % NBW),4)}, v{V_L16} offset:{LDS_WO + 1024*k}'))
    a.wait(dma[0]); a('s_barrier')
    for _ in range(NBW - 1): bread()
    strd = [f'ds_read_b64 {vr(ST+2*p,2)}, v136 offset:{512*p}' for p in range(8)]
    pend = []
    KB = OPT('KB', 8)
    CR = OPT('CR10', 105) / 10
    a.wait(btok[0])
    for nt in range(4):
        stamp(a, f'f1_nt{nt}')
        A = ACC[nt & 1]
        ex = stl if nt == 0 else epi(nt-1)
        if OPT('X_NOEPI'): ex = []
        sal = list(hadv) if nt >= 2 else []
        for ks in range(16):
            k = nt*16 + ks
            for i in range(3):
                a(f'{M16} {vr(A+4*i,4)}, {w1reg(i,ks)}, {vr(BW+4*(k % NBW),4)}, {"0" if ks == 0 else vr(A+4*i,4)}')
                fill = 0
                if i == 0: bread(); fill += 4
                if i == 1 and sal and ks > 0: a(sal.pop(0))
                if i == 1 and nt == 0 and strd:
                    a(strd.pop(0)); stt = a(strd.pop(0)); fill += 8
                if i == 1 and nt == 0 and ks >= 4 and dq:
                    x = dq.pop(0)
                    if isinstance(x, tuple): dma[x[0]] = a(x[1]); fill += 8
                    else: a(x)
                if i == 1 and ks == KB and nt < 2:
                    a.wait(dma[1] if nt == 0 else dma[3])
                    a('s_barrier'); fill += 8
                if i == 1 and ks == OPT('KBF', 13) and nt >= 2 and not OPT('X_NOSYNC'):
                    a.wait(hst[nt-2]); htouch()
                    a('s_barrier')
                    flag_set(a, F_H + 128*(nt-2), deferred); fill += 8
                if i == 1 and nt == 3:
                    if ks == OPT('H0I', 3): hpoll_issue(0); fill += 8
                    if ks == OPT('H0C', 9): hpoll_check(0); pend = hlist(0)[:8]; fill += 8
                    if ks == OPT('H0C', 9) and OPT('X_NOLD'):
                        late0 = pend; pend = []
                if i == 2 and k + 1 < 64: a.wait(btok[k+1])
                if nt == 3 and pend and i == 2: pend.pop(0)(); fill += 8
                if nt == 3 and pend and i == 1 and ks > 13: pend.pop(0)(); fill += 8
                g = ks*3 + i
                if OPT('WB1', 1) and nt == 1 and g == 1: early_wb()
                if g == 1 and nt >= 2: hstore(nt-2)
                if nt == 0 and g == 18: a.wait(stt)
                if g < 2 or (nt == 0 and ks < 6): continue
                left = 48 - g
                target = (sum(cost(x) for x in ex) + 4*((47 - g)//3)) / left
                while ex and (fill < 8 or fill + cost(ex[0])/2 <= target):
                    fill += cost(ex[0]); a(ex.pop(0))
        for x in pend: x()
        pend = []
        for x in ex: a(x)
        if nt == 3 and not OPT('H2LATE', 0): hstore(2)
    if not OPT('H2LATE', 0):
        if not SPOLL: hpoll_issue(1)
        for x in hadv: a(x)
    stamp(a, 'f1_main_end')
    if OPT('X_NOLD'):
        for x in late0: x()
    ep = epi_pk(3)
    for x in ep[:12]: a(x)
    for s in range(8, 11): hload(0, s)
    for x in ep[12:24]: a(x)
    if OPT('H2LATE', 0):
        hpoll_issue(1); hstore(2)
        for x in hadv: a(x)
    for k, x in enumerate(ep[24:]):
        if SPOLL and k == OPT('P1I', 8): hpoll_issue(1)
        a(x)
    hstore(3)
    AC2 = (112, 128)
    P1C = OPT('P1C', 3)
    F2, P2I, P2C, F3, P3I, P3C = OPT('F2', 4), OPT('P2I', 9), OPT('P2C', 14), OPT('F3', 10), OPT('P3I', 15), OPT('P3C', 20)
    roll = []
    for nt in range(4):
        if not OPT('P1_STAMPS'): stamp(a, f'f2_nt{nt}')
        A = AC2[nt & 1]; Bb = B0 if (nt & 1) == 0 else B1
        wr = []
        if nt > 0:
            P = AC2[(nt-1) & 1]
            wr = [f'ds_write_b128 v5, {vr(P+4*mt,4)} offset:{16384*(nt-1) + 1024*mt}' for mt in range(4)]
            assert F3 < 13
        for s in range(11):
            pos = nt*11 + s
            a.wait(hb[nt][s])
            for mt in range(4):
                a(f'{M16} {vr(A+4*mt,4)}, {w2reg(4*s+mt)}, {vr(Bb+4*s,4)}, {"0" if s == 0 else vr(A+4*mt,4)}')
                if mt == 0:
                    if pos == P1C: hpoll_check(1); roll += [(1, x) for x in range(11)]
                    if pos == P2C: hpoll_check(2); roll += [(2, x) for x in range(11)]
                    if pos == P3C: hpoll_check(3); roll += [(3, x) for x in range(11)]
                    if pos == F2: a.wait(hst[2]); htouch(); a('s_barrier'); flag_set(a, F_H + 128*2, deferred)
                    if pos == F3: a.wait(hst[3]); htouch(); a('s_barrier'); flag_set(a, F_H + 128*3, deferred); a(f'v_add_u32 v5, s28, v{V_L16}')
                free = lambda: roll and (roll[0][0]-2)*11 + roll[0][1] < pos
                behind = lambda: roll and roll[0][0]*11 + roll[0][1] < pos + 11
                if mt == 1 and free(): hload(*roll.pop(0))
                if mt == 3 and free() and behind(): hload(*roll.pop(0))
                if OPT('WB2', 0) and pos == 34 and mt == 1:
                    assert not roll
                    early_wb()
                if mt == 2:
                    if pos == P2I: hpoll_issue(2)
                    elif pos == P3I: hpoll_issue(3)
                    elif s >= 3 and wr: a(wr.pop(0))
        assert not wr
    assert not roll
    stamp(a, 'f2_mfma_end')
    P = AC2[1]
    a(f's_lshl_b32 s24, s{S_W}, 14')
    a(f'v_add_u32 v4, s24, v{V_L16}')
    a(f's_mov_b32 s24, {f32(LN2)}')
    a(f's_mov_b32 s25, {f32(LN2)}')
    for mt in range(4):
        a(f'ds_write_b128 v5, {vr(P+4*mt,4)} offset:{16384*3 + 1024*mt}')
    a.wait_all(vm=False)
    a('s_barrier')
    for t in range(5):
        a(f'buffer_load_dwordx4 {vr(P4_CS[t],4)}, v{V_L16}, {WS}, s{S_CSA + (t>>2)} offen offset:{1024*(t&3)} sc1')
    rt = []
    order = [(sl, mt) for mt in range(4) for sl in range(4)]
    for sl, mt in order:
        rt.append(a(f'ds_read_b128 {vr(24+16*sl+4*mt,4)}, v4 offset:{4096*sl + 1024*mt}'))
    for mt in range(4):
        a.wait(rt[4*mt+3])
        for h in range(2):
            r = lambda sl: vr(24+16*sl+4*mt+2*h, 2)
            a(f'v_pk_add_f32 {r(0)}, {r(0)}, {r(1)}')
            a(f'v_pk_add_f32 {r(2)}, {r(2)}, {r(3)}')
        for h in range(2):
            r = lambda sl: vr(24+16*sl+4*mt+2*h, 2)
            a(f'v_pk_add_f32 {r(0)}, {r(0)}, {r(2)}')
        for h in range(2):
            r = lambda sl: vr(24+16*sl+4*mt+2*h, 2)
            a(f'v_pk_fma_f32 {vr(XR+4*mt+2*h,2)}, {r(0)}, s[24:25], {vr(XR+4*mt+2*h,2)}')

def gen_out(a):
    a.comment('---- final output')
    a.lines(f'''
    s_lshl_b32 s24, s{S_G}, 16
    s_lshl_b32 s25, s{S_W}, 14
    s_add_u32 s24, s24, s25
    s_lshl_b32 s25, s{S_J}, 7
    s_add_u32 s24, s24, s25
    v_lshlrev_b32 v4, 10, v{V_T}
    v_lshrrev_b32 v5, 1, v{V_G}
    v_lshl_add_u32 v4, v5, 4, v4
    v_and_b32 v5, 1, v{V_G}
    v_lshl_add_u32 v4, v5, 5, v4
    ''')
    for p in range(2):
        for i in range(4):
            a(f'v_cvt_pk_bf16_f32 v{24+4*p+i}, v{XR+8*p+2*i}, v{XR+8*p+2*i+1}')
        a(f'v_permlane16_swap_b32 v{24+4*p}, v{24+4*p+2}')
        a(f'v_permlane16_swap_b32 v{24+4*p+1}, v{24+4*p+3}')
        a(f'buffer_store_dwordx4 {vr(24+4*p,4)}, v4, {SB}, s24 offen offset:{64*p} {OUT_SC}')

def gen_phase0(a, deferred, att):
    a.comment('---- phase 0')
    L_WQ, L_X, L_KV, L_CS, L_PK = 0, 65536, 131072, 131072, 147456
    SX, SWQ, SDBG, SKV = sr(80, 4), sr(84, 4), sr(88, 4), sr(92, 4)
    RHO, XB, QB, W1K, XL = 78, 79, 96, 97, 98
    ONES, B, KA, CS, SXR, GR, AW, QA, CQ, AQ, VQT, VPT, XRES, WIN = 28, 32, 112, 116, 120, 124, 184, 208, 224, 104, 228, 233, 244, 160
    RS, NM = 252, 253
    LQ0 = L_KV + 4096
    Ln = V_LANE
    a('s_getpc_b64 s[24:25]')
    a.raw('CPF_HERE:')
    a.lines(f"""
    s_load_dwordx2 s[80:81], s[0:1], 0
    s_load_dwordx4 s[44:47], s[0:1], 16
    s_load_dwordx2 s[84:85], s[0:1], 8
    s_load_dwordx2 s[48:49], s[0:1], 32
    s_load_dwordx4 s[52:55], s[0:1], 48
    s_load_dwordx2 s[88:89], s[0:1], 72
    s_memrealtime s[60:61]
    s_mov_b32 s26, CODE_END-CPF_HERE
    s_mov_b32 s27, 0x20000
    s_lshr_b32 s28, s2, 3
    s_lshl_b32 s28, s28, 2
    s_add_u32 s28, s28, s{S_W}
    s_lshl_b32 s28, s28, 9
    v_lshlrev_b32 v9, 3, v{V_L16}
    s_mov_b64 exec, 15
    buffer_load_dword v159, v9, s[24:27], s28 offen
    s_mov_b64 exec, -1
    s_and_b32 s24, s{S_G}, 3
    s_lshl_b32 s24, s24, 1
    s_add_u32 s24, s24, s{S_J}
    s_lshl_b32 s24, s24, 1
    s_and_b32 s{RHO}, s24, 15
    s_lshl_b32 s{XB}, s{S_G}, 16
    s_lshl_b32 s25, s{S_W}, 14
    s_add_u32 s{XB}, s{XB}, s25
    s_add_u32 s{XL}, s25, {L_X}
    v_lshrrev_b32 v11, 3, v{Ln}
    v_lshlrev_b32 v10, 10, v11
    v_and_b32 v20, 7, v{Ln}
    v_xor_b32 v8, v20, v11
    v_lshl_add_u32 v8, v8, 4, v10
    v_add_u32 v8, s{XB}, v8
    v_add_u32 v242, 7168, v8
    s_lshl_b32 s{XB}, s{RHO}, 6
    s_mov_b32 s82, {2048*1024}
    s_mov_b32 s83, 0x20000
    s_mov_b32 s94, {512*32}
    s_mov_b32 s95, 0x20000
    s_lshl_b32 s{S_W4K}, s{S_W}, 12
    v_bfe_u32 v11, v{Ln}, 1, 2
    v_and_b32 v9, 1, v{V_G}
    s_and_b32 s25, s{S_W}, 1
    s_lshl_b32 s25, s25, 1
    v_or_b32 v9, s25, v9
    v_xor_b32 v11, v11, v9
    v_lshl_add_u32 v9, v11, 5, v10
    v_and_b32 v11, 1, v{Ln}
    v_lshl_add_u32 v9, v11, 4, v9
    s_lshl_b32 s{QB}, s{S_W}, 13
    s_lshl_b32 s25, s{S_J}, 7
    s_add_u32 s{QB}, s{QB}, s25
    v_add_u32 v9, s{QB}, v9
    s_sub_u32 s{QB}, s{RHO}, 1
    s_lshl_b32 s{QB}, s{QB}, 15
    s_lshl_b32 s{W1K}, s{S_W}, 10
    s_mov_b32 s86, {512*1024}
    s_mov_b32 s87, 0x20000
    s_waitcnt lgkmcnt(0)
    """)
    xtok = []
    def xload():
        p = len(xtok)
        a(f's_add_u32 m0, s{XL}, {2048*p}')
        if p: a(f's_add_u32 s{XB}, s{XB}, 128'); a(f's_and_b32 s{XB}, s{XB}, 1023')
        a(f'buffer_load_dwordx4 v8, {SX}, s{XB} offen lds')
        xtok.append(a(f'buffer_load_dwordx4 v242, {SX}, s{XB} offen offset:1024 lds'))
    qtok = []
    def qparts():
        s = len(qtok)
        return [f's_add_u32 m0, s{W1K}, {L_WQ + 4096*s}', f's_add_u32 s{QB}, s{QB}, 32768', f's_and_b32 s{QB}, s{QB}, 0x7ffff',
                lambda: qtok.append(a(f'buffer_load_dwordx4 v9, {SWQ}, s{QB} offen lds'))]
    def qload():
        for x in qparts(): (x() if callable(x) else a(x))
    a.lines(f"""
    s_lshl_b32 s60, s60, 4
    s_or_b32 s60, s60, 8
    s_mov_b32 s90, 256
    s_mov_b32 s91, 0x20000
    s_or_b32 s24, s2, s{S_W}
    s_cmp_lg_u32 s24, 0
    s_cbranch_scc1 P0_NOTAG
    v_mov_b32 v12, s60
    s_mov_b64 exec, 1
    """)
    a.raw(f'buffer_store_dword v12, off, {SDBG}, 0 sc1')
    a('s_mov_b64 exec, -1')
    a.raw('P0_NOTAG:')
    xload()
    for _ in range(OPT('Q_SHARE', 0)): qload()
    a.lines(f"""
    s_bitcmp1_b32 s{S_J}, 0
    s_cselect_b32 s92, s46, s44
    s_cselect_b32 s93, s47, s45
    s_lshl_b32 s24, s{S_W}, 2
    s_add_u32 s24, s24, s{RHO}
    s_add_u32 m0, s{S_W4K}, {L_KV}
    """)
    for i in range(4):
        a('s_and_b32 s25, s24, 15'); a('s_lshl_b32 s25, s25, 10')
        kv = a(f'buffer_load_dwordx4 v{V_L16}, {SKV}, s25 offen lds')
        if i < 3: a('s_add_u32 s24, s24, 1'); a('s_add_u32 m0, m0, 1024')
    for _ in range(OPT('X_FIRST', 2)): xload()
    def touch():
        a(f's_and_b32 s71, s{S_G}, 3'); a('s_lshl_b32 s71, s71, 2'); a(f's_add_u32 s71, s71, s{S_W}'); a('s_lshl_b32 s71, s71, 8')
        a(f's_add_u32 s71, s71, s{S_J}'); a('s_lshl_b32 s71, s71, 7')
        a(f'v_and_b32 v255, 31, v{Ln}'); a('v_lshlrev_b32 v255, 10, v255')
        a(f'buffer_load_dword v255, v255, {SWQ}, s71 offen')
    a(f's_mov_b32 s86, {512*1024}'); a('s_mov_b32 s87, 0x20000')
    a.lines(f"""
    s_lshl_b32 s27, s{S_W}, 15
    s_lshl_b32 s26, s{S_G}, 10
    s_add_u32 s27, s27, s26
    s_add_u32 s27, s27, {FLAGS}
    s_and_b32 s26, s2, 7
    s_lshl_b32 s26, s26, 7
    s_add_u32 s26, s26, {XFL}
    s_cmp_ge_u32 s{S_W}, 2
    s_cselect_b32 s27, s26, s27
    s_cselect_b32 s26, 6, 3
    v_lshlrev_b32 v241, s26, v{V_L16}
    s_mov_b64 exec, 0xff
    s_cselect_b32 exec_lo, 15, exec_lo
    buffer_load_dword v241, v241, {WS}, s27 offen sc1
    s_mov_b64 exec, -1
    """)
    stamp(a, 'p0_issued', True)
    a.lines(f"""
    s_lshl_b32 s56, s2, 2
    s_add_u32 s56, s56, s{S_W}
    s_mov_b32 s58, 3
    s_mov_b32 s57, 1024
    s_mov_b32 s100, 1024
    s_mov_b32 s101, 0
    s_mov_b32 s59, 0x100408
    s_mov_b32 s11, 0x20000
    s_cmp_ge_u32 s56, 352
    s_cbranch_scc1 P0_J1
    s_mov_b32 s8, s54
    s_mov_b32 s9, s55
    s_mov_b32 s10, {1376*1024}
    s_mul_i32 s24, s56, 5958
    s_lshr_b32 s24, s24, 16
    s_mul_i32 s25, s24, 11
    s_sub_u32 s25, s56, s25
    s_lshr_b32 s28, s24, 2
    s_and_b32 s27, s24, 3
    s_lshl_b32 s95, s56, 12
    s_add_u32 s95, s95, {W2_P}
    s_mul_i32 s27, s27, 22
    s_lshr_b32 s26, s25, 2
    s_mul_i32 s26, s26, 11
    s_and_b32 s24, s25, 3
    s_mul_i32 s24, s24, 3
    s_add_u32 s92, s26, s24
    s_add_u32 s93, s92, 1
    s_cmp_eq_u32 s25, 8
    s_cselect_b32 s92, 2, s92
    s_cselect_b32 s93, 5, s93
    s_cmp_eq_u32 s25, 9
    s_cselect_b32 s92, 8, s92
    s_cselect_b32 s93, 13, s93
    s_cmp_eq_u32 s25, 10
    s_cselect_b32 s92, 16, s92
    s_cselect_b32 s93, 19, s93
    s_add_u32 s92, s92, s27
    s_add_u32 s93, s93, s27
    s_cmp_ge_u32 s25, 8
    s_cselect_b32 s59, 0x040810, s59
    s_branch P0_JGO
    P0_J1:
    s_cmp_ge_u32 s56, 704
    s_cbranch_scc1 P0_J2
    s_mov_b32 s8, s52
    s_mov_b32 s9, s53
    s_mov_b32 s10, {512*2752}
    s_mov_b32 s57, 2752
    s_sub_u32 s24, s56, 352
    s_lshr_b32 s28, s24, 4
    s_and_b32 s26, s24, 15
    s_lshl_b32 s95, s28, 16
    s_lshl_b32 s25, s26, 10
    s_add_u32 s95, s95, s25
    s_add_u32 s95, s95, {W1_P}
    s_mov_b32 s100, 16384
    s_lshl_b32 s92, s26, 1
    s_add_u32 s93, s92, 1
    s_branch P0_JGO
    P0_J2:
    s_cmp_ge_u32 s56, 960
    s_cbranch_scc1 P0_J3
    s_sub_u32 s24, s56, 704
    s_and_b32 s27, s24, 127
    s_lshr_b32 s28, s27, 4
    s_lshl_b32 s26, s28, 1
    s_add_u32 s26, s26, s27
    s_and_b32 s26, s26, 15
    s_lshl_b32 s92, s26, 1
    s_add_u32 s93, s92, 1
    s_mov_b32 s10, {512*1024}
    s_lshl_b32 s95, s27, 12
    s_add_u32 s95, s95, {WO_P}
    s_mul_i32 s25, s27, 5120
    s_add_u32 s25, s25, {WQKV_P}
    s_cmp_ge_u32 s24, 128
    s_cselect_b32 s8, s84, s48
    s_cselect_b32 s9, s85, s49
    s_cselect_b32 s95, s25, s95
    s_cselect_b32 s59, s59, 0x080410
    s_branch P0_JGO
    P0_J3:
    s_sub_u32 s24, s2, 240
    s_bitcmp1_b32 s24, 0
    s_cselect_b32 s8, s46, s44
    s_cselect_b32 s9, s47, s45
    s_mul_i32 s95, s24, 81920
    s_add_u32 s95, s95, {WQKV_P + 4096}
    s_cmp_lt_u32 s24, 8
    s_cselect_b32 s10, {512*32}, 0
    s_cselect_b32 s95, s95, {WS_USED}
    s_mov_b32 s58, 1
    s_mov_b32 s57, 32
    s_mov_b32 s100, 5120
    s_lshl_b32 s24, s24, 1
    s_lshl_b32 s101, s{S_W}, 2
    s_sub_u32 s101, s101, s24
    s_lshl_b32 s92, s{S_W}, 3
    s_add_u32 s93, s92, 4
    s_mov_b32 s28, 0
    P0_JGO:
    s_lshl_b32 s24, s57, 4
    s_lshl_b32 s28, s28, 7
    s_mul_i32 s92, s92, s24
    s_add_u32 s92, s92, s28
    s_mul_i32 s93, s93, s24
    s_add_u32 s93, s93, s28
    s_sub_u32 s24, 6, s58
    s_lshl_b32 s94, s57, s24
    v_lshrrev_b32 v10, s58, v{V_LANE}
    v_mul_lo_u32 v10, v10, s57
    s_lshl_b32 s24, 1, s58
    s_sub_u32 s24, s24, 1
    v_and_b32 v11, s24, v{V_LANE}
    v_lshl_add_u32 v10, v11, 4, v10
    s_and_b32 s24, s59, 0xff
    s_bfe_u32 s25, s59, 0x80008
    s_lshr_b32 s59, s59, 16
    v_lshrrev_b32 v12, 1, v{V_G}
    v_mul_lo_u32 v12, v12, s24
    v_and_b32 v13, 1, v{V_G}
    v_mul_lo_u32 v13, v13, s25
    v_add_u32 v12, v12, v13
    v_lshrrev_b32 v13, 2, v{V_T}
    v_add_u32 v12, v12, v13
    s_add_u32 s24, s58, 4
    v_lshlrev_b32 v12, s24, v12
    v_and_b32 v13, 3, v{Ln}
    v_lshl_add_u32 v12, v13, 3, v12
    s_add_u32 s25, s{S_W4K}, {L_PK}
    v_add_u32 v{VPT}, s25, v12
    s_lshl_b32 s59, s59, s24
    v_add_u32 v{VPT+1}, s59, v{VPT}
    s_cmp_eq_u32 s58, 1
    s_cselect_b32 s24, 1024, 32
    """)
    if OPT('TLBW', 0):
        a('s_mov_b64 exec, 1'); a(f'buffer_load_dword v255, off, {SB}, s92'); a('s_mov_b64 exec, -1')
    tk = {}
    def pkload(i):
        def f():
            s = 92 + (i >> 1)
            a(f's_add_u32 m0, s{S_W4K}, {L_PK + 1024*i}')
            if i in (1, 3): a(f's_add_u32 s{s}, s{s}, s94')
            att.misc['pk'] = a(f'buffer_load_dwordx4 v243, {SB}, s{s} offen lds')
        return f
    for i in range(2, 8): a(f'v_add_u32 v{VPT+i}, s24, v{VPT+i-2}')
    for i in range(4): a(f'v_mov_b32 v{ONES+i}, 0x3f803f80')
    a.lines(f"""
    v_lshlrev_b32 v22, 8, v{V_G}
    v_lshl_add_u32 v22, v{V_T}, 3, v22
    v_add_u32 v22, {L_KV}, v22
    v_lshlrev_b32 v21, 7, v{V_T}
    v_add_u32 v21, s{XL}, v21
    v_xor_b32 v24, v{V_G}, v20
    v_xor_b32 v25, 4, v24
    v_lshl_add_u32 v24, v24, 4, v21
    v_lshl_add_u32 v25, v25, 4, v21
    s_lshr_b32 s24, s{RHO}, 1
    s_sub_u32 s24, s{S_J}, s24
    s_and_b32 s24, s24, 7
    s_lshl_b32 s24, s24, 11
    v_add_u32 v21, s24, v21
    v_and_b32 v18, 1, v{V_G}
    v_lshl_add_u32 v21, v18, 3, v21
    v_lshrrev_b32 v18, 1, v{V_G}
    v_xor_b32 v18, v18, v20
    """)
    for mt in range(4):
        a(f'v_xor_b32 v19, {2*mt}, v18'); a(f'v_lshl_add_u32 v{14+mt}, v19, 4, v21')
    a.lines(f"""
    v_lshrrev_b32 v12, 2, v{V_T}
    v_lshl_add_u32 v12, v{V_G}, 3, v12
    v_lshlrev_b32 v12, 7, v12
    v_and_b32 v13, 3, v{Ln}
    v_lshl_add_u32 v12, v13, 3, v12
    v_bfe_u32 v13, v{Ln}, 3, 1
    v_and_b32 v18, 1, v{V_G}
    v_lshl_add_u32 v13, v18, 1, v13
    """)
    a(f'v_xor_b32 v18, s{S_W}, v13'); a(f'v_lshl_add_u32 v{VQT}, v18, 5, v12')
    for k in range(1, 4):
        a(f's_add_u32 s24, s{S_W}, {k}'); a('s_and_b32 s24, s24, 3'); a(f's_sub_u32 s24, s24, s{S_W}'); a('s_lshl_b32 s24, s24, 14')
        a(f'v_add_u32 v{94+2*k}, s24, v24'); a(f'v_add_u32 v{95+2*k}, s24, v25')
    qkv_voffs(a, 12, 13, 18, 19, 21)
    a('s_mov_b32 s3, 0')
    layer_bases(a); const_scalars(a); layer_scalars(a); xl_addrs(a); pre_kvo(a, S_KV)
    a(f's_load_dword s{S_NONCE}, s[88:89], 0')
    att.init_regs()
    a.lines(f"""
    s_mov_b32 s{S_SLOW}, 1
    s_add_u32 s{S_PKL}, s{S_FLAG}, {F_XCC}
    v_lshrrev_b32 v156, 1, v{Ln}
    v_lshlrev_b32 v156, 10, v156
    v_and_b32 v19, 1, v{Ln}
    v_lshl_add_u32 v156, v19, 4, v156
    v_add_u32 v156, {FLAGS + F_XCC}, v156
    v_bfe_u32 v158, v{Ln}, 3, 2
    v_lshlrev_b32 v158, 7, v158
    v_lshl_add_u32 v158, v20, 2, v158
    v_lshlrev_b32 v{VQT+3}, 3, v{V_T}
    v_add_u32 v{VQT+3}, {L_KV}, v{VQT+3}
    s_lshl_b32 s24, s{S_W}, 7
    v_add_u32 v{VQT+4}, s24, v{VQT+3}
    s_lshl_b32 s24, s{S_W}, 11
    s_add_u32 s24, s24, {LQ0}
    v_add_u32 v243, s24, v12
    v_and_b32 v19, 3, v{V_T}
    """)
    QW = (102, 103, VQT+1, VQT+2)
    for k in range(4):
        a(f's_add_u32 s24, s{S_W}, {k}'); a('s_and_b32 s25, s24, 1'); a('s_lshl_b32 s25, s25, 8'); a('s_and_b32 s24, s24, 2'); a('s_lshl_b32 s24, s24, 9')
        a('s_add_u32 s24, s24, s25'); a(f'v_add_u32 v{QW[k]}, s24, v243')
    a('v_mov_b32 v243, v10')
    stamp(a, 'p0_setup', True)
    rest = [xload]*(8 - len(xtok)) + ([touch] if not OPT('Q_SHARE', 0) else [])
    a('s_waitcnt lgkmcnt(0)')
    a(f's_cmp_eq_u32 s{S_NONCE}, 0')
    a('s_cbranch_scc1 TAG_SLOW')
    a.raw('TAG_OK:')
    def d(b):
        b.raw('TAG_SLOW:')
        b('s_mov_b32 s24, 0')
        b.raw('TAG_LOOP:')
        b(f'buffer_load_dword v254, off, {SDBG}, 0 sc1')
        b('s_add_u32 s24, s24, 1')
        b('s_waitcnt vmcnt(0)')
        b(f'v_readfirstlane_b32 s{S_NONCE}, v254')
        b(f's_cmp_gt_u32 s24, {POLL_MAX}')
        b('s_cbranch_scc1 TAG_OK')
        b(f's_cmp_eq_u32 s{S_NONCE}, 0')
        b('s_cbranch_scc1 TAG_LOOP')
        b('s_branch TAG_OK')
    deferred.append(d)
    a.lines(f"""
    s_getreg_b32 s24, hwreg(HW_REG_XCC_ID, 0, 3)
    s_add_u32 s{S_XW}, s{S_NONCE}, s24
    s_lshl_b32 s24, s{S_G}, 7
    s_lshl_b32 s25, s{S_J}, 2
    s_add_u32 s24, s24, s25
    s_add_u32 s90, s24, {XFL + 4096}
    v_mov_b32 v254, s{S_XW}
    v_mov_b32 v157, s{S_NONCE}
    """)
    for x in rest: x()
    a.wait(kv)
    a('s_barrier')
    stamp(a, 'p0_kv', True)
    a(f's_bitcmp1_b32 s{S_J}, 0')
    a('s_cbranch_scc1 P0_S1V')
    state = (a.vm, a.vm_done, a.lg, a.lg_done, list(qtok))
    for var in 'KV':
        if var == 'V':
            a('s_branch P0_S1J'); a.raw('P0_S1V:')
            a.vm, a.vm_done, a.lg, a.lg_done = state[:4]; qtok[:] = state[4]
        at = []
        def kvread():
            s = len(at)
            if s >= 16: return
            a.wait(xtok[s >> 1])
            a(f'ds_read_b128 {vr(B+4*s,4)}, v{24+(s&1)} offset:{2048*(s>>1)}')
            a(f'ds_read_b64_tr_b16 {vr(AW+4*(s&3),2)}, v22 offset:{1024*s}')
            at.append(a(f'ds_read_b64_tr_b16 {vr(AW+4*(s&3)+2,2)}, v22 offset:{1024*s+128}'))
        for _ in range(3): kvread()
        for s in range(16):
            W, X = vr(AW+4*(s&3), 4), vr(B+4*s, 4)
            c = lambda r: '0' if s == 0 else vr(r, 4)
            qp = qparts() if s >= OPT('Q_FROM', 8) and len(qtok) < 16 else None
            if s == 0: a.wait(at[0])
            a(f'{M16} {vr(KA,4)}, {W}, {X}, {c(KA)}' if var == 'K' else f'{M16} {vr(KA,4)}, {X}, {W}, {c(KA)}')
            if qp: a(qp[0])
            kvread()
            a(f'{M16} {vr(CS,4)}, {W}, {vr(ONES,4)}, {c(CS)}' if var == 'K' else f'{M16} {vr(CS,4)}, {vr(ONES,4)}, {W}, {c(CS)}')
            if qp: a(qp[1]); a(qp[2])
            a(f'{M16} {vr(SXR,4)}, {vr(ONES,4)}, {X}, {c(SXR)}')
            if qp: qp[3]()
            a(f'{M16} {vr(GR,4)}, {X}, {X}, {c(GR)}')
            if s < 15: a.wait(at[s+1])
    a.raw('P0_S1J:')
    for mt in range(4): xr = a(f'ds_read_b64 {vr(XRES+2*mt,2)}, v{14+mt}')
    a.lines(f"""
    v_lshrrev_b32 v21, 2, v{V_T}
    v_cmp_eq_u32 s[24:25], v21, v{V_G}
    v_cmp_eq_u32 s[26:27], 1, v19
    v_cmp_eq_u32 s[28:29], 2, v19
    v_cmp_eq_u32 vcc, 3, v19
    v_mul_f32 v{SXR}, {f32(1/512)}, v{SXR}
    v_cndmask_b32 v{GR}, v{GR}, v{GR+1}, s[26:27]
    v_cndmask_b32 v{GR}, v{GR}, v{GR+2}, s[28:29]
    v_cndmask_b32 v{GR}, v{GR}, v{GR+3}, vcc
    v_cndmask_b32 v{GR}, 0, v{GR}, s[24:25]
    """)
    for x in allreduce_g(GR, GR+1): a(x)
    a.lines(f"""
    v_mul_f32 v{GR}, {f32(1/512)}, v{GR}
    v_fma_f32 v{GR}, -v{SXR}, v{SXR}, v{GR}
    v_max_f32 v{GR}, 0, v{GR}
    v_add_f32 v{GR}, {f32(1e-5)}, v{GR}
    v_rsq_f32 v{RS}, v{GR}
    v_mul_f32 v{NM}, v{SXR}, v{RS}
    """)
    last = kv_epilogue(a, 'P0', KA, KA, CS, RS, NM, AW, 12, 13, 18)
    stamp(a, 'p0_s1', True)
    while len(qtok) < OPT('Q_PRE', 10): qload()
    a.wait(xr)
    cs_addr(a, 79, S_GB)
    side = []
    side += [f'buffer_store_dwordx4 {vr(XRES,4)}, v{V_L16}, {WS}, s{S_XRES} offen sc1',
             f'buffer_store_dwordx4 {vr(XRES+4,4)}, v{V_L16}, {WS}, s{S_XRES} offen offset:1024 sc1',
             's_add_u32 s27, s79, 4096', f'buffer_store_dwordx4 v[204:207], v{V_L16}, {WS}, s27 offen sc1',
             f'v_and_b32 v255, 1, v{V_G}', 'v_lshlrev_b32 v255, 14, v255', 'v_add_u32 v255, v255, v7',
             f'buffer_store_dwordx4 {vr(XRES,4)}, v255, {WS}, s{S_OST} offen sc1', f'buffer_store_dwordx4 {vr(XRES,4)}, v255, {WS}, s{S_OST+1} offen sc1',
             f'buffer_store_dword v{XRES}, v242, {WS}, s{S_ST1O} offen sc1']
    a(f'v_mul_f32 v{RS}, {f32(0.25*LOG2E)}, v{RS}')
    a(f'v_mul_f32 v{NM}, {f32(0.25*LOG2E)}, v{NM}')
    FLAG_AT = OPT('FLAG_AT', 8)
    SN = AQ
    rd = []
    XLD = f'buffer_load_dword v27, v26, {WS}, s{S_XLINE} offen sc1'
    def sreads(s):
        if s >= 16: return []
        R = WIN + 16*(s % 3)
        L = []
        if s % 4 == 0:
            def sync():
                a.wait(qtok[s+3], last if s == FLAG_AT else None)
                a('s_barrier')
                if s == 0: a(f'ds_write_b64 v{VQT+4}, {vr(RS,2)}'); a(f'ds_write_b64 v{VQT+4}, {vr(RS,2)} offset:512')
                if s == 8:
                    for nt in range(4): a(f'ds_read_b64 {vr(SN+2*nt,2)}, v{VQT+4} offset:{128*nt}')
                if s == FLAG_AT:
                    a.lines(f"""
                    s_cmp_eq_u32 s{S_W}, 0
                    s_cselect_b32 s24, s{S_XLW}, {WS_USED}
                    s_cmp_eq_u32 s{S_W}, 2
                    s_cselect_b32 s90, s90, {WS_USED}
                    s_mov_b64 exec, 1
                    buffer_store_dword v157, off, {WS}, s24
                    s_mov_b64 exec, -1
                    """)
            L.append(sync)
        def ar_():
            a(f'ds_read_b64_tr_b16 {vr(R,2)}, v{VQT} offset:{L_WQ + 4096*s}')
            a(f'ds_read_b64_tr_b16 {vr(R+2,2)}, v{VQT} offset:{L_WQ + 4096*s + 512}')
        if L: f0 = L.pop(); L.append(lambda: (f0(), ar_()))
        else: L.append(ar_)
        for nt in range(1, 4):
            def br_(nt=nt):
                t = a(f'ds_read_b128 {vr(R+4*nt,4)}, v{94+2*nt+(s&1)} offset:{2048*(s>>1)}')
                if nt == 3: rd.append(t)
            L.append(br_)
        return L
    for s in range(2):
        for x in sreads(s): x()
    a.wait(rd[0])
    for s in range(16):
        R = WIN + 16*(s % 3)
        nx = sreads(s+2)
        for t in range(5):
            if t < 4: a(f'{M16} {vr(QA+4*t,4)}, {vr(R,4)}, {vr(R+4*t,4) if t else vr(B+4*s,4)}, {"0" if s == 0 else vr(QA+4*t,4)}')
            else: a(f'{M16} {vr(CQ,4)}, {vr(R,4)}, {vr(ONES,4)}, {"0" if s == 0 else vr(CQ,4)}')
            if t == 4 and s < 15: a.wait(rd[s+1])
            if nx: nx.pop(0)()
            if t == 1 and len(qtok) < 16: qload()
            if s == OPT('XLI', 13) and t == 1: xlt = a(XLD)
    stamp(a, 'p0_q', True)
    a.wait(xlt)
    a(f'v_cmp_ne_u32 vcc, s{S_NONCE}, v27')
    a('s_cbranch_vccnz XL0_SLOW')
    a.raw('XL0_OK:')
    def d(b):
        b.raw('XL0_SLOW:')
        b('s_mov_b32 s25, 0')
        b.raw('XL0_POLL:')
        b(XLD)
        b('s_add_u32 s25, s25, 1')
        b('s_waitcnt vmcnt(0)')
        b(f's_cmp_gt_u32 s25, {POLL_MAX}')
        b('s_cbranch_scc1 XL0_OK')
        b(f'v_cmp_ne_u32 vcc, s{S_NONCE}, v27')
        b('s_cbranch_vccz XL0_OK')
        b('s_cmp_lt_u32 s25, 16')
        b('s_cbranch_scc1 XL0_POLL')
        b('s_cmp_lg_u32 s25, 16')
        b('s_cbranch_scc1 XL0_NOST')
        b('s_mov_b64 exec, 1')
        b(f'buffer_store_dword v254, off, {WS}, s90 sc1')
        b('s_mov_b64 exec, -1')
        b.raw('XL0_NOST:')
        b('s_sleep 8')
        xcc_load(b, 27, 158)
        b('s_waitcnt vmcnt(0)')
        b('v_and_b32 v27, -8, v27')
        b(f'v_cmp_ne_u32 vcc, s{S_NONCE}, v27')
        b('s_cbranch_vccnz XL0_POLL')
        b('s_branch XL0_OK')
    deferred.append(d)
    stamp(a, 'xl_polled')
    att.first_loads()
    att.xl_pass()
    a('s_load_dwordx2 s[80:81], s[0:1], 64')
    for nt in range(4):
        for h in range(2):
            r = vr(QA+4*nt+2*h, 2)
            a(f'v_pk_mul_f32 {r}, {r}, {vr(SN+2*nt,2)} op_sel_hi:[1,0]')
        for h in range(2):
            r = vr(QA+4*nt+2*h, 2)
            a(f'v_pk_fma_f32 {r}, {vr(CQ+2*h,2)}, {vr(SN+2*nt,2)}, {r} op_sel:[0,1,0] op_sel_hi:[1,1,1] neg_lo:[1,0,0] neg_hi:[1,0,0]')
        a(f'v_cvt_pk_bf16_f32 v{QA+4*nt}, v{QA+4*nt}, v{QA+4*nt+1}'); a(f'v_cvt_pk_bf16_f32 v{QA+4*nt+1}, v{QA+4*nt+2}, v{QA+4*nt+3}')
        a(f'ds_write_b64 v{QW[nt]}, {vr(QA+4*nt,2)}')
    a.wait_all(vm=False)
    a('s_barrier')
    att.q_read(LQ0)
    att.VPT = VPT
    for k in range(4): a(f'v_mov_b32 v{204+k}, v{CS+k}')
    a('v_mov_b32 v242, v26')
    def st0():
        a('s_mov_b64 exec, 1')
        a(f'buffer_store_dword v254, off, {WS}, s90 sc1')
        a('s_mov_b64 exec, -1')
    def fin():
        a.lines(f"""
        s_mov_b32 s{S_CSA}, s79
        s_add_u32 s{S_CSA+1}, s79, 4096
        s_add_u32 s{S_KVO}, s{S_KVO}, {KV_SZ}
        s_mov_b32 s8, s80
        s_mov_b32 s9, s81
        s_mov_b32 s10, {2048*1024}
        s_mov_b32 s11, 0x20000
        """)
    att.more_loads()
    for i in range(4): pkload(i)()
    a(f's_add_u32 s91, s79, s{W1K}')
    fin()
    em = lambda xs: (lambda: [a(x) for x in xs])
    att.early = [st0, em([f'buffer_store_dwordx4 {vr(CQ,4)}, v{V_L16}, {WS}, s91 offen sc1']), em(side[0:1]), em(side[1:2]),
                 em([side[2], f's_cmp_eq_u32 s{S_W}, 0', f's_cselect_b32 s27, s27, {WS_USED}', side[3]]), em(side[4:8]), em(side[8:9]), em(side[9:10])]

def gen_main(a):
    deferred = []
    ids(a, 'MAIN_END')
    if PROF:
        a('s_memrealtime s[70:71]'); a.wait_all(vm=False); a('v_writelane_b32 v0, s70, 31')
    stamp(a, 'start', True)
    att0 = Att(a, deferred, 0)
    gen_phase0(a, deferred, att0)
    misc = att0.loop()
    a.raw('ATT_EPI:')
    join = (a.vm - misc['xt'][1])
    stamp(a, 'att_end')
    gen_att_epilogue(a, misc, deferred)
    stamp(a, 'o_stored')
    gen_p1(a, misc, deferred)
    gen_p23(a, deferred)
    stamp(a, 'f2_end')
    a.lines(f"""
    s_cmp_eq_u32 s{S_L}, 0
    s_cbranch_scc1 NEXT_LAYER
    """)
    gen_out(a)
    stamp_dump(a)
    a.raw('MAIN_END:')
    a('s_endpgm')
    a.raw('NEXT_LAYER:')
    st_voff(a, 137)
    x_publish(a, XR, 24, 120, S_X2O, S_ST2O, 137, sc=D_SC, deferred=deferred)
    pre = gen_p4_pre(a)
    hop(a, F_X2, deferred, 'x2', 5)
    gen_p4(a, pre)
    stamp(a, 'p4_end')
    a(f's_mov_b32 s{S_L}, 1')
    a(f'v_mov_b32 v28, s{S_NONCE}')
    layer_bases(a); xl_addrs(a)
    att1 = Att(a, deferred, 1)
    att1.init_regs()
    a.wait_all()
    a('s_barrier')
    flag_set(a, 0, deferred, sreg=S_XLW, vd=28)
    att1.q_read()
    att1.xl_poll()
    a('s_barrier')
    stamp(a, 'xl_polled')
    att1.first_loads()
    layer_scalars(a)
    m1 = att1.loop()
    assert a.vm - m1['xt'][1] == join
    a('s_branch ATT_EPI')
    gen_fallback(a)
    for d in deferred: d(a)
    a.raw('CODE_END:')

KD = '''.amdhsa_kernel {name}
  .amdhsa_next_free_vgpr {nv}
  .amdhsa_next_free_sgpr 102
  .amdhsa_accum_offset {acc}
  .amdhsa_group_segment_fixed_size 0
  .amdhsa_kernarg_size 88
  .amdhsa_user_sgpr_count 2
  .amdhsa_user_sgpr_kernarg_segment_ptr 1
  .amdhsa_system_sgpr_workgroup_id_x 1
.end_amdhsa_kernel
'''
def build():
    hdr = open('cdna_kernels/' + NAME + '.s.ref').read().split('; Override launch')[0]
    kn = NAME + '_kernel'
    out = hdr + f'; @launch grid=(256,1,1) block=(256,1,1) lds={LDS_TOTAL}\n'
    a = Asm()
    a.raw('.amdgcn_target "amdgcn-amd-amdhsa--gfx950"'); a.raw('.text')
    a.raw(f'.globl {kn}'); a.raw('.p2align 8'); a.raw(f'.type {kn},@function'); a.raw(f'{kn}:')
    gen_main(a)
    out += a.text()
    out += '.section .rodata,"a"\n.p2align 6\n' + KD.format(name=kn, nv=512, acc=256)
    sys.stderr.write(f'instructions: {len(a.ins)}, nop states inserted: {a.nops}\n')
    return out

if __name__ == '__main__':
    dst = sys.argv[1] if len(sys.argv) > 1 else 'cdna_kernels/' + NAME + '.s'
    if len(sys.argv) > 2 and sys.argv[2].startswith('prof'): PROF = True
    if len(sys.argv) > 2 and sys.argv[2] == 'profrt': STAMP_OP = 's_memrealtime'
    open(dst, 'w').write(build())
    if PROF: open(dst + '.stamps', 'w').write(' '.join(STAMPS))
```

```python
import sys, struct, math, os
OPT = lambda k, d=0: int(os.environ.get(k, d))
from dsl import *
from layout import *

def f32(x): return '0x%08x' % struct.unpack('<I', struct.pack('<f', x))[0]
LOG2E = 1.4426950408889634
LN2 = 0.6931471805599453
M16 = 'v_mfma_f32_16x16x32_bf16'
M32 = 'v_mfma_f32_32x32x16_bf16'
NAME = 'interleave_layers__grouped_kv_mqa__dense_activation_silu__prompt'

S_L = 3
SRD_WS = 4
SRD_B = 8
S_G, S_J, S_W = 12, 13, 14
S_GB, S_GBN, S_KV, S_KVN = 15, 16, 17, 18
S_VMASK = 20
S_T = 24
WS = sr(SRD_WS, 4); SB = sr(SRD_B, 4)
V_L16, V_T, V_G = 1, 2, 3

PROF = False
STAMP_OP = 's_memtime'
STAMPS = []
STAMP_SKIP = os.environ.get('STAMP_SKIP', '').split(',')
DIAG = os.environ.get('DIAG', '').split(',') if os.environ.get('DIAG') else None
def stamp(a, name, always=False):
    if not PROF or any(name.startswith(p) for p in STAMP_SKIP if p): return
    if DIAG and name not in [x.split('@')[0] for x in DIAG[:2]]: return
    if name in STAMPS: i = STAMPS.index(name)
    else: i = len(STAMPS); STAMPS.append(name)
    assert i < 31
    a(f'{STAMP_OP} s[70:71]')
    a.wait_all(vm=False)
    if always: a(f'v_writelane_b32 v0, s70, {i}')
    else:
        a(f's_cmp_eq_u32 s{S_L}, 1')
        l = a.label_name('ST'); l2 = a.label_name('ST')
        a(f's_cbranch_scc1 {l}')
        a(f'v_writelane_b32 v0, s70, {i}')
        a(f's_branch {l2}')
        a.raw(f'{l}:')
        a(f'v_writelane_b32 v0, s70, {32+i}')
        a.raw(f'{l2}:')
def stamp_dump(a):
    if not PROF: return
    if DIAG:
        a.raw('DIAG_PLACEHOLDER:')
        return
    a('s_memrealtime s[70:71]')
    a.wait_all()
    a.lines(f'''
    v_writelane_b32 v0, s70, 63
    s_lshl_b32 s24, s2, 2
    s_add_u32 s24, s24, s{S_W}
    s_lshl_b32 s24, s24, 8
    s_add_u32 s24, s24, {PROF_OFF}
    v_lshrrev_b32 v4, 2, v{V_L16}
    buffer_store_dword v0, v4, {WS}, s24 offen
    ''')
    a.wait_all()

V_LANE = 23
def ids(a, end):
    a.lines(f'''
    s_cmp_ge_u32 s2, 256
    s_cbranch_scc1 {end}
    s_load_dwordx2 s[4:5], s[0:1], 80
    v_lshrrev_b32 v4, 6, v0
    s_and_b32 s24, s2, 7
    s_lshr_b32 s25, s2, 3
    v_readfirstlane_b32 s{S_W}, v4
    s_and_b32 s{S_J}, s25, 7
    s_lshr_b32 s25, s25, 3
    s_lshl_b32 s{S_G}, s24, 2
    s_add_u32 s{S_G}, s{S_G}, s25
    v_and_b32 v{V_LANE}, 63, v0
    v_lshlrev_b32 v{V_L16}, 4, v{V_LANE}
    v_and_b32 v{V_T}, 15, v{V_LANE}
    v_lshrrev_b32 v{V_G}, 4, v{V_LANE}
    s_mov_b32 s6, {WS_USED}
    s_mov_b32 s7, 0x20000
    ''')
def layer_bases(a):
    a.lines(f'''
    s_mul_i32 s{S_GB}, s{S_L}, {GB_L}
    s_mul_i32 s24, s{S_G}, {GB_G}
    s_add_u32 s{S_GB}, s{S_GB}, s24
    s_add_u32 s{S_GB}, s{S_GB}, {GB0}
    s_add_u32 s{S_GBN}, s{S_GB}, {GB_L}
    s_mul_i32 s{S_KV}, s{S_L}, {KV_SZ}
    s_add_u32 s{S_KV}, s{S_KV}, {KV0}
    s_add_u32 s{S_KVN}, s{S_KV}, {KV_SZ}
    ''')

def x_publish_addr(a, sx, sst, s_gb, o_x, o_st):
    a.lines(f'''
    s_lshl_b32 s24, s{S_W}, 14
    s_lshl_b32 s25, s{S_J}, 11
    s_add_u32 s24, s24, s25
    s_add_u32 s24, s24, s{s_gb}
    s_add_u32 s{sx}, s24, {o_x}
    s_lshl_b32 s25, s{S_J}, 9
    s_lshl_b32 s26, s{S_W}, 7
    s_add_u32 s25, s25, s26
    s_add_u32 s25, s25, s{s_gb}
    s_add_u32 s{sst}, s25, {o_st}
    ''')
def st_voff(a, v):
    a(f'v_lshrrev_b32 v{v}, 1, v{V_G}')
    a(f'v_lshlrev_b32 v{v}, 2, v{v}')
    a(f'v_lshl_add_u32 v{v}, v{V_T}, 3, v{v}')
def x_publish(a, acc, pk, tmp, sx, sst, vst, have_pk=False, sc='', deferred=None):
    for h in range(2):
        if not have_pk:
            for i in range(4*h, 4*h+4):
                a(f'v_cvt_pk_bf16_f32 v{pk+i}, v{acc+2*i}, v{acc+2*i+1}')
        a(f'buffer_store_dwordx4 {vr(pk+4*h,4)}, v{V_L16}, {WS}, s{sx} offen offset:{1024*h} {sc}')
    s, q = tmp, tmp + 2
    a(f'v_pk_add_f32 {vr(s,2)}, {vr(acc,2)}, {vr(acc+2,2)}')
    a(f'v_pk_mul_f32 {vr(q,2)}, {vr(acc,2)}, {vr(acc,2)}')
    for i in range(1, 8):
        if i > 1: a(f'v_pk_add_f32 {vr(s,2)}, {vr(s,2)}, {vr(acc+2*i,2)}')
        a(f'v_pk_fma_f32 {vr(q,2)}, {vr(acc+2*i,2)}, {vr(acc+2*i,2)}, {vr(q,2)}')
    a(f'v_add_f32 v{s}, v{s}, v{s+1}')
    a(f'v_add_f32 v{q}, v{q}, v{q+1}')
    a(f'v_permlane32_swap_b32 v{s}, v{q}')
    a(f'v_add_f32 v{s}, v{s}, v{q}')
    a(f'v_mov_b32 v{q}, v{s}')
    a(f'v_permlane16_swap_b32 v{s}, v{q}')
    a(f'v_add_f32 v{s}, v{s}, v{q}')
    t = a(f'buffer_store_dword v{s}, v{vst}, {WS}, s{sst} offen {sc}')
    if not sc:
        dup_slow(a, deferred, [f'buffer_store_dwordx4 {vr(pk+4*h,4)}, v{V_L16}, {WS}, s{sx} offen offset:{1024*h}' for h in range(2)]
                 + [f'buffer_store_dword v{s}, v{vst}, {WS}, s{sst} offen'])
    return t

def rstd_from(a, st, out, scale, pk=True):
    L = []
    for i in range(4): L.append(f'v_pk_add_f32 {vr(st+4*i,2)}, {vr(st+4*i,2)}, {vr(st+4*i+2,2)}')
    L.append(f'v_pk_add_f32 {vr(st,2)}, {vr(st,2)}, {vr(st+4,2)}')
    L.append(f'v_pk_add_f32 {vr(st+8,2)}, {vr(st+8,2)}, {vr(st+12,2)}')
    L.append(f'v_pk_add_f32 {vr(st,2)}, {vr(st,2)}, {vr(st+8,2)}')
    if not pk:
        L = []
        for d, s in [(4*i, 4*i+2) for i in range(4)] + [(0, 4), (8, 12), (0, 8)]:
            L += [f'v_add_f32 v{st+d}, v{st+d}, v{st+s}', f'v_add_f32 v{st+d+1}, v{st+d+1}, v{st+s+1}']
    L.append(f'v_mul_f32 v{st}, {f32(1/512)}, v{st}')
    L.append(f'v_mul_f32 v{st+1}, {f32(1/512)}, v{st+1}')
    L.append(f'v_fma_f32 v{st+1}, -v{st}, v{st}, v{st+1}')
    L.append(f'v_max_f32 v{st+1}, 0, v{st+1}')
    L.append(f'v_add_f32 v{st+1}, {f32(1e-5)}, v{st+1}')
    L.append(f'v_rsq_f32 v{out}, v{st+1}')
    if scale != 1.0: L.append(f'v_mul_f32 v{out}, {f32(scale)}, v{out}')
    return L

LDS_WO, LDS_WQ, LDS_SCR, LDS_ST, LDS_Q = 0, 65536, 131072, 147456, 155648
LDS_TOTAL = 163840
VQ, VS0, VS1, VP, VO, VKV = 8, 24, 40, 56, 64, 128
XR = 8
OUT_SC = 'sc1' if OPT('OUT_SC1', 0) else ''
POLL_MAX = 400000
FORCE_SLOW = OPT('FORCE_SLOW', 0)
H_SC = 'sc1' if OPT('H_SC1', 1) else ''
D_SC = 'sc1' if OPT('D_SC1', 0) else ''
NEED_FENCE = False
S_FLAG, S_FLINE, S_SLOW = 19, 22, 23
S_IDX, S_KB = 30, 31
S_KP, S_WP = 32, 34
S_OST = 36
S_C = 40
S_ROT = 44
S_X1O, S_ST1O, S_X2O, S_ST2O = 52, 53, 54, 55
S_HF, S_HH, S_HB, S_XD = 56, 57, 58, 59
S_QO, S_KVO, S_XRES, S_W2L, S_WQL = 60, 62, 63, 64, 65
S_STD, S_STN = 66, 67
S_NONCE, S_XLINE, S_XLW, S_XGL = 43, 39, 68, 69

def w2reg(f):
    if f < 16: return ar(192 + 4*f, 4)
    if f < 42: return vr(152 + 4*(f-16), 4)
    return vr(144 + 4*(f-42), 4)
def w1reg(i, ks): return ar((i*16 + ks)*4, 4)

def flag_set(a, line_off, deferred, sreg=None, vd=7):
    skip = a.label_name('FS'); slow = a.label_name('FSS')
    sreg = sreg or S_FLAG
    a(f's_cmp_lg_u32 s{S_W}, 0')
    a(f's_cbranch_scc1 {skip}')
    a(f's_cmp_lg_u32 s{S_SLOW}, 0')
    a(f's_cbranch_scc1 {slow}')
    a('s_mov_b64 exec, 1')
    a.raw(f'buffer_store_dword v{vd}, off, {WS}, s{sreg} offset:{line_off}')
    a('s_mov_b64 exec, -1')
    a.raw(f'{skip}:')
    def d(b):
        b.raw(f'{slow}:')
        if NEED_FENCE and sreg == S_FLAG:
            b.raw('buffer_wbl2 sc1')
            b('s_waitcnt vmcnt(0)')
        b('s_mov_b64 exec, 1')
        b(f'buffer_store_dword v{vd}, off, {WS}, s{sreg} offset:{line_off} sc1')
        b('s_mov_b64 exec, -1')
        b(f's_branch {skip}')
    deferred.append(d)

def dup_slow(a, deferred, stores):
    slow = a.label_name('DS'); back = a.label_name('DB')
    a(f's_cmp_lg_u32 s{S_SLOW}, 0')
    a(f's_cbranch_scc1 {slow}')
    a.raw(f'{back}:')
    def d(b):
        b.raw(f'{slow}:')
        b('s_waitcnt vmcnt(0)')
        for s in stores: b(s + ' sc1')
        b('s_waitcnt vmcnt(0)')
        b(f's_branch {back}')
    deferred.append(d)

def acquire_slow(a, deferred):
    if not NEED_FENCE: return
    slow = a.label_name('AQS'); back = a.label_name('AQB')
    a(f's_cmp_lg_u32 s{S_SLOW}, 0')
    a(f's_cbranch_scc1 {slow}')
    a.raw(f'{back}:')
    def d(b):
        b.raw(f'{slow}:')
        b.raw('buffer_inv sc1')
        b('s_waitcnt vmcnt(0)')
        b(f's_branch {back}')
    deferred.append(d)

def hop(a, line_off, deferred, tag, vtmp):
    lp = a.label_name('POLL'); dn = a.label_name('POLLD'); sk = a.label_name('POLLS')
    a.wait_all(lg=False)
    stamp(a, tag + '_drained')
    a('s_barrier')
    flag_set(a, line_off, deferred)
    a(f's_cmp_lg_u32 s{S_W}, 1')
    a(f's_cbranch_scc1 {sk}')
    a('s_mov_b32 s25, 0')
    a.raw(f'{lp}:')
    a.raw(f'buffer_load_dword v{vtmp}, v6, {WS}, s{S_FLINE} offen offset:{line_off} sc1')
    a(f's_add_u32 s25, s25, 1')
    a('s_waitcnt vmcnt(0)')
    a(f's_cmp_gt_u32 s25, {POLL_MAX}')
    a(f's_cbranch_scc1 {dn}')
    a(f'v_cmp_ne_u32 vcc, s{S_NONCE}, v{vtmp}')
    a(f's_cbranch_vccnz {lp}')
    a.raw(f'{dn}:')
    acquire_slow(a, deferred)
    a.raw(f'{sk}:')
    a('s_barrier')
    stamp(a, tag + '_polled')

def pre_rot(a):
    a(f's_lshl_b32 s26, s{S_W}, 14')
    a(f's_lshl_b32 s27, s{S_J}, 11')
    for pp in range(8):
        a(f's_add_u32 s{S_ROT+pp}, s27, s26')
        if pp < 7:
            a('s_add_u32 s27, s27, 2048')
            a('s_and_b32 s27, s27, 0x3fff')

NBS = 8
def bfrag_load(B, voff, s):
    return f'buffer_load_dwordx4 {vr(B+4*(s % NBS),4)}, v{voff}, {WS}, s{S_ROT+(s>>1)} offen offset:{1024*(s&1)} sc1'

def gemm_w(a, B, voff, AW, nwin, ntile, lds_addr_fn, pre, mfmas, late=(), tag=None, extras=()):
    LA = OPT('GW_LA', 7)
    assert LA < NBS and nwin >= 2*ntile + 1
    atoks = list(pre)
    btoks = [a(bfrag_load(B, voff, s)) for s in range(LA)]
    late = list(late); ltok = None; extras = list(extras)
    n = 16*ntile
    a.wait(atoks[ntile-1], btoks[0])
    for k in range(n):
        s, t = divmod(k, ntile)
        if tag and OPT('P1_STAMPS') and t == 0 and s in (0, 4, 8, 12): stamp(a, f'{tag}_s{s}')
        for m in mfmas(s, t, vr(AW + 4*(k % nwin), 4), vr(B+4*(s % NBS), 4)): a(m)
        if t == ntile - 1 and s < 15: a.wait(atoks[k + ntile], btoks[s+1])
        if t == 1:
            if len(btoks) < 16: btoks.append(a(bfrag_load(B, voff, len(btoks))))
            elif late: ltok = a(late.pop(0)) or ltok
        if len(atoks) < n:
            kk = len(atoks); v, off = lds_addr_fn(kk)
            atoks.append(a(f'ds_read_b128 {vr(AW + 4*(kk % nwin),4)}, v{v} offset:{off}'))
        if extras and s >= 2 and t != 1: a(extras.pop(0))
    for x in extras: a(x)
    for x in late: ltok = a(x) or ltok
    return ltok

def pre_kvo(a, s_kv=S_KVN):
    a.lines(f'''
    s_lshl_b32 s24, s{S_G}, 1
    s_lshr_b32 s25, s{S_W}, 1
    s_add_u32 s24, s24, s25
    s_lshl_b32 s24, s24, 11
    s_add_u32 s24, s24, s{s_kv}
    s_and_b32 s25, s{S_W}, 1
    s_lshl_b32 s26, s25, 8
    s_lshl_b32 s27, s25, 9
    s_add_u32 s27, s27, 1024
    s_bitcmp1_b32 s{S_J}, 0
    s_cselect_b32 s26, s27, s26
    s_add_u32 s24, s24, s26
    s_lshr_b32 s25, s{S_J}, 1
    s_cmp_eq_u32 s25, s{S_W}
    s_cselect_b32 s{S_KVO}, s24, {WS_USED}
    s_lshr_b32 s24, s{S_W}, 1
    s_lshl_b32 s24, s24, 10
    s_and_b32 s25, s{S_W}, 1
    s_lshl_b32 s25, s25, 8
    s_add_u32 s24, s24, s25
    s_add_u32 s{S_QO}, s24, {LDS_Q}
    ''')
def pre_st_n(a):
    a.lines(f'''
    s_lshl_b32 s24, s{S_W}, 7
    s_add_u32 s24, s24, s{S_GBN}
    s_add_u32 s{S_STN}, s24, {O_STIN}
    ''')
def qkv_voffs(a, vq, vv, vb, t0, t1):
    a.lines(f'''
    v_lshrrev_b32 v{t0}, 1, v{V_G}
    v_and_b32 v{t1}, 1, v{V_G}
    v_lshlrev_b32 v{vq}, 9, v{t0}
    v_lshl_add_u32 v{vq}, v{V_T}, 4, v{vq}
    v_lshl_add_u32 v{vq}, v{t1}, 3, v{vq}
    v_lshlrev_b32 v{vv}, 8, v{t1}
    v_lshl_add_u32 v{vv}, v{V_T}, 4, v{vv}
    v_lshl_add_u32 v{vv}, v{t0}, 3, v{vv}
    v_lshlrev_b32 v{vb}, 4, v{V_G}
    ''')

def cs_addr(a, sd, s_gb):
    a(f's_lshl_b32 s24, s{S_J}, 13')
    a(f's_add_u32 s24, s24, s{s_gb}')
    a(f's_add_u32 s{sd}, s24, {O_Q}')
def kv_epilogue(a, pfx, KA, VA, CS, RS, NM, T, vq, vv, vb):
    a(f's_bitcmp1_b32 s{S_J}, 0')
    a(f's_cbranch_scc1 {pfx}_EV')
    for r in range(4):
        a(f'v_mul_f32 v{KA+r}, v{KA+r}, v{RS}')
        a(f'v_fma_f32 v{KA+r}, -v{CS+r}, v{NM}, v{KA+r}')
    a(f'v_cvt_pk_bf16_f32 v{KA}, v{KA}, v{KA+1}'); a(f'v_cvt_pk_bf16_f32 v{KA+1}, v{KA+2}, v{KA+3}')
    a.raw(f'buffer_store_dwordx2 {vr(KA,2)}, v{vq}, {WS}, s{S_KVO} offen sc1')
    a(f's_branch {pfx}_EJ')
    a.raw(f'{pfx}_EV:')
    for r in range(4):
        a.raw(f'ds_bpermute_b32 v{T+r}, v{vb}, v{RS} offset:{4*r}')
        a.raw(f'ds_bpermute_b32 v{T+4+r}, v{vb}, v{NM} offset:{4*r}')
    a('s_waitcnt lgkmcnt(0)')
    for r in range(4):
        a(f'v_mul_f32 v{VA+r}, v{VA+r}, v{T+r}')
        a(f'v_fma_f32 v{VA+r}, -v{CS}, v{T+4+r}, v{VA+r}')
    a(f'v_cvt_pk_bf16_f32 v{VA}, v{VA}, v{VA+1}'); a(f'v_cvt_pk_bf16_f32 v{VA+1}, v{VA+2}, v{VA+3}')
    t = a(f'buffer_store_dwordx2 {vr(VA,2)}, v{vv}, {WS}, s{S_KVO} offen sc1')
    a.raw(f'{pfx}_EJ:')
    return t

P4_ACC, P4_B, P4_AW, P4_NW, P4_ST, P4_RS = 8, 32, 64, 14, 120, 136
P4_CS = (124, 128, 132, 144, 148)
def p4_addr(k):
    s, t = divmod(k, 5)
    off = s*5120 + t*1024
    return (140, off) if s < 8 else (141, off - 40960)
def gen_p4_pre(a):
    a.lines(f'''
    v_add_u32 v140, {LDS_WQ}, v{V_L16}
    v_add_u32 v141, {LDS_WQ + 40960}, v{V_L16}
    v_lshlrev_b32 v142, 3, v{V_T}
    v_lshl_add_u32 v142, v{V_G}, 10, v142
    v_add_u32 v143, s{S_GBN}, v{V_L16}
    ''')
    pre = []
    for k in range(P4_NW):
        v, off = p4_addr(k)
        pre.append(a(f'ds_read_b128 {vr(P4_AW+4*k,4)}, v{v} offset:{off}'))
    return pre
def allreduce_g(r, t):
    return [f'v_mov_b32 v{t}, v{r}', f'v_permlane32_swap_b32 v{r}, v{t}', f'v_add_f32 v{r}, v{r}, v{t}',
            f'v_mov_b32 v{t}, v{r}', f'v_permlane16_swap_b32 v{r}, v{t}', f'v_add_f32 v{r}, v{r}, v{t}']
def gen_p4(a, pre):
    ACC, B, AW, NW, ST, RS = P4_ACC, P4_B, P4_AW, P4_NW, P4_ST, P4_RS
    KA, VA, NM = 24, 28, P4_RS + 1
    assert O_XIN == 0
    for p in range(2):
        a(f'buffer_load_dwordx2 {vr(ST+2*p,2)}, v142, {WS}, s{S_STN} offen offset:{512*p} sc1')
    ex = [f'v_add_f32 v{ST}, v{ST}, v{ST+2}', f'v_add_f32 v{ST+1}, v{ST+1}, v{ST+3}']
    ex += [x for pr in zip(allreduce_g(ST, ST+2), allreduce_g(ST+1, ST+3)) for x in pr]
    ex += rstd_from(a, ST, RS, 1.0)[7:]
    ex += [f'v_lshrrev_b32 v{ST+2}, 1, v{V_G}', f'v_mul_f32 v{NM}, v{ST}, v{RS}', f'v_and_b32 v{ST+3}, 1, v{V_G}',
           f'v_mul_f32 v{RS+2}, {f32(0.25*LOG2E)}, v{RS}', f'v_mul_f32 v{RS+3}, {f32(0.25*LOG2E)}, v{NM}',
           f'v_lshlrev_b32 v5, 9, v{ST+2}', f'v_lshl_add_u32 v5, v{V_T}, 4, v5', f'v_lshl_add_u32 v5, v{ST+3}, 3, v5',
           f'v_lshlrev_b32 v142, 8, v{ST+3}', f'v_lshl_add_u32 v142, v{V_T}, 4, v142', f'v_lshl_add_u32 v142, v{ST+2}, 3, v142',
           f'v_lshlrev_b32 v4, 4, v{V_G}']
    a(f's_bitcmp1_b32 s{S_J}, 0')
    a('s_cbranch_scc1 P4_GV')
    state = (a.vm, a.vm_done, a.lg, a.lg_done)
    for var in 'KV':
        if var == 'V':
            a('s_branch P4_GJ'); a.raw('P4_GV:')
            a.vm, a.vm_done, a.lg, a.lg_done = state
        def mf(s, t, A, Bq):
            if t < 4: return [f'{M16} {vr(ACC+4*t,4)}, {A}, {Bq}, {"0" if s == 0 else vr(ACC+4*t,4)}']
            if var == 'V': A, Bq = Bq, A
            return [f'{M16} {vr(KA,4)}, {A}, {Bq}, {"0" if s == 0 else vr(KA,4)}']
        gemm_w(a, B, 143, AW, NW, 5, p4_addr, pre, mf, extras=ex)
    a.raw('P4_GJ:')
    stamp(a, 'p4_gemm')
    a('s_nop 5')
    kv_epilogue(a, 'P4', KA, KA, P4_CS[4], RS, NM, AW, 5, 142, 4)
    a(f'v_add_u32 v5, s{S_QO}, v5')
    for mt in range(4):
        r = ACC + 4*mt
        a(f'v_pk_mul_f32 {vr(r,2)}, {vr(r,2)}, {vr(RS+2,2)} op_sel_hi:[1,0]')
        a(f'v_pk_mul_f32 {vr(r+2,2)}, {vr(r+2,2)}, {vr(RS+2,2)} op_sel_hi:[1,0]')
        for h in range(2):
            a(f'v_pk_fma_f32 {vr(r+2*h,2)}, {vr(P4_CS[mt]+2*h,2)}, {vr(RS+2,2)}, {vr(r+2*h,2)} op_sel:[0,1,0] op_sel_hi:[1,1,1] neg_lo:[1,0,0] neg_hi:[1,0,0]')
        a(f'v_cvt_pk_bf16_f32 v{r}, v{r}, v{r+1}')
        a(f'v_cvt_pk_bf16_f32 v{r+1}, v{r+2}, v{r+3}')
        a(f'ds_write_b64 v5, {vr(r,2)} offset:{2048*mt}')

S_XW = 61
JOINT = OPT('JOINT', 0)
S_HWT = 98
S_CSA = 96
S_CLN = 92
SPOLL = OPT('SPOLL', 1)
S_FH, S_N2 = 88, 100
VKV2, PF = 160, 184
S_KVT = 99
def xl_addrs(a):
    a.lines(f'''
    s_and_b32 s24, s2, 7
    s_lshl_b32 s24, s24, 7
    s_lshl_b32 s25, s{S_L}, 11
    s_add_u32 s24, s24, s25
    s_add_u32 s{S_XLINE}, s24, {XFL}
    s_add_u32 s{S_XGL}, s{S_XLINE}, 1024
    s_lshr_b32 s25, s2, 3
    s_lshl_b32 s25, s25, 2
    s_add_u32 s{S_XLW}, s{S_XLINE}, s25
    ''')
def xcc_load(a, vdst, vaddr):
    a('s_and_b32 s24, s2, 7')
    a('s_lshl_b32 s24, s24, 9')
    a(f's_add_u32 s24, s24, {XFL + 4096}')
    return a(f'buffer_load_dword v{vdst}, v{vaddr}, {WS}, s24 offen sc1')
def xcc_eval(a, v):
    a(f'v_cmp_ne_u32 vcc, s{S_XW}, v{v}')
    a('s_cmp_lg_u64 vcc, 0')
    a(f's_cselect_b32 s{S_SLOW}, 1, {FORCE_SLOW}')

def layer_scalars(a):
    a.lines(f'''
    s_lshl_b32 s24, s{S_L}, 15
    s_lshl_b32 s29, s{S_G}, 10
    s_add_u32 s24, s24, s29
    s_add_u32 s{S_FLINE}, s24, {FLAGS}
    s_lshl_b32 s29, s{S_J}, 2
    s_add_u32 s{S_FLAG}, s{S_FLINE}, s29
    ''')
    pre_st_n(a)
    x_publish_addr(a, S_X1O, S_ST1O, S_GB, O_X1, O_ST1)
    x_publish_addr(a, S_X2O, S_ST2O, S_GBN, O_XIN, O_STIN)
    a.lines(f'''
    s_sub_u32 s{S_XRES}, s{S_X1O}, {O_X1 - O_XIN}
    s_lshl_b32 s24, s{S_J}, 1
    s_and_b32 s25, s{S_W}, 1
    s_add_u32 s24, s24, s25
    s_lshl_b32 s24, s24, 10
    s_lshr_b32 s25, s{S_W}, 1
    s_lshl_b32 s25, s25, 9
    s_add_u32 s24, s24, s25
    s_add_u32 s24, s24, s{S_GB}
    s_add_u32 s{S_OST}, s24, {O_O}
    s_add_u32 s{S_OST+1}, s{S_OST}, 32768
    s_lshr_b32 s24, s{S_J}, 1
    s_mul_i32 s24, s24, 11
    s_and_b32 s25, s{S_J}, 1
    s_lshl_b32 s26, s25, 2
    s_add_u32 s26, s26, s{S_W}
    s_add_u32 s26, s26, s24
    s_lshl_b32 s26, s26, 10
    s_add_u32 s27, s{S_GB}, {O_H}
    s_add_u32 s{S_HF}, s26, s27
    s_mul_i32 s25, s25, 3
    s_add_u32 s25, s25, s{S_W}
    s_lshl_b32 s25, s25, 9
    s_add_u32 s24, s24, 8
    s_lshl_b32 s24, s24, 10
    s_add_u32 s24, s24, s25
    s_add_u32 s24, s24, s27
    s_cmp_eq_u32 s{S_W}, 3
    s_cselect_b32 s{S_HH}, {WS_USED}, s24
    s_mul_i32 s24, s{S_W}, {11*1024}
    s_add_u32 s{S_HB}, s24, s27
    s_lshl_b32 s25, s{S_W}, 12
    s_add_u32 s26, s25, s{S_GB}
    s_add_u32 s{S_XD}, s26, {O_X1}
    s_lshl_b32 s25, s{S_W}, 10
    s_add_u32 s26, s25, s{S_GB}
    s_add_u32 s{S_STD}, s26, {O_ST1}
    ''')
S_WO0, S_W10, S_WQ0, S_W20, S_W4K, S_PKL = 72, 73, 74, 75, 76, 77
def const_scalars(a):
    pre_rot(a)
    a.lines(f'''
    s_lshl_b32 s{S_W4K}, s{S_W}, 12
    s_lshl_b32 s24, s{S_J}, 16
    s_lshl_b32 s25, s{S_W}, 14
    s_add_u32 s24, s24, s25
    s_add_u32 s{S_WO0}, s24, {WO_P}
    s_mul_i32 s25, s{S_J}, {11*16384}
    s_mul_i32 s26, s{S_W}, {3*16384}
    s_add_u32 s25, s25, s26
    s_add_u32 s{S_W10}, s25, {W1_P + 3072}
    s_mul_i32 s26, s{S_J}, 81920
    s_add_u32 s26, s26, s{S_W4K}
    s_add_u32 s{S_WQ0}, s26, {WQKV_P}
    s_add_u32 s{S_WQL}, s{S_WQ0}, 65536
    s_mul_i32 s28, s{S_J}, {44*4096}
    s_mul_i32 s29, s{S_W}, {11*4096}
    s_add_u32 s28, s28, s29
    s_add_u32 s{S_W20}, s28, {W2_P + 3072}
    s_add_u32 s{S_W2L}, s{S_W20}, {10*4096 - 3072}
    s_mov_b32 s{S_C}, {f32(2.0**-60)}
    s_mov_b32 s{S_C+1}, {f32(2.0**60)}
    s_mov_b32 s{S_C+2}, {f32(2.0**120)}
    s_mov_b32 s{S_VMASK}, 0xffff
    s_mov_b32 s{S_VMASK+1}, 0xffff
    ''')

def all8():
    return ['s_and_b64 s[24:25], s[80:81], s[82:83]', 's_and_b64 s[26:27], s[84:85], s[86:87]', 's_and_b64 s[24:25], s[24:25], s[26:27]',
            's_or_b64 s[80:81], s[80:81], s[82:83]', 's_or_b64 s[84:85], s[84:85], s[86:87]', 's_or_b64 s[80:81], s[80:81], s[84:85]',
            's_and_b32 s24, s24, s25', 's_or_b32 s25, s80, s81', f's_mov_b32 s26, s{S_NONCE}', f's_mov_b32 s27, s{S_NONCE}',
            's_cmp_eq_u64 s[24:25], s[26:27]']

class Att:
    def __init__(self, a, deferred, L):
        self.a, self.deferred, self.L = a, deferred, L
        self.ktok, self.vtok, self.misc = {}, {}, {}
        self.adv = [f's_add_u32 s{S_IDX}, s{S_IDX}, 4096', f's_and_b32 s{S_IDX}, s{S_IDX}, 0x1ffff',
                    f's_add_u32 s{S_KP}, s{S_IDX}, s{S_KB}', f's_addc_u32 s{S_KP+1}, s{S_KB+7}, 0']
    def kvb(self, i): return (VKV2 if self.L == 0 and i in (2, 3) else VKV) + 12*(i & 1)
    def Kr(self, i): return vr(self.kvb(i), 4)
    def Vr(self, i, u): return vr(self.kvb(i) + 4 + 4*u, 4)
    def ldK(self, i): self.ktok[i] = self.a(f'global_load_dwordx4 {self.Kr(i)}, v{V_L16}, {sr(S_KP,2)}')
    def ldV(self, i):
        a = self.a
        a(f's_mov_b64 exec, {sr(S_VMASK,2)}')
        a(f'global_load_dwordx4 {self.Vr(i,0)}, v7, {sr(S_KP,2)} offset:1024')
        self.vtok[i] = a(f'global_load_dwordx4 {self.Vr(i,1)}, v7, {sr(S_KP,2)} offset:1536')
        a('s_mov_b64 exec, -1')
    def ldKV(self, i):
        if i not in self.ktok: self.ldK(i)
        self.ldV(i)
    def init_regs(self):
        a = self.a
        a.lines(f'''
        s_lshr_b32 s26, s{S_W}, 1
        s_lshl_b32 s25, s26, 11
        s_add_u32 s{S_KB}, s25, s{S_KV}
        s_and_b32 s{S_IDX}, s2, 7
        s_lshl_b32 s{S_IDX}, s{S_IDX}, 14
        s_and_b32 s25, s{S_J}, 3
        s_lshl_b32 s25, s25, 2
        s_add_u32 s25, s25, s{S_W}
        s_lshl_b32 s25, s25, 13
        s_add_u32 s{S_KVT}, s25, s{S_KV}
        s_add_u32 s{S_KB}, s{S_KB}, s4
        s_addc_u32 s{S_KB+7}, s5, 0
        v_bfe_u32 v26, v{V_L16}, 2, 7
        v_lshrrev_b32 v4, 1, v{V_G}
        v_lshlrev_b32 v4, 8, v4
        v_lshl_add_u32 v7, v{V_T}, 4, v4
        v_and_b32 v4, {27*16}, v{V_L16}
        v_cmp_eq_u32 vcc, 256, v4
        v_mov_b32 v4, 0x3f803f80
        v_cndmask_b32 v4, 0, v4, vcc
        ''')
        for b in range(2):
            for i in range(8): a(f'v_mov_b32 v{VKV+12*b+4+i}, v4')
        a(self.adv[2]); a(self.adv[3])
    def xl_pass(self, skip=None):
        a = self.a
        own = skip is None
        skip = skip or f'XP{self.L}_SKIP'
        if own:
            a(f's_cmp_lg_u32 s{S_W}, 1'); a(f's_cbranch_scc1 {skip}')
        a.lines(f'''
        s_cmp_ge_u32 s2, 8
        s_cbranch_scc1 {skip}
        s_lshl_b32 s25, s2, 2
        s_add_u32 s24, s25, {XFL + 1024 + 2048*self.L}
        v_lshlrev_b32 v27, 3, v{V_L16}
        v_mov_b32 v5, s{S_NONCE}
        s_mov_b64 exec, 0xff
        ''')
        a.raw(f'buffer_store_dword v5, v27, {WS}, s24 offen sc1')
        a('s_mov_b64 exec, -1')
        a.raw(f'{skip}:')
    def xl_poll(self):
        a, p = self.a, f'XL{self.L}'
        a.lines(f'''
        s_cmp_lg_u32 s{S_W}, 1
        s_cbranch_scc1 {p}_SKIP
        s_mov_b32 s25, 0
        {p}_POLL:
        ''')
        a.raw(f'buffer_load_dword v27, v26, {WS}, s{S_XLINE} offen sc1')
        a.lines(f'''
        s_add_u32 s25, s25, 1
        s_waitcnt vmcnt(0)
        s_cmp_gt_u32 s25, {POLL_MAX}
        s_cbranch_scc1 {p}_DONE
        v_cmp_ne_u32 vcc, s{S_NONCE}, v27
        s_cbranch_vccnz {p}_POLL
        {p}_DONE:
        ''')
        self.xl_pass(f'{p}_SKIP')
    def first_loads(self):
        self.ldK(0); self.ldV(0)
        for x in self.adv: self.a(x)
        self.ldK(1)
    def more_loads(self):
        if self.L == 0:
            for b in range(2):
                for i in range(8): self.a(f'v_mov_b32 v{VKV2+12*b+4+i}, v{VKV+16}')
            self.ldV(1)
            for t in (2, 3):
                for x in self.adv: self.a(x)
                self.ldK(t); self.ldV(t)
    def q_read(self, lq=LDS_Q):
        a = self.a
        a.lines(f'''
        s_lshr_b32 s26, s{S_W}, 1
        s_and_b32 s27, s{S_W}, 1
        s_lshl_b32 s24, s27, 12
        s_add_u32 s24, s24, {lq}
        s_lshl_b32 s25, s26, 11
        s_xor_b32 s28, s25, 2048
        s_add_u32 s25, s25, s24
        s_add_u32 s28, s28, s24
        v_add_u32 v24, s28, v{V_L16}
        v_add_u32 v25, s25, v{V_L16}
        ''')
        for sl in range(4):
            self.qt = a(f'ds_read_b128 {vr(VQ+4*sl,4)}, v{24 if sl < 2 else 25} offset:{1024*(sl&1)}')
        a.lines(f'''
        s_mul_i32 s29, s{S_W}, 6144
        s_add_u32 s29, s29, {LDS_SCR}
        v_add_u32 v4, s29, v{V_L16}
        v_bfe_u32 v6, v{V_L16}, 2, 5
        ''')
    def check(self, name, load, cmp_fn, sleep=8):
        a, p = self.a, f'{name}{self.L}'
        if name == 'XG':
            a.wait_all(vm=False)
            for x in all8(): a(x)
            a(f's_cbranch_scc0 {p}_SLOW')
        else:
            a.wait(self.misc[name])
            for x in cmp_fn(): a(x)
            a(f's_cbranch_vccnz {p}_SLOW')
        a.raw(f'{p}_OK:')
        def d(b):
            b.raw(f'{p}_SLOW:')
            b('s_mov_b32 s29, 0')
            b.raw(f'{p}_LOOP:')
            b(f's_sleep {sleep}')
            b(load)
            b('s_add_u32 s29, s29, 1')
            b('s_waitcnt vmcnt(0)')
            b(f's_cmp_gt_u32 s29, {POLL_MAX}')
            b(f's_cbranch_scc1 {p}_OK')
            for x in cmp_fn(): b(x)
            b(f's_cbranch_vccnz {p}_LOOP')
            b(f's_branch {p}_OK')
        self.deferred.append(d)
    def groups(self):
        WP = sr(S_WP, 2)
        start = lambda s: [f's_add_u32 s{S_WP}, s4, s{s}', f's_addc_u32 s{S_WP+1}, s5, 0']
        step = lambda n: [f's_add_u32 s{S_WP}, s{S_WP}, {n}', f's_addc_u32 s{S_WP+1}, s{S_WP+1}, 0']
        dma = lambda n: [f'global_load_lds_dwordx4 v{V_L16}, {WP} offset:{1024*i}' for i in range(n)]
        m0wo = f's_lshl_b32 m0, s{S_W4K}, 2'
        assert LDS_WO == 0
        if self.L == 1:
            G = {2: (start(S_WO0) + [m0wo], dma(3)), 3: (step(2048) + ['s_add_u32 m0, m0, 2048'], []),
                 4: (step(1024) + ['s_add_u32 m0, m0, 1024'], dma(1)), 6: (step(1024), [])}
            return G
        g = []
        for R in range(4): g.append(((start(S_WO0) + [m0wo]) if R == 0 else (step(4096) + ['s_add_u32 m0, m0, 4096']), dma(4)))
        for G in range(7):
            g.append((start(S_W10) if G == 0 else step(7168), [f'global_load_dwordx4 {ar(28*G+4*i,4)}, v{V_L16}, {WP} offset:{1024*i-3072}' for i in range(7) if 7*G+i < 48]))
        for G in range(6):
            g.append((start(S_W20) if G == 0 else step(7168), [f'global_load_dwordx4 {w2reg(7*G+i)}, v{V_L16}, {WP} offset:{1024*i-3072}' for i in range(7)]))
        for R in range(4):
            g.append(((start(S_WQ0) + [f's_add_u32 m0, s{S_W4K}, {LDS_WQ}']) if R == 0 else (step(16384) + ['s_add_u32 m0, m0, 16384']), dma(4)))
        W0 = OPT('W0', 10)
        assert W0 + len(g) <= 31
        return {W0 + k: x for k, x in enumerate(g)}
    def loop(self):
        a, L, misc = self.a, self.L, self.misc
        G = self.groups()
        Sr = lambda n: VS0 if (n & 1) == 0 else VS1
        QK = lambda n: f'{M32} {vr(Sr(n),16)}, {self.Kr(n >> 2)}, {vr(VQ+4*(n & 3),4)}, 0'
        def PV(n, u):
            i, q = n >> 2, n & 3
            c = '0' if (i == 0 and u == 0) else vr(VO+16*q, 16)
            return f'{M32} {vr(VO+16*q,16)}, {self.Vr(i,u)}, {vr(VP+4*u,4)}, {c}'
        def scr_w(sl):
            o = VO + 16*sl
            return [f'ds_write_b128 v4, {vr(o,4)} offset:{3072*sl}', f'ds_write_b128 v4, {vr(o+4,4)} offset:{3072*sl+1024}',
                    f'ds_write_b32 v4, v{o+8} offset:{3072*sl+2048}']
        pad = lambda l, k: list(l) + [None]*(k - len(l))
        XG = f'buffer_load_dword v5, v6, {WS}, s{S_XGL} offen sc1'
        PKL = f'buffer_load_dwordx4 v[152:155], v156, {WS}, s27 offen sc1'
        pk_cmp = lambda: [f'v_xor_b32 v152, s{S_NONCE}, v152', f'v_xor_b32 v153, s{S_NONCE}, v153', f'v_xor_b32 v154, s{S_NONCE}, v154',
                          f'v_xor_b32 v155, s{S_NONCE}, v155', 'v_or3_b32 v152, v152, v153, v154', 'v_or_b32 v152, v152, v155', 'v_cmp_ne_u32 vcc, 0, v152']
        a.wait(self.ktok[0], self.qt)
        stamp(a, 'att_go')
        a(QK(0))
        a('s_nop 7')
        N = 128
        periods = list(range(32)) if L == 0 else [0, 1, 2, 3, 4, 5, 30, 31]
        for i in periods:
            if L == 1 and i == 4:
                a('s_mov_b32 s28, 13'); a.raw('.p2align 6'); a.raw('ATT1_LOOP:')
            if L == 1 and i == 30:
                self.vtok[30] = self.vtok[6]
                if not JOINT: self.ktok[31] = self.ktok[7]
            if OPT('ATT_STAMPS') and L == 0 and i in (1, 2, 3, 4, 5, 7, 9, 10, 14, 21): stamp(a, f'a0_p{i}', True)
            if OPT('ATT_STAMPS') and L == 1 and i in (1, 2, 3, 30): stamp(a, f'a1_p{i}', True)
            setup, loads = G.get(i, ([], []))
            setup, loads = pad(setup, 3), pad(loads, 7)
            adv = [None]*4 if (L == 0 and i < 2) else self.adv
            nsetup = pad(G.get(i+1, ([], []))[0], 3)
            for q in range(4):
                n = 4*i + q
                S = Sr(n)
                e = lambda k: a(f'v_exp_f32 v{S+k}, v{S+k}')
                c = lambda k: a(f'v_cvt_pk_bf16_f32 v{VP+k}, v{S+2*k}, v{S+2*k+1}')
                x0, x1, x2 = [], [], []
                if q == 0:
                    x0 += [lambda: a.wait(('vm', a.vm) if (L == 1 and i == 4 and JOINT) else self.vtok[i])]
                    if i + 1 < 32 and i + 1 not in self.vtok: x1.append(lambda: self.ldKV(i+1))
                    x2 += [setup[2]]
                elif q == 1:
                    x0 += [adv[0]]; x1 += loads[:4]; x2 += [adv[1]]
                elif q == 2:
                    x0 += [adv[2]]; x1 += [adv[3]]
                    if i + 1 < 32: x2.append(lambda: a.wait(self.ktok[i+1]))
                else:
                    if i + 2 < 32 and i + 2 not in self.ktok and not JOINT and not (L == 0 and i == 2): x0.append(lambda: self.ldK(i+2))
                    x0 += loads[4:]
                    x1 += [nsetup[0]]; x2 += [nsetup[1]]
                XGC = 11 if (JOINT or L == 0) else 10
                if n == OPT('XGI', XGC - 2): x2.append(f's_buffer_load_dwordx8 s[80:87], {WS}, s{S_XGL}')
                if n == XGC: x2.append(lambda: self.check('XG', XG, lambda: [f'v_cmp_ne_u32 vcc, s{S_NONCE}, v5']))
                if n == XGC + 1 and OPT('KVT', 1):
                    x1 += [f'v_lshlrev_b32 v5, 3, v{V_L16}']
                    x2 += [f'buffer_load_dword v5, v5, {WS}, s{S_KVT} offen']
                if L == 0 and q == 2 and 0 <= i - OPT('SIDEP', 10) < len(self.early): x2.append(self.early[i - OPT('SIDEP', 10)])
                if L == 0:
                    PKP = OPT('PKP', 4)
                    if n == 4*PKP - 1:
                        x1 += [lambda: a.wait(misc['pk'])] + [f'ds_read_b64_tr_b16 {vr(PF+2*k,2)}, v{self.VPT+k}' for k in range(4)]
                        x2 += [f'ds_read_b64_tr_b16 {vr(PF+2*k,2)}, v{self.VPT+k}' for k in range(4, 8)]
                    if i == PKP:
                        def pkst():
                            if q == 0: a.wait_all(vm=False)
                            a('s_and_b32 s24, s101, 15'); a('s_mul_i32 s24, s24, s100'); a('s_add_u32 s24, s24, s95'); a('s_add_u32 s101, s101, 1')
                            misc['pack'] = a(f'buffer_store_dwordx4 {vr(PF+4*q,4)}, v{V_L16}, {WS}, s24 offen sc1')
                        x2.append(pkst)
                    if n == 4*OPT('PKF', 6) + 2:
                        def pkflag():
                            a.wait(misc['pack']); a('s_barrier')
                            a(f's_cmp_lg_u32 s{S_W}, 0'); a('s_cbranch_scc1 PKF_SKIP'); a('s_mov_b64 exec, 1')
                            a.raw(f'buffer_store_dword v157, off, {WS}, s{S_PKL} sc1')
                            a('s_mov_b64 exec, -1'); a.raw('PKF_SKIP:')
                        x2.append(pkflag)
                    W0 = OPT('W0', 10)
                    if n == 4*18 + 2: x2.append(lambda: misc.__setitem__('xcc', xcc_load(a, 159, 158)))
                    if n == 4*20 + 2: x2 += [lambda: a.wait(misc['xcc']), lambda: xcc_eval(a, 159)]
                    if n == 4*(W0-2) + 2:
                        x2 += [f's_cmp_eq_u32 s{S_W}, 1', f's_cselect_b32 s27, 0, {WS_USED}', lambda: misc.__setitem__('PK', a(PKL))]
                    if n == 4*(W0-1) + 2:
                        def pkcheck():
                            a(f's_cmp_lg_u32 s{S_W}, 1'); a('s_cbranch_scc1 PK_SKIP')
                            done = (a.vm_done)
                            self.check('PK', PKL, pk_cmp, sleep=24)
                            a.vm_done = done
                            a.raw('PK_SKIP:'); a('s_barrier')
                        x2.append(pkcheck)
                if L == 0 and OPT('OPT_PT', 1) and n == 4*OPT('PT2', 28) + 1:
                    x0 += [f'v_and_b32 v5, 3, v{V_T}', 'v_lshlrev_b32 v5, 7, v5', f'v_lshl_add_u32 v5, v{V_G}, 14, v5']
                    x2 += [f'buffer_load_dword v5, v5, {WS}, s{S_OST} offen', f'buffer_load_dword v5, off, {WS}, s{S_ST1O}']
                if n == 30*4 + 3: x0.append(f'buffer_load_dwordx4 v[128:131], v{V_L16}, {WS}, s{S_XRES} offen sc1')
                if n == 31*4: x1.append(lambda: misc.__setitem__('xt', a(f'buffer_load_dwordx4 v[132:135], v{V_L16}, {WS}, s{S_XRES} offen offset:1024 sc1')))
                if n == 126: x1 += scr_w(0)[:2]; x2 += scr_w(0)[2:]
                if n == 127: x1 += scr_w(1)[:2]; x2 += scr_w(1)[2:]
                if L == 1 and i == 5 and q == 0: x2.append('s_sub_u32 s28, s28, 1')
                def run(xs):
                    for x in xs:
                        if x is None: continue
                        if callable(x): x()
                        else: a(x)
                if n + 1 < N: a(QK(n+1))
                run(x0)
                e(0); e(1); e(2); e(3); c(0); e(4)
                if n > 0: a(PV(n-1, 1))
                run(x1)
                e(5); c(1); e(6); e(7); c(2); e(8); c(3); e(9); e(10)
                a(PV(n, 0))
                run(x2)
                c(4); e(11); e(12); c(5); e(13); e(14); e(15); c(6); c(7)
            if L == 1 and i == 5:
                a('s_cmp_lg_u32 s28, 0'); a('s_cbranch_scc1 ATT1_LOOP')
        a.wait_all(vm=False)
        a('s_barrier')
        a(PV(N-1, 1))
        return misc

def gen_att_epilogue(a, misc, deferred):
    a.comment('---- pair reduce, range check, normalise, publish O')
    T = 24
    O2, O3 = VO + 32, VO + 48
    a(f'v_xor_b32 v4, {2*6144}, v4' if False else f's_xor_b32 s24, s{S_W}, 2')
    a(f's_mul_i32 s24, s24, 6144')
    a(f's_add_u32 s24, s24, {LDS_SCR}')
    a(f'v_add_u32 v4, s24, v{V_L16}')
    rt = []
    for sl in (0, 1):
        a(f'ds_read_b128 {vr(T+12*sl,4)}, v4 offset:{3072*sl}')
        a(f'ds_read_b128 {vr(T+12*sl+4,4)}, v4 offset:{3072*sl+1024}')
        rt.append(a(f'ds_read_b32 v{T+12*sl+8}, v4 offset:{3072*sl+2048}'))
    a.lines(f'''
    v_and_b32 v4, 1, v{V_G}
    v_lshlrev_b32 v4, 14, v4
    v_add_u32 v4, v4, v7
    ''')
    for sl, o in ((0, O2), (1, O3)):
        a.wait(rt[sl])
        a(f'v_add_f32 v{o+8}, v{o+8}, v{T+12*sl+8}')
        for k in range(4):
            a(f'v_pk_add_f32 {vr(o+2*k,2)}, {vr(o+2*k,2)}, {vr(T+12*sl+2*k,2)}')
    a.lines(f'''
    v_minimum3_f32 v26, v{O2+8}, v{O3+8}, v{O3+8}
    v_maximum3_f32 v27, v{O2+8}, v{O3+8}, v{O3+8}
    v_maximum3_f32 v24, |v{O2}|, |v{O2+1}|, |v{O2+2}|
    v_maximum3_f32 v25, |v{O3}|, |v{O3+1}|, |v{O3+2}|
    v_cmp_le_f32 s[24:25], s{S_C}, v26
    v_cmp_ge_f32 s[26:27], s{S_C+1}, v27
    v_maximum3_f32 v24, |v{O2+3}|, |v{O2+4}|, v24
    v_maximum3_f32 v25, |v{O3+3}|, |v{O3+4}|, v25
    v_maximum3_f32 v24, |v{O2+5}|, |v{O2+6}|, v24
    v_maximum3_f32 v25, |v{O3+5}|, |v{O3+6}|, v25
    v_maximum3_f32 v24, |v{O2+7}|, |v{O3+7}|, v24
    s_and_b64 s[24:25], s[24:25], s[26:27]
    v_maximum3_f32 v24, v24, v25, v25
    v_cmp_ge_f32 vcc, s{S_C+2}, v24
    v_rcp_f32 v{O2+10}, v{O2+8}
    v_rcp_f32 v{O3+10}, v{O3+8}
    s_and_b64 s[24:25], s[24:25], vcc
    s_cmp_eq_u64 s[24:25], -1
    s_cbranch_scc0 FALLBACK
    ATT_NORM:
    ''')
    for sl, o in ((0, O2), (1, O3)):
        for k in range(4):
            a(f'v_pk_mul_f32 {vr(o+2*k,2)}, {vr(o+2*k,2)}, {vr(o+10,2)} op_sel_hi:[1,0]')
        for k in range(4):
            a(f'v_cvt_pk_bf16_f32 v{24+4*sl+k}, v{o+2*k}, v{o+2*k+1}')
        a(f'buffer_store_dwordx4 {vr(24+4*sl,4)}, v4, {WS}, s{S_OST+sl} offen {D_SC}')
    if not D_SC: dup_slow(a, deferred, [f'buffer_store_dwordx4 {vr(24+4*sl,4)}, v4, {WS}, s{S_OST+sl} offen' for sl in range(2)])

def gen_fallback(a):
    a.comment('---- fallback: true-max softmax')
    a.raw('FALLBACK:')
    K, V0, V1, NM = 136, 140, 144, 64
    a.wait_all()
    for i in range(8): a(f'v_mov_b32 v{V0+i}, 0x3f803f80')
    for sl in (2, 3):
        o = VO + 16*sl
        l1 = a.label_name('FB1'); l2 = a.label_name('FB2')
        a(f'v_mov_b32 v56, 0xff800000')
        a(f's_mov_b32 s24, s{S_KV}')
        a(f's_add_u32 s25, s{S_KV}, {KV_SZ}')
        a.raw(f'{l1}:')
        a(f'buffer_load_dwordx4 {vr(K,4)}, v{V_L16}, {WS}, s24 offen')
        a.wait_all()
        a(f'{M32} {vr(VS0,16)}, {vr(K,4)}, {vr(VQ+4*sl,4)}, 0')
        for k in range(8):
            a(f'v_max3_f32 v56, v{VS0+2*k}, v{VS0+2*k+1}, v56')
        a('s_add_u32 s24, s24, 2048')
        a('s_cmp_lt_u32 s24, s25')
        a(f's_cbranch_scc1 {l1}')
        a('v_mov_b32 v57, v56')
        a('v_permlane32_swap_b32 v56, v57')
        a('v_max_f32 v56, v56, v57')
        for k in range(16):
            a(f'v_sub_f32 v{NM+k}, 0, v56')
            a(f'v_mov_b32 v{o+k}, 0')
        a(f's_mov_b32 s24, s{S_KV}')
        a.raw(f'{l2}:')
        a(f'buffer_load_dwordx4 {vr(K,4)}, v{V_L16}, {WS}, s24 offen')
        a(f's_mov_b64 exec, {sr(S_VMASK,2)}')
        a(f'buffer_load_dwordx4 {vr(V0,4)}, v7, {WS}, s24 offen offset:1024')
        a(f'buffer_load_dwordx4 {vr(V1,4)}, v7, {WS}, s24 offen offset:1536')
        a('s_mov_b64 exec, -1')
        a.wait_all()
        a(f'{M32} {vr(VS0,16)}, {vr(K,4)}, {vr(VQ+4*sl,4)}, {vr(NM,16)}')
        for k in range(16): a(f'v_exp_f32 v{VS0+k}, v{VS0+k}')
        for k in range(8): a(f'v_cvt_pk_bf16_f32 v{VP+k}, v{VS0+2*k}, v{VS0+2*k+1}')
        a(f'{M32} {vr(o,16)}, {vr(V0,4)}, {vr(VP,4)}, {vr(o,16)}')
        a(f'{M32} {vr(o,16)}, {vr(V1,4)}, {vr(VP+4,4)}, {vr(o,16)}')
        a('s_add_u32 s24, s24, 2048')
        a('s_cmp_lt_u32 s24, s25')
        a('s_nop 15')
        a(f's_cbranch_scc1 {l2}')
        a('s_nop 15')
        a(f'v_rcp_f32 v{o+10}, v{o+8}')
    a('s_nop 3')
    a('s_branch ATT_NORM')

def gen_p1(a, misc, deferred):
    a.comment('---- P1: output projection + residual')
    B, AW, NW = 32, 64, 15
    a(f'v_mov_b32 v7, s{S_NONCE}')
    a.wait(misc['xt'])
    for i in range(8):
        a(f'v_lshlrev_b32 v{XR+2*i}, 16, v{128+i}')
        a(f'v_and_b32 v{XR+2*i+1}, 0xffff0000, v{128+i}')
    a(f's_add_u32 s24, s{S_GB}, {O_O}')
    a(f'v_add_u32 v136, s24, v{V_L16}')
    st_voff(a, 137)
    a(f's_lshl_b32 s25, s{S_W}, 12')
    a(f's_add_u32 m0, s25, {LDS_WQ + 65536}')
    addr = lambda k: (V_L16, LDS_WO + 1024*k)
    pre = []
    for k in range(NW):
        v, off = addr(k)
        pre.append(a(f'ds_read_b128 {vr(AW+4*k,4)}, v{v} offset:{off}'))
    hop(a, F_O, deferred, 'o', 5)
    late = [f'buffer_load_dwordx4 {w2reg(42)}, v{V_L16}, {WS}, s{S_W2L} offen offset:2048',
            f'buffer_load_dwordx4 {w2reg(43)}, v{V_L16}, {WS}, s{S_W2L} offen offset:3072']
    late += [f'buffer_load_dwordx4 v{V_L16}, {WS}, s{S_WQL} offen offset:{1024*i} lds' for i in range(4)]
    gemm_w(a, B, 136, AW, NW, 4, addr, pre, lambda s, t, A, Bq: [f'{M16} {vr(XR+4*t,4)}, {A}, {Bq}, {vr(XR+4*t,4)}'], late=late, tag='p1')
    stamp(a, 'p1_gemm')
    x_publish(a, XR, 24, 32, S_X1O, S_ST1O, 137, sc=D_SC, deferred=deferred)

def gen_p23(a, deferred):
    a.comment('---- P2: LN + FFN1 + silu')
    B0, B1, BW, NBW, ACC, TMP, PK, RS, ST = 24, 68, 68, 6, (92, 104), 116, 128, 138, 24
    a.lines(f'''
    v_lshrrev_b32 v5, 1, v{V_G}
    v_lshlrev_b32 v5, 8, v5
    v_lshl_add_u32 v5, v{V_T}, 4, v5
    v_and_b32 v4, 1, v{V_G}
    v_lshl_add_u32 v5, v4, 3, v5
    v_lshrrev_b32 v136, 1, v{V_L16}
    v_add_u32 v136, {LDS_ST}, v136
    s_lshl_b32 s28, s{S_W}, 12
    s_lshl_b32 s29, s{S_W}, 10
    s_add_u32 s29, s29, {LDS_ST}
    s_add_u32 m0, s28, {LDS_WO}
    s_mov_b32 s{S_CLN}, s{S_HF}
    s_mov_b32 s{S_CLN+1}, s{S_HH}
    s_lshr_b32 s24, s2, {OPT('WB_SH', 3)}
    s_xor_b32 s25, s{S_W}, 3
    s_or_b32 s24, s24, s25
    s_xor_b32 s25, s{S_L}, 1
    s_or_b32 s{S_CLN+2}, s24, s25
    s_add_u32 s{S_FH}, s{S_FLINE}, {F_H}
    s_add_u32 s{S_FH+1}, s{S_FLINE}, {F_H + 128}
    s_add_u32 s{S_FH+2}, s{S_FLINE}, {F_H + 256}
    s_add_u32 s{S_FH+3}, s{S_FLINE}, {F_H + 384}
    s_mov_b32 s{S_N2}, s{S_NONCE}
    s_mov_b32 s{S_N2+1}, s{S_NONCE}
    s_xor_b32 s{S_HWT}, s{S_L}, 1
    s_or_b32 s{S_HWT}, s{S_HWT}, s{S_SLOW}
    v_mov_b32 v68, 0x3f803f80
    v_mov_b32 v69, 0x3f803f80
    v_mov_b32 v70, 0x3f803f80
    v_mov_b32 v71, 0x3f803f80
    ''')
    CS1, NM = 56, (134, 135, 142, 143)
    def colsum(k0, k1):
        for ks in range(k0, k1):
            for i in range(3):
                a(f'{M16} {vr(CS1+4*i,4)}, {w1reg(i,ks)}, v[68:71], {"0" if ks == 0 else vr(CS1+4*i,4)}')
    CSA = OPT('CSA', 8)
    colsum(0, CSA)
    hop(a, F_X1, deferred, 'x1', 4)
    dma = {}
    xd = lambda i: f'buffer_load_dwordx4 v{V_L16}, {WS}, s{S_XD} offen offset:{1024*i} sc1 lds'
    for i in range(4): a(xd(i))
    a('s_mov_b32 m0, s29')
    a(f's_add_u32 s{S_XD}, s{S_XD}, 16384')
    dma[0] = a(f'buffer_load_dwordx4 v{V_L16}, {WS}, s{S_STD} offen sc1 lds')
    a(f's_add_u32 m0, s28, {LDS_WO + 16384}')
    if OPT('XD_BAR', 1): a('s_barrier')
    for i in range(4): dma[1] = a(xd(i))
    colsum(CSA, 16)
    dq = []
    for nt in (2, 3):
        dq += [f's_add_u32 s{S_XD}, s{S_XD}, 16384', 's_add_u32 m0, m0, 16384'] + [(nt, xd(i)) for i in range(4)]
    cost = lambda s: 8 if s.split()[0] in TRANS else 4
    def epi(nt):
        A = ACC[nt & 1]
        st = [[f'v_mul_f32 v{A+k}, v{A+k}, v{RS+nt}' for k in range(12)],
              [f'v_fma_f32 v{A+k}, -v{CS1+k}, v{NM[nt]}, v{A+k}' for k in range(12)],
              [f'v_exp_f32 v{TMP+k}, -v{A+k}' for k in range(12)],
              [f'v_add_f32 v{TMP+k}, 1.0, v{TMP+k}' for k in range(12)],
              [f'v_rcp_f32 v{TMP+k}, v{TMP+k}' for k in range(12)],
              [f'v_mul_f32 v{A+k}, v{A+k}, v{TMP+k}' for k in range(12)],
              [(f'v_cvt_pk_bf16_f32 v{PK+k//2}, v{A+k-1}, v{A+k}' if k & 1 else None) for k in range(12)]]
        L = []
        for t in range(12 + 2*6):
            for j in (0, 2, 1, 3, 4, 5, 6):
                k = t - 2*j
                if 0 <= k < 12 and st[j][k]: L.append(st[j][k])
        return L
    def epi_pk(nt):
        A = ACC[nt & 1]
        assert nt == 3
        L = [f'v_pk_mul_f32 {vr(A+2*k,2)}, {vr(A+2*k,2)}, {vr(RS+2,2)} op_sel:[0,1] op_sel_hi:[1,1]' for k in range(6)]
        L += [f'v_pk_fma_f32 {vr(A+2*k,2)}, {vr(CS1+2*k,2)}, {vr(NM[2],2)}, {vr(A+2*k,2)} op_sel:[0,1,0] op_sel_hi:[1,1,1] neg_lo:[1,0,0] neg_hi:[1,0,0]' for k in range(6)]
        L += [f'v_exp_f32 v{TMP+k}, -v{A+k}' for k in range(12)]
        L += [f'v_pk_add_f32 {vr(TMP+2*k,2)}, {vr(TMP+2*k,2)}, 1.0 op_sel_hi:[1,0]' for k in range(6)]
        L += [f'v_rcp_f32 v{TMP+k}, v{TMP+k}' for k in range(12)]
        L += [f'v_pk_mul_f32 {vr(A+2*k,2)}, {vr(A+2*k,2)}, {vr(TMP+2*k,2)}' for k in range(6)]
        L += [f'v_cvt_pk_bf16_f32 v{PK+k}, v{A+2*k}, v{A+2*k+1}' for k in range(6)]
        return L
    hst = {}
    def hstore(nt):
        if OPT('X_NOST'): hst[nt] = None; return
        st = [f'buffer_store_dwordx4 {vr(PK,4)}, v{V_L16}, {WS}, s{S_HF} offen', f'buffer_store_dwordx2 {vr(PK+4,2)}, v5, {WS}, s{S_HH} offen']
        if H_SC:
            a(st[0] + ' sc1'); hst[nt] = a(st[1] + ' sc1'); return
        wt = a.label_name('HW'); back = a.label_name('HB')
        a(f's_cmp_lg_u32 s{S_HWT}, 0')
        a(f's_cbranch_scc1 {wt}')
        a(st[0]); hst[nt] = a(st[1])
        a.raw(f'{back}:')
        def d(b):
            b.raw(f'{wt}:')
            for s in st: b(s + ' sc1')
            b(f's_branch {back}')
        deferred.append(d)
    def htouch():
        if not OPT('HTOUCH', 0): return
        a(f'buffer_load_dword v4, v{V_L16}, {WS}, s{S_CLN} offen')
        a(f'buffer_load_dword v4, v5, {WS}, s{S_CLN+1} offen')
        a(f's_add_u32 s{S_CLN}, s{S_CLN}, {44*1024}'); a(f's_add_u32 s{S_CLN+1}, s{S_CLN+1}, {44*1024}')
    def early_wb():
        l = a.label_name('WB')
        a(f's_cmp_lg_u32 s{S_CLN+2}, 0'); a(f's_cbranch_scc1 {l}')
        a.raw('buffer_wbl2 sc1')
        a.raw(f'{l}:')
    hadv = [f's_add_u32 s{S_HF}, s{S_HF}, {44*1024}', f's_add_u32 s{S_HH}, s{S_HH}, {44*1024}']
    ptok = {}
    def hpoll_issue(nt):
        if OPT('X_NOSYNC'): return
        if SPOLL: a(f's_buffer_load_dwordx8 s[80:87], {WS}, s{S_FH + nt}'); return
        ptok[nt] = a(f'buffer_load_dword v4, v6, {WS}, s{S_FLINE} offen offset:{F_H + 128*nt} sc1')
    def hpoll_check(nt):
        if OPT('X_NOSYNC'): return
        slow = a.label_name('HSLOW'); ok = a.label_name('HOK')
        if SPOLL:
            a.wait_all(vm=False)
            a('s_and_b64 s[24:25], s[80:81], s[82:83]'); a('s_and_b64 s[26:27], s[84:85], s[86:87]'); a('s_and_b64 s[24:25], s[24:25], s[26:27]')
            a('s_or_b64 s[80:81], s[80:81], s[82:83]'); a('s_or_b64 s[84:85], s[84:85], s[86:87]'); a('s_or_b64 s[80:81], s[80:81], s[84:85]')
            a('s_and_b32 s24, s24, s25'); a('s_or_b32 s25, s80, s81')
            a(f's_cmp_eq_u64 s[24:25], {sr(S_N2,2)}')
            a(f's_cbranch_scc0 {slow}')
        else:
            a.wait(ptok[nt])
            a(f'v_cmp_ne_u32 vcc, s{S_NONCE}, v4')
            a(f's_cbranch_vccnz {slow}')
        a.raw(f'{ok}:')
        acquire_slow(a, deferred)
        def d(b):
            lp = b.label_name('HLP')
            b.raw(f'{slow}:')
            b('s_mov_b32 s24, 0')
            b.raw(f'{lp}:')
            b(f'buffer_load_dword v4, v6, {WS}, s{S_FLINE} offen offset:{F_H + 128*nt} sc1')
            b('s_add_u32 s24, s24, 1')
            b('s_waitcnt vmcnt(0)')
            b(f's_cmp_gt_u32 s24, {POLL_MAX}')
            b(f's_cbranch_scc1 {ok}')
            b(f'v_cmp_ne_u32 vcc, s{S_NONCE}, v4')
            b(f's_cbranch_vccnz {lp}')
            b(f's_branch {ok}')
        deferred.append(d)
    hb = {nt: [None]*11 for nt in range(4)}
    def hload(nt, s):
        Bb = B0 if (nt & 1) == 0 else B1
        if s and s % 4 == 0: a(f's_add_u32 s{S_HB}, s{S_HB}, 4096')
        hb[nt][s] = a(f'buffer_load_dwordx4 {vr(Bb+4*s,4)}, v{V_L16}, {WS}, s{S_HB} offen offset:{1024*(s%4)} sc1')
        if s == 10: a(f's_add_u32 s{S_HB}, s{S_HB}, {44*1024 - 8192}')
    hlist = lambda nt: [(lambda s=s: hload(nt, s)) for s in range(11)]
    stl = rstd_from(a, ST, RS, LOG2E, pk=False)
    stl += [f'v_mul_f32 v{NM[0]}, v{ST}, v{RS}', f'v_mov_b32 v{RS+2}, v{RS}', f'v_mov_b32 v{NM[2]}, v{NM[0]}',
            f'v_permlane32_swap_b32 v{RS}, v{RS+2}', f'v_permlane32_swap_b32 v{NM[0]}, v{NM[2]}',
            f'v_mov_b32 v{RS+1}, v{RS}', f'v_mov_b32 v{RS+3}, v{RS+2}', f'v_mov_b32 v{NM[1]}, v{NM[0]}', f'v_mov_b32 v{NM[3]}, v{NM[2]}',
            f'v_permlane16_swap_b32 v{RS}, v{RS+1}', f'v_permlane16_swap_b32 v{RS+2}, v{RS+3}',
            f'v_permlane16_swap_b32 v{NM[0]}, v{NM[1]}', f'v_permlane16_swap_b32 v{NM[2]}, v{NM[3]}']
    btok = []
    def bread():
        k = len(btok)
        if k >= 64: return
        btok.append(a(f'ds_read_b128 {vr(BW+4*(k % NBW),4)}, v{V_L16} offset:{LDS_WO + 1024*k}'))
    a.wait(dma[0]); a('s_barrier')
    for _ in range(NBW - 1): bread()
    strd = [f'ds_read_b64 {vr(ST+2*p,2)}, v136 offset:{512*p}' for p in range(8)]
    pend = []
    KB = OPT('KB', 8)
    CR = OPT('CR10', 105) / 10
    a.wait(btok[0])
    for nt in range(4):
        stamp(a, f'f1_nt{nt}')
        A = ACC[nt & 1]
        ex = stl if nt == 0 else epi(nt-1)
        if OPT('X_NOEPI'): ex = []
        sal = list(hadv) if nt >= 2 else []
        for ks in range(16):
            k = nt*16 + ks
            for i in range(3):
                a(f'{M16} {vr(A+4*i,4)}, {w1reg(i,ks)}, {vr(BW+4*(k % NBW),4)}, {"0" if ks == 0 else vr(A+4*i,4)}')
                fill = 0
                if i == 0: bread(); fill += 4
                if i == 1 and sal and ks > 0: a(sal.pop(0))
                if i == 1 and nt == 0 and strd:
                    a(strd.pop(0)); stt = a(strd.pop(0)); fill += 8
                if i == 1 and nt == 0 and ks >= 4 and dq:
                    x = dq.pop(0)
                    if isinstance(x, tuple): dma[x[0]] = a(x[1]); fill += 8
                    else: a(x)
                if i == 1 and ks == KB and nt < 2:
                    a.wait(dma[1] if nt == 0 else dma[3])
                    a('s_barrier'); fill += 8
                if i == 1 and ks == OPT('KBF', 13) and nt >= 2 and not OPT('X_NOSYNC'):
                    a.wait(hst[nt-2]); htouch()
                    a('s_barrier')
                    flag_set(a, F_H + 128*(nt-2), deferred); fill += 8
                if i == 1 and nt == 3:
                    if ks == OPT('H0I', 3): hpoll_issue(0); fill += 8
                    if ks == OPT('H0C', 9): hpoll_check(0); pend = hlist(0)[:8]; fill += 8
                    if ks == OPT('H0C', 9) and OPT('X_NOLD'):
                        late0 = pend; pend = []
                if i == 2 and k + 1 < 64: a.wait(btok[k+1])
                if nt == 3 and pend and i == 2: pend.pop(0)(); fill += 8
                if nt == 3 and pend and i == 1 and ks > 13: pend.pop(0)(); fill += 8
                g = ks*3 + i
                if OPT('WB1', 1) and nt == 1 and g == 1: early_wb()
                if g == 1 and nt >= 2: hstore(nt-2)
                if nt == 0 and g == 18: a.wait(stt)
                if g < 2 or (nt == 0 and ks < 6): continue
                left = 48 - g
                target = (sum(cost(x) for x in ex) + 4*((47 - g)//3)) / left
                while ex and (fill < 8 or fill + cost(ex[0])/2 <= target):
                    fill += cost(ex[0]); a(ex.pop(0))
        for x in pend: x()
        pend = []
        for x in ex: a(x)
        if nt == 3 and not OPT('H2LATE', 0): hstore(2)
    if not OPT('H2LATE', 0):
        if not SPOLL: hpoll_issue(1)
        for x in hadv: a(x)
    stamp(a, 'f1_main_end')
    if OPT('X_NOLD'):
        for x in late0: x()
    ep = epi_pk(3)
    for x in ep[:12]: a(x)
    for s in range(8, 11): hload(0, s)
    for x in ep[12:24]: a(x)
    if OPT('H2LATE', 0):
        hpoll_issue(1); hstore(2)
        for x in hadv: a(x)
    for k, x in enumerate(ep[24:]):
        if SPOLL and k == OPT('P1I', 8): hpoll_issue(1)
        a(x)
    hstore(3)
    AC2 = (112, 128)
    P1C = OPT('P1C', 3)
    F2, P2I, P2C, F3, P3I, P3C = OPT('F2', 4), OPT('P2I', 9), OPT('P2C', 14), OPT('F3', 10), OPT('P3I', 15), OPT('P3C', 20)
    roll = []
    for nt in range(4):
        if not OPT('P1_STAMPS'): stamp(a, f'f2_nt{nt}')
        A = AC2[nt & 1]; Bb = B0 if (nt & 1) == 0 else B1
        wr = []
        if nt > 0:
            P = AC2[(nt-1) & 1]
            wr = [f'ds_write_b128 v5, {vr(P+4*mt,4)} offset:{16384*(nt-1) + 1024*mt}' for mt in range(4)]
            assert F3 < 13
        for s in range(11):
            pos = nt*11 + s
            a.wait(hb[nt][s])
            for mt in range(4):
                a(f'{M16} {vr(A+4*mt,4)}, {w2reg(4*s+mt)}, {vr(Bb+4*s,4)}, {"0" if s == 0 else vr(A+4*mt,4)}')
                if mt == 0:
                    if pos == P1C: hpoll_check(1); roll += [(1, x) for x in range(11)]
                    if pos == P2C: hpoll_check(2); roll += [(2, x) for x in range(11)]
                    if pos == P3C: hpoll_check(3); roll += [(3, x) for x in range(11)]
                    if pos == F2: a.wait(hst[2]); htouch(); a('s_barrier'); flag_set(a, F_H + 128*2, deferred)
                    if pos == F3: a.wait(hst[3]); htouch(); a('s_barrier'); flag_set(a, F_H + 128*3, deferred); a(f'v_add_u32 v5, s28, v{V_L16}')
                free = lambda: roll and (roll[0][0]-2)*11 + roll[0][1] < pos
                behind = lambda: roll and roll[0][0]*11 + roll[0][1] < pos + 11
                if mt == 1 and free(): hload(*roll.pop(0))
                if mt == 3 and free() and behind(): hload(*roll.pop(0))
                if OPT('WB2', 0) and pos == 34 and mt == 1:
                    assert not roll
                    early_wb()
                if mt == 2:
                    if pos == P2I: hpoll_issue(2)
                    elif pos == P3I: hpoll_issue(3)
                    elif s >= 3 and wr: a(wr.pop(0))
        assert not wr
    assert not roll
    stamp(a, 'f2_mfma_end')
    P = AC2[1]
    a(f's_lshl_b32 s24, s{S_W}, 14')
    a(f'v_add_u32 v4, s24, v{V_L16}')
    a(f's_mov_b32 s24, {f32(LN2)}')
    a(f's_mov_b32 s25, {f32(LN2)}')
    for mt in range(4):
        a(f'ds_write_b128 v5, {vr(P+4*mt,4)} offset:{16384*3 + 1024*mt}')
    a.wait_all(vm=False)
    a('s_barrier')
    for t in range(5):
        a(f'buffer_load_dwordx4 {vr(P4_CS[t],4)}, v{V_L16}, {WS}, s{S_CSA + (t>>2)} offen offset:{1024*(t&3)} sc1')
    rt = []
    order = [(sl, mt) for mt in range(4) for sl in range(4)]
    for sl, mt in order:
        rt.append(a(f'ds_read_b128 {vr(24+16*sl+4*mt,4)}, v4 offset:{4096*sl + 1024*mt}'))
    for mt in range(4):
        a.wait(rt[4*mt+3])
        for h in range(2):
            r = lambda sl: vr(24+16*sl+4*mt+2*h, 2)
            a(f'v_pk_add_f32 {r(0)}, {r(0)}, {r(1)}')
            a(f'v_pk_add_f32 {r(2)}, {r(2)}, {r(3)}')
        for h in range(2):
            r = lambda sl: vr(24+16*sl+4*mt+2*h, 2)
            a(f'v_pk_add_f32 {r(0)}, {r(0)}, {r(2)}')
        for h in range(2):
            r = lambda sl: vr(24+16*sl+4*mt+2*h, 2)
            a(f'v_pk_fma_f32 {vr(XR+4*mt+2*h,2)}, {r(0)}, s[24:25], {vr(XR+4*mt+2*h,2)}')

def gen_out(a):
    a.comment('---- final output')
    a.lines(f'''
    s_lshl_b32 s24, s{S_G}, 16
    s_lshl_b32 s25, s{S_W}, 14
    s_add_u32 s24, s24, s25
    s_lshl_b32 s25, s{S_J}, 7
    s_add_u32 s24, s24, s25
    v_lshlrev_b32 v4, 10, v{V_T}
    v_lshrrev_b32 v5, 1, v{V_G}
    v_lshl_add_u32 v4, v5, 4, v4
    v_and_b32 v5, 1, v{V_G}
    v_lshl_add_u32 v4, v5, 5, v4
    ''')
    for p in range(2):
        for i in range(4):
            a(f'v_cvt_pk_bf16_f32 v{24+4*p+i}, v{XR+8*p+2*i}, v{XR+8*p+2*i+1}')
        a(f'v_permlane16_swap_b32 v{24+4*p}, v{24+4*p+2}')
        a(f'v_permlane16_swap_b32 v{24+4*p+1}, v{24+4*p+3}')
        a(f'buffer_store_dwordx4 {vr(24+4*p,4)}, v4, {SB}, s24 offen offset:{64*p} {OUT_SC}')

def gen_phase0(a, deferred, att):
    a.comment('---- phase 0')
    L_WQ, L_X, L_KV, L_CS, L_PK = 0, 65536, 131072, 131072, 147456
    SX, SWQ, SDBG, SKV = sr(80, 4), sr(84, 4), sr(88, 4), sr(92, 4)
    RHO, XB, QB, W1K, XL = 78, 79, 96, 97, 98
    ONES, B, KA, CS, SXR, GR, AW, QA, CQ, AQ, VQT, VPT, XRES, WIN = 28, 32, 112, 116, 120, 124, 184, 208, 224, 104, 228, 233, 244, 160
    RS, NM = 252, 253
    LQ0 = L_KV + 4096
    Ln = V_LANE
    a('s_getpc_b64 s[24:25]')
    a.raw('CPF_HERE:')
    a.lines(f"""
    s_load_dwordx2 s[80:81], s[0:1], 0
    s_load_dwordx4 s[44:47], s[0:1], 16
    s_load_dwordx2 s[84:85], s[0:1], 8
    s_load_dwordx2 s[48:49], s[0:1], 32
    s_load_dwordx4 s[52:55], s[0:1], 48
    s_load_dwordx2 s[88:89], s[0:1], 72
    s_memrealtime s[60:61]
    s_mov_b32 s26, CODE_END-CPF_HERE
    s_mov_b32 s27, 0x20000
    s_lshr_b32 s28, s2, 3
    s_lshl_b32 s28, s28, 2
    s_add_u32 s28, s28, s{S_W}
    s_lshl_b32 s28, s28, 9
    v_lshlrev_b32 v9, 3, v{V_L16}
    s_mov_b64 exec, 15
    buffer_load_dword v159, v9, s[24:27], s28 offen
    s_mov_b64 exec, -1
    s_and_b32 s24, s{S_G}, 3
    s_lshl_b32 s24, s24, 1
    s_add_u32 s24, s24, s{S_J}
    s_lshl_b32 s24, s24, 1
    s_and_b32 s{RHO}, s24, 15
    s_lshl_b32 s{XB}, s{S_G}, 16
    s_lshl_b32 s25, s{S_W}, 14
    s_add_u32 s{XB}, s{XB}, s25
    s_add_u32 s{XL}, s25, {L_X}
    v_lshrrev_b32 v11, 3, v{Ln}
    v_lshlrev_b32 v10, 10, v11
    v_and_b32 v20, 7, v{Ln}
    v_xor_b32 v8, v20, v11
    v_lshl_add_u32 v8, v8, 4, v10
    v_add_u32 v8, s{XB}, v8
    v_add_u32 v242, 7168, v8
    s_lshl_b32 s{XB}, s{RHO}, 6
    s_mov_b32 s82, {2048*1024}
    s_mov_b32 s83, 0x20000
    s_mov_b32 s94, {512*32}
    s_mov_b32 s95, 0x20000
    s_lshl_b32 s{S_W4K}, s{S_W}, 12
    v_bfe_u32 v11, v{Ln}, 1, 2
    v_and_b32 v9, 1, v{V_G}
    s_and_b32 s25, s{S_W}, 1
    s_lshl_b32 s25, s25, 1
    v_or_b32 v9, s25, v9
    v_xor_b32 v11, v11, v9
    v_lshl_add_u32 v9, v11, 5, v10
    v_and_b32 v11, 1, v{Ln}
    v_lshl_add_u32 v9, v11, 4, v9
    s_lshl_b32 s{QB}, s{S_W}, 13
    s_lshl_b32 s25, s{S_J}, 7
    s_add_u32 s{QB}, s{QB}, s25
    v_add_u32 v9, s{QB}, v9
    s_sub_u32 s{QB}, s{RHO}, 1
    s_lshl_b32 s{QB}, s{QB}, 15
    s_lshl_b32 s{W1K}, s{S_W}, 10
    s_mov_b32 s86, {512*1024}
    s_mov_b32 s87, 0x20000
    s_waitcnt lgkmcnt(0)
    """)
    xtok = []
    def xload():
        p = len(xtok)
        a(f's_add_u32 m0, s{XL}, {2048*p}')
        if p: a(f's_add_u32 s{XB}, s{XB}, 128'); a(f's_and_b32 s{XB}, s{XB}, 1023')
        a(f'buffer_load_dwordx4 v8, {SX}, s{XB} offen lds')
        xtok.append(a(f'buffer_load_dwordx4 v242, {SX}, s{XB} offen offset:1024 lds'))
    qtok = []
    def qparts():
        s = len(qtok)
        return [f's_add_u32 m0, s{W1K}, {L_WQ + 4096*s}', f's_add_u32 s{QB}, s{QB}, 32768', f's_and_b32 s{QB}, s{QB}, 0x7ffff',
                lambda: qtok.append(a(f'buffer_load_dwordx4 v9, {SWQ}, s{QB} offen lds'))]
    def qload():
        for x in qparts(): (x() if callable(x) else a(x))
    a.lines(f"""
    s_lshl_b32 s60, s60, 4
    s_or_b32 s60, s60, 8
    s_mov_b32 s90, 256
    s_mov_b32 s91, 0x20000
    s_or_b32 s24, s2, s{S_W}
    s_cmp_lg_u32 s24, 0
    s_cbranch_scc1 P0_NOTAG
    v_mov_b32 v12, s60
    s_mov_b64 exec, 1
    """)
    a.raw(f'buffer_store_dword v12, off, {SDBG}, 0 sc1')
    a('s_mov_b64 exec, -1')
    a.raw('P0_NOTAG:')
    xload()
    for _ in range(OPT('Q_SHARE', 0)): qload()
    a.lines(f"""
    s_bitcmp1_b32 s{S_J}, 0
    s_cselect_b32 s92, s46, s44
    s_cselect_b32 s93, s47, s45
    s_lshl_b32 s24, s{S_W}, 2
    s_add_u32 s24, s24, s{RHO}
    s_add_u32 m0, s{S_W4K}, {L_KV}
    """)
    for i in range(4):
        a('s_and_b32 s25, s24, 15'); a('s_lshl_b32 s25, s25, 10')
        kv = a(f'buffer_load_dwordx4 v{V_L16}, {SKV}, s25 offen lds')
        if i < 3: a('s_add_u32 s24, s24, 1'); a('s_add_u32 m0, m0, 1024')
    for _ in range(OPT('X_FIRST', 2)): xload()
    def touch():
        a(f's_and_b32 s71, s{S_G}, 3'); a('s_lshl_b32 s71, s71, 2'); a(f's_add_u32 s71, s71, s{S_W}'); a('s_lshl_b32 s71, s71, 8')
        a(f's_add_u32 s71, s71, s{S_J}'); a('s_lshl_b32 s71, s71, 7')
        a(f'v_and_b32 v255, 31, v{Ln}'); a('v_lshlrev_b32 v255, 10, v255')
        a(f'buffer_load_dword v255, v255, {SWQ}, s71 offen')
    a(f's_mov_b32 s86, {512*1024}'); a('s_mov_b32 s87, 0x20000')
    a.lines(f"""
    s_lshl_b32 s27, s{S_W}, 15
    s_lshl_b32 s26, s{S_G}, 10
    s_add_u32 s27, s27, s26
    s_add_u32 s27, s27, {FLAGS}
    s_and_b32 s26, s2, 7
    s_lshl_b32 s26, s26, 7
    s_add_u32 s26, s26, {XFL}
    s_cmp_ge_u32 s{S_W}, 2
    s_cselect_b32 s27, s26, s27
    s_cselect_b32 s26, 6, 3
    v_lshlrev_b32 v241, s26, v{V_L16}
    s_mov_b64 exec, 0xff
    s_cselect_b32 exec_lo, 15, exec_lo
    buffer_load_dword v241, v241, {WS}, s27 offen sc1
    s_mov_b64 exec, -1
    """)
    stamp(a, 'p0_issued', True)
    a.lines(f"""
    s_lshl_b32 s56, s2, 2
    s_add_u32 s56, s56, s{S_W}
    s_mov_b32 s58, 3
    s_mov_b32 s57, 1024
    s_mov_b32 s100, 1024
    s_mov_b32 s101, 0
    s_mov_b32 s59, 0x100408
    s_mov_b32 s11, 0x20000
    s_cmp_ge_u32 s56, 352
    s_cbranch_scc1 P0_J1
    s_mov_b32 s8, s54
    s_mov_b32 s9, s55
    s_mov_b32 s10, {1376*1024}
    s_mul_i32 s24, s56, 5958
    s_lshr_b32 s24, s24, 16
    s_mul_i32 s25, s24, 11
    s_sub_u32 s25, s56, s25
    s_lshr_b32 s28, s24, 2
    s_and_b32 s27, s24, 3
    s_lshl_b32 s95, s56, 12
    s_add_u32 s95, s95, {W2_P}
    s_mul_i32 s27, s27, 22
    s_lshr_b32 s26, s25, 2
    s_mul_i32 s26, s26, 11
    s_and_b32 s24, s25, 3
    s_mul_i32 s24, s24, 3
    s_add_u32 s92, s26, s24
    s_add_u32 s93, s92, 1
    s_cmp_eq_u32 s25, 8
    s_cselect_b32 s92, 2, s92
    s_cselect_b32 s93, 5, s93
    s_cmp_eq_u32 s25, 9
    s_cselect_b32 s92, 8, s92
    s_cselect_b32 s93, 13, s93
    s_cmp_eq_u32 s25, 10
    s_cselect_b32 s92, 16, s92
    s_cselect_b32 s93, 19, s93
    s_add_u32 s92, s92, s27
    s_add_u32 s93, s93, s27
    s_cmp_ge_u32 s25, 8
    s_cselect_b32 s59, 0x040810, s59
    s_branch P0_JGO
    P0_J1:
    s_cmp_ge_u32 s56, 704
    s_cbranch_scc1 P0_J2
    s_mov_b32 s8, s52
    s_mov_b32 s9, s53
    s_mov_b32 s10, {512*2752}
    s_mov_b32 s57, 2752
    s_sub_u32 s24, s56, 352
    s_lshr_b32 s28, s24, 4
    s_and_b32 s26, s24, 15
    s_lshl_b32 s95, s28, 16
    s_lshl_b32 s25, s26, 10
    s_add_u32 s95, s95, s25
    s_add_u32 s95, s95, {W1_P}
    s_mov_b32 s100, 16384
    s_lshl_b32 s92, s26, 1
    s_add_u32 s93, s92, 1
    s_branch P0_JGO
    P0_J2:
    s_cmp_ge_u32 s56, 960
    s_cbranch_scc1 P0_J3
    s_sub_u32 s24, s56, 704
    s_and_b32 s27, s24, 127
    s_lshr_b32 s28, s27, 4
    s_lshl_b32 s26, s28, 1
    s_add_u32 s26, s26, s27
    s_and_b32 s26, s26, 15
    s_lshl_b32 s92, s26, 1
    s_add_u32 s93, s92, 1
    s_mov_b32 s10, {512*1024}
    s_lshl_b32 s95, s27, 12
    s_add_u32 s95, s95, {WO_P}
    s_mul_i32 s25, s27, 5120
    s_add_u32 s25, s25, {WQKV_P}
    s_cmp_ge_u32 s24, 128
    s_cselect_b32 s8, s84, s48
    s_cselect_b32 s9, s85, s49
    s_cselect_b32 s95, s25, s95
    s_cselect_b32 s59, s59, 0x080410
    s_branch P0_JGO
    P0_J3:
    s_sub_u32 s24, s2, 240
    s_bitcmp1_b32 s24, 0
    s_cselect_b32 s8, s46, s44
    s_cselect_b32 s9, s47, s45
    s_mul_i32 s95, s24, 81920
    s_add_u32 s95, s95, {WQKV_P + 4096}
    s_cmp_lt_u32 s24, 8
    s_cselect_b32 s10, {512*32}, 0
    s_cselect_b32 s95, s95, {WS_USED}
    s_mov_b32 s58, 1
    s_mov_b32 s57, 32
    s_mov_b32 s100, 5120
    s_lshl_b32 s24, s24, 1
    s_lshl_b32 s101, s{S_W}, 2
    s_sub_u32 s101, s101, s24
    s_lshl_b32 s92, s{S_W}, 3
    s_add_u32 s93, s92, 4
    s_mov_b32 s28, 0
    P0_JGO:
    s_lshl_b32 s24, s57, 4
    s_lshl_b32 s28, s28, 7
    s_mul_i32 s92, s92, s24
    s_add_u32 s92, s92, s28
    s_mul_i32 s93, s93, s24
    s_add_u32 s93, s93, s28
    s_sub_u32 s24, 6, s58
    s_lshl_b32 s94, s57, s24
    v_lshrrev_b32 v10, s58, v{V_LANE}
    v_mul_lo_u32 v10, v10, s57
    s_lshl_b32 s24, 1, s58
    s_sub_u32 s24, s24, 1
    v_and_b32 v11, s24, v{V_LANE}
    v_lshl_add_u32 v10, v11, 4, v10
    s_and_b32 s24, s59, 0xff
    s_bfe_u32 s25, s59, 0x80008
    s_lshr_b32 s59, s59, 16
    v_lshrrev_b32 v12, 1, v{V_G}
    v_mul_lo_u32 v12, v12, s24
    v_and_b32 v13, 1, v{V_G}
    v_mul_lo_u32 v13, v13, s25
    v_add_u32 v12, v12, v13
    v_lshrrev_b32 v13, 2, v{V_T}
    v_add_u32 v12, v12, v13
    s_add_u32 s24, s58, 4
    v_lshlrev_b32 v12, s24, v12
    v_and_b32 v13, 3, v{Ln}
    v_lshl_add_u32 v12, v13, 3, v12
    s_add_u32 s25, s{S_W4K}, {L_PK}
    v_add_u32 v{VPT}, s25, v12
    s_lshl_b32 s59, s59, s24
    v_add_u32 v{VPT+1}, s59, v{VPT}
    s_cmp_eq_u32 s58, 1
    s_cselect_b32 s24, 1024, 32
    """)
    if OPT('TLBW', 0):
        a('s_mov_b64 exec, 1'); a(f'buffer_load_dword v255, off, {SB}, s92'); a('s_mov_b64 exec, -1')
    tk = {}
    def pkload(i):
        def f():
            s = 92 + (i >> 1)
            a(f's_add_u32 m0, s{S_W4K}, {L_PK + 1024*i}')
            if i in (1, 3): a(f's_add_u32 s{s}, s{s}, s94')
            att.misc['pk'] = a(f'buffer_load_dwordx4 v243, {SB}, s{s} offen lds')
        return f
    for i in range(2, 8): a(f'v_add_u32 v{VPT+i}, s24, v{VPT+i-2}')
    for i in range(4): a(f'v_mov_b32 v{ONES+i}, 0x3f803f80')
    a.lines(f"""
    v_lshlrev_b32 v22, 8, v{V_G}
    v_lshl_add_u32 v22, v{V_T}, 3, v22
    v_add_u32 v22, {L_KV}, v22
    v_lshlrev_b32 v21, 7, v{V_T}
    v_add_u32 v21, s{XL}, v21
    v_xor_b32 v24, v{V_G}, v20
    v_xor_b32 v25, 4, v24
    v_lshl_add_u32 v24, v24, 4, v21
    v_lshl_add_u32 v25, v25, 4, v21
    s_lshr_b32 s24, s{RHO}, 1
    s_sub_u32 s24, s{S_J}, s24
    s_and_b32 s24, s24, 7
    s_lshl_b32 s24, s24, 11
    v_add_u32 v21, s24, v21
    v_and_b32 v18, 1, v{V_G}
    v_lshl_add_u32 v21, v18, 3, v21
    v_lshrrev_b32 v18, 1, v{V_G}
    v_xor_b32 v18, v18, v20
    """)
    for mt in range(4):
        a(f'v_xor_b32 v19, {2*mt}, v18'); a(f'v_lshl_add_u32 v{14+mt}, v19, 4, v21')
    a.lines(f"""
    v_lshrrev_b32 v12, 2, v{V_T}
    v_lshl_add_u32 v12, v{V_G}, 3, v12
    v_lshlrev_b32 v12, 7, v12
    v_and_b32 v13, 3, v{Ln}
    v_lshl_add_u32 v12, v13, 3, v12
    v_bfe_u32 v13, v{Ln}, 3, 1
    v_and_b32 v18, 1, v{V_G}
    v_lshl_add_u32 v13, v18, 1, v13
    """)
    a(f'v_xor_b32 v18, s{S_W}, v13'); a(f'v_lshl_add_u32 v{VQT}, v18, 5, v12')
    for k in range(1, 4):
        a(f's_add_u32 s24, s{S_W}, {k}'); a('s_and_b32 s24, s24, 3'); a(f's_sub_u32 s24, s24, s{S_W}'); a('s_lshl_b32 s24, s24, 14')
        a(f'v_add_u32 v{94+2*k}, s24, v24'); a(f'v_add_u32 v{95+2*k}, s24, v25')
    qkv_voffs(a, 12, 13, 18, 19, 21)
    a('s_mov_b32 s3, 0')
    layer_bases(a); const_scalars(a); layer_scalars(a); xl_addrs(a); pre_kvo(a, S_KV)
    a(f's_load_dword s{S_NONCE}, s[88:89], 0')
    att.init_regs()
    a.lines(f"""
    s_mov_b32 s{S_SLOW}, 1
    s_add_u32 s{S_PKL}, s{S_FLAG}, {F_XCC}
    v_lshrrev_b32 v156, 1, v{Ln}
    v_lshlrev_b32 v156, 10, v156
    v_and_b32 v19, 1, v{Ln}
    v_lshl_add_u32 v156, v19, 4, v156
    v_add_u32 v156, {FLAGS + F_XCC}, v156
    v_bfe_u32 v158, v{Ln}, 3, 2
    v_lshlrev_b32 v158, 7, v158
    v_lshl_add_u32 v158, v20, 2, v158
    v_lshlrev_b32 v{VQT+3}, 3, v{V_T}
    v_add_u32 v{VQT+3}, {L_KV}, v{VQT+3}
    s_lshl_b32 s24, s{S_W}, 7
    v_add_u32 v{VQT+4}, s24, v{VQT+3}
    s_lshl_b32 s24, s{S_W}, 11
    s_add_u32 s24, s24, {LQ0}
    v_add_u32 v243, s24, v12
    v_and_b32 v19, 3, v{V_T}
    """)
    QW = (102, 103, VQT+1, VQT+2)
    for k in range(4):
        a(f's_add_u32 s24, s{S_W}, {k}'); a('s_and_b32 s25, s24, 1'); a('s_lshl_b32 s25, s25, 8'); a('s_and_b32 s24, s24, 2'); a('s_lshl_b32 s24, s24, 9')
        a('s_add_u32 s24, s24, s25'); a(f'v_add_u32 v{QW[k]}, s24, v243')
    a('v_mov_b32 v243, v10')
    stamp(a, 'p0_setup', True)
    rest = [xload]*(8 - len(xtok)) + ([touch] if not OPT('Q_SHARE', 0) else [])
    a('s_waitcnt lgkmcnt(0)')
    a(f's_cmp_eq_u32 s{S_NONCE}, 0')
    a('s_cbranch_scc1 TAG_SLOW')
    a.raw('TAG_OK:')
    def d(b):
        b.raw('TAG_SLOW:')
        b('s_mov_b32 s24, 0')
        b.raw('TAG_LOOP:')
        b(f'buffer_load_dword v254, off, {SDBG}, 0 sc1')
        b('s_add_u32 s24, s24, 1')
        b('s_waitcnt vmcnt(0)')
        b(f'v_readfirstlane_b32 s{S_NONCE}, v254')
        b(f's_cmp_gt_u32 s24, {POLL_MAX}')
        b('s_cbranch_scc1 TAG_OK')
        b(f's_cmp_eq_u32 s{S_NONCE}, 0')
        b('s_cbranch_scc1 TAG_LOOP')
        b('s_branch TAG_OK')
    deferred.append(d)
    a.lines(f"""
    s_getreg_b32 s24, hwreg(HW_REG_XCC_ID, 0, 3)
    s_add_u32 s{S_XW}, s{S_NONCE}, s24
    s_lshl_b32 s24, s{S_G}, 7
    s_lshl_b32 s25, s{S_J}, 2
    s_add_u32 s24, s24, s25
    s_add_u32 s90, s24, {XFL + 4096}
    v_mov_b32 v254, s{S_XW}
    v_mov_b32 v157, s{S_NONCE}
    """)
    for x in rest: x()
    a.wait(kv)
    a('s_barrier')
    stamp(a, 'p0_kv', True)
    a(f's_bitcmp1_b32 s{S_J}, 0')
    a('s_cbranch_scc1 P0_S1V')
    state = (a.vm, a.vm_done, a.lg, a.lg_done, list(qtok))
    for var in 'KV':
        if var == 'V':
            a('s_branch P0_S1J'); a.raw('P0_S1V:')
            a.vm, a.vm_done, a.lg, a.lg_done = state[:4]; qtok[:] = state[4]
        at = []
        def kvread():
            s = len(at)
            if s >= 16: return
            a.wait(xtok[s >> 1])
            a(f'ds_read_b128 {vr(B+4*s,4)}, v{24+(s&1)} offset:{2048*(s>>1)}')
            a(f'ds_read_b64_tr_b16 {vr(AW+4*(s&3),2)}, v22 offset:{1024*s}')
            at.append(a(f'ds_read_b64_tr_b16 {vr(AW+4*(s&3)+2,2)}, v22 offset:{1024*s+128}'))
        for _ in range(3): kvread()
        for s in range(16):
            W, X = vr(AW+4*(s&3), 4), vr(B+4*s, 4)
            c = lambda r: '0' if s == 0 else vr(r, 4)
            qp = qparts() if s >= OPT('Q_FROM', 8) and len(qtok) < 16 else None
            if s == 0: a.wait(at[0])
            a(f'{M16} {vr(KA,4)}, {W}, {X}, {c(KA)}' if var == 'K' else f'{M16} {vr(KA,4)}, {X}, {W}, {c(KA)}')
            if qp: a(qp[0])
            kvread()
            a(f'{M16} {vr(CS,4)}, {W}, {vr(ONES,4)}, {c(CS)}' if var == 'K' else f'{M16} {vr(CS,4)}, {vr(ONES,4)}, {W}, {c(CS)}')
            if qp: a(qp[1]); a(qp[2])
            a(f'{M16} {vr(SXR,4)}, {vr(ONES,4)}, {X}, {c(SXR)}')
            if qp: qp[3]()
            a(f'{M16} {vr(GR,4)}, {X}, {X}, {c(GR)}')
            if s < 15: a.wait(at[s+1])
    a.raw('P0_S1J:')
    for mt in range(4): xr = a(f'ds_read_b64 {vr(XRES+2*mt,2)}, v{14+mt}')
    a.lines(f"""
    v_lshrrev_b32 v21, 2, v{V_T}
    v_cmp_eq_u32 s[24:25], v21, v{V_G}
    v_cmp_eq_u32 s[26:27], 1, v19
    v_cmp_eq_u32 s[28:29], 2, v19
    v_cmp_eq_u32 vcc, 3, v19
    v_mul_f32 v{SXR}, {f32(1/512)}, v{SXR}
    v_cndmask_b32 v{GR}, v{GR}, v{GR+1}, s[26:27]
    v_cndmask_b32 v{GR}, v{GR}, v{GR+2}, s[28:29]
    v_cndmask_b32 v{GR}, v{GR}, v{GR+3}, vcc
    v_cndmask_b32 v{GR}, 0, v{GR}, s[24:25]
    """)
    for x in allreduce_g(GR, GR+1): a(x)
    a.lines(f"""
    v_mul_f32 v{GR}, {f32(1/512)}, v{GR}
    v_fma_f32 v{GR}, -v{SXR}, v{SXR}, v{GR}
    v_max_f32 v{GR}, 0, v{GR}
    v_add_f32 v{GR}, {f32(1e-5)}, v{GR}
    v_rsq_f32 v{RS}, v{GR}
    v_mul_f32 v{NM}, v{SXR}, v{RS}
    """)
    last = kv_epilogue(a, 'P0', KA, KA, CS, RS, NM, AW, 12, 13, 18)
    stamp(a, 'p0_s1', True)
    while len(qtok) < OPT('Q_PRE', 10): qload()
    a.wait(xr)
    cs_addr(a, 79, S_GB)
    side = []
    side += [f'buffer_store_dwordx4 {vr(XRES,4)}, v{V_L16}, {WS}, s{S_XRES} offen sc1',
             f'buffer_store_dwordx4 {vr(XRES+4,4)}, v{V_L16}, {WS}, s{S_XRES} offen offset:1024 sc1',
             's_add_u32 s27, s79, 4096', f'buffer_store_dwordx4 v[204:207], v{V_L16}, {WS}, s27 offen sc1',
             f'v_and_b32 v255, 1, v{V_G}', 'v_lshlrev_b32 v255, 14, v255', 'v_add_u32 v255, v255, v7',
             f'buffer_store_dwordx4 {vr(XRES,4)}, v255, {WS}, s{S_OST} offen sc1', f'buffer_store_dwordx4 {vr(XRES,4)}, v255, {WS}, s{S_OST+1} offen sc1',
             f'buffer_store_dword v{XRES}, v242, {WS}, s{S_ST1O} offen sc1']
    a(f'v_mul_f32 v{RS}, {f32(0.25*LOG2E)}, v{RS}')
    a(f'v_mul_f32 v{NM}, {f32(0.25*LOG2E)}, v{NM}')
    FLAG_AT = OPT('FLAG_AT', 8)
    SN = AQ
    rd = []
    XLD = f'buffer_load_dword v27, v26, {WS}, s{S_XLINE} offen sc1'
    def sreads(s):
        if s >= 16: return []
        R = WIN + 16*(s % 3)
        L = []
        if s % 4 == 0:
            def sync():
                a.wait(qtok[s+3], last if s == FLAG_AT else None)
                a('s_barrier')
                if s == 0: a(f'ds_write_b64 v{VQT+4}, {vr(RS,2)}'); a(f'ds_write_b64 v{VQT+4}, {vr(RS,2)} offset:512')
                if s == 8:
                    for nt in range(4): a(f'ds_read_b64 {vr(SN+2*nt,2)}, v{VQT+4} offset:{128*nt}')
                if s == FLAG_AT:
                    a.lines(f"""
                    s_cmp_eq_u32 s{S_W}, 0
                    s_cselect_b32 s24, s{S_XLW}, {WS_USED}
                    s_cmp_eq_u32 s{S_W}, 2
                    s_cselect_b32 s90, s90, {WS_USED}
                    s_mov_b64 exec, 1
                    buffer_store_dword v157, off, {WS}, s24
                    s_mov_b64 exec, -1
                    """)
            L.append(sync)
        def ar_():
            a(f'ds_read_b64_tr_b16 {vr(R,2)}, v{VQT} offset:{L_WQ + 4096*s}')
            a(f'ds_read_b64_tr_b16 {vr(R+2,2)}, v{VQT} offset:{L_WQ + 4096*s + 512}')
        if L: f0 = L.pop(); L.append(lambda: (f0(), ar_()))
        else: L.append(ar_)
        for nt in range(1, 4):
            def br_(nt=nt):
                t = a(f'ds_read_b128 {vr(R+4*nt,4)}, v{94+2*nt+(s&1)} offset:{2048*(s>>1)}')
                if nt == 3: rd.append(t)
            L.append(br_)
        return L
    for s in range(2):
        for x in sreads(s): x()
    a.wait(rd[0])
    for s in range(16):
        R = WIN + 16*(s % 3)
        nx = sreads(s+2)
        for t in range(5):
            if t < 4: a(f'{M16} {vr(QA+4*t,4)}, {vr(R,4)}, {vr(R+4*t,4) if t else vr(B+4*s,4)}, {"0" if s == 0 else vr(QA+4*t,4)}')
            else: a(f'{M16} {vr(CQ,4)}, {vr(R,4)}, {vr(ONES,4)}, {"0" if s == 0 else vr(CQ,4)}')
            if t == 4 and s < 15: a.wait(rd[s+1])
            if nx: nx.pop(0)()
            if t == 1 and len(qtok) < 16: qload()
            if s == OPT('XLI', 13) and t == 1: xlt = a(XLD)
    stamp(a, 'p0_q', True)
    a.wait(xlt)
    a(f'v_cmp_ne_u32 vcc, s{S_NONCE}, v27')
    a('s_cbranch_vccnz XL0_SLOW')
    a.raw('XL0_OK:')
    def d(b):
        b.raw('XL0_SLOW:')
        b('s_mov_b32 s25, 0')
        b.raw('XL0_POLL:')
        b(XLD)
        b('s_add_u32 s25, s25, 1')
        b('s_waitcnt vmcnt(0)')
        b(f's_cmp_gt_u32 s25, {POLL_MAX}')
        b('s_cbranch_scc1 XL0_OK')
        b(f'v_cmp_ne_u32 vcc, s{S_NONCE}, v27')
        b('s_cbranch_vccz XL0_OK')
        b('s_cmp_lt_u32 s25, 16')
        b('s_cbranch_scc1 XL0_POLL')
        b('s_cmp_lg_u32 s25, 16')
        b('s_cbranch_scc1 XL0_NOST')
        b('s_mov_b64 exec, 1')
        b(f'buffer_store_dword v254, off, {WS}, s90 sc1')
        b('s_mov_b64 exec, -1')
        b.raw('XL0_NOST:')
        b('s_sleep 8')
        xcc_load(b, 27, 158)
        b('s_waitcnt vmcnt(0)')
        b('v_and_b32 v27, -8, v27')
        b(f'v_cmp_ne_u32 vcc, s{S_NONCE}, v27')
        b('s_cbranch_vccnz XL0_POLL')
        b('s_branch XL0_OK')
    deferred.append(d)
    stamp(a, 'xl_polled')
    att.first_loads()
    att.xl_pass()
    a('s_load_dwordx2 s[80:81], s[0:1], 64')
    for nt in range(4):
        for h in range(2):
            r = vr(QA+4*nt+2*h, 2)
            a(f'v_pk_mul_f32 {r}, {r}, {vr(SN+2*nt,2)} op_sel_hi:[1,0]')
        for h in range(2):
            r = vr(QA+4*nt+2*h, 2)
            a(f'v_pk_fma_f32 {r}, {vr(CQ+2*h,2)}, {vr(SN+2*nt,2)}, {r} op_sel:[0,1,0] op_sel_hi:[1,1,1] neg_lo:[1,0,0] neg_hi:[1,0,0]')
        a(f'v_cvt_pk_bf16_f32 v{QA+4*nt}, v{QA+4*nt}, v{QA+4*nt+1}'); a(f'v_cvt_pk_bf16_f32 v{QA+4*nt+1}, v{QA+4*nt+2}, v{QA+4*nt+3}')
        a(f'ds_write_b64 v{QW[nt]}, {vr(QA+4*nt,2)}')
    a.wait_all(vm=False)
    a('s_barrier')
    att.q_read(LQ0)
    att.VPT = VPT
    for k in range(4): a(f'v_mov_b32 v{204+k}, v{CS+k}')
    a('v_mov_b32 v242, v26')
    def st0():
        a('s_mov_b64 exec, 1')
        a(f'buffer_store_dword v254, off, {WS}, s90 sc1')
        a('s_mov_b64 exec, -1')
    def fin():
        a.lines(f"""
        s_mov_b32 s{S_CSA}, s79
        s_add_u32 s{S_CSA+1}, s79, 4096
        s_add_u32 s{S_KVO}, s{S_KVO}, {KV_SZ}
        s_mov_b32 s8, s80
        s_mov_b32 s9, s81
        s_mov_b32 s10, {2048*1024}
        s_mov_b32 s11, 0x20000
        """)
    att.more_loads()
    for i in range(4): pkload(i)()
    a(f's_add_u32 s91, s79, s{W1K}')
    fin()
    em = lambda xs: (lambda: [a(x) for x in xs])
    att.early = [st0, em([f'buffer_store_dwordx4 {vr(CQ,4)}, v{V_L16}, {WS}, s91 offen sc1']), em(side[0:1]), em(side[1:2]),
                 em([side[2], f's_cmp_eq_u32 s{S_W}, 0', f's_cselect_b32 s27, s27, {WS_USED}', side[3]]), em(side[4:8]), em(side[8:9]), em(side[9:10])]

def gen_main(a):
    deferred = []
    ids(a, 'MAIN_END')
    if PROF:
        a('s_memrealtime s[70:71]'); a.wait_all(vm=False); a('v_writelane_b32 v0, s70, 31')
    stamp(a, 'start', True)
    att0 = Att(a, deferred, 0)
    gen_phase0(a, deferred, att0)
    misc = att0.loop()
    a.raw('ATT_EPI:')
    join = (a.vm - misc['xt'][1])
    stamp(a, 'att_end')
    gen_att_epilogue(a, misc, deferred)
    stamp(a, 'o_stored')
    gen_p1(a, misc, deferred)
    gen_p23(a, deferred)
    stamp(a, 'f2_end')
    a.lines(f"""
    s_cmp_eq_u32 s{S_L}, 0
    s_cbranch_scc1 NEXT_LAYER
    """)
    gen_out(a)
    stamp_dump(a)
    a.raw('MAIN_END:')
    a('s_endpgm')
    a.raw('NEXT_LAYER:')
    st_voff(a, 137)
    x_publish(a, XR, 24, 120, S_X2O, S_ST2O, 137, sc=D_SC, deferred=deferred)
    pre = gen_p4_pre(a)
    hop(a, F_X2, deferred, 'x2', 5)
    gen_p4(a, pre)
    stamp(a, 'p4_end')
    a(f's_mov_b32 s{S_L}, 1')
    a(f'v_mov_b32 v28, s{S_NONCE}')
    layer_bases(a); xl_addrs(a)
    att1 = Att(a, deferred, 1)
    att1.init_regs()
    a.wait_all()
    a('s_barrier')
    flag_set(a, 0, deferred, sreg=S_XLW, vd=28)
    att1.q_read()
    att1.xl_poll()
    a('s_barrier')
    stamp(a, 'xl_polled')
    att1.first_loads()
    layer_scalars(a)
    m1 = att1.loop()
    assert a.vm - m1['xt'][1] == join
    a('s_branch ATT_EPI')
    gen_fallback(a)
    for d in deferred: d(a)
    a.raw('CODE_END:')

KD = '''.amdhsa_kernel {name}
  .amdhsa_next_free_vgpr {nv}
  .amdhsa_next_free_sgpr 102
  .amdhsa_accum_offset {acc}
  .amdhsa_group_segment_fixed_size 0
  .amdhsa_kernarg_size 88
  .amdhsa_user_sgpr_count 2
  .amdhsa_user_sgpr_kernarg_segment_ptr 1
  .amdhsa_system_sgpr_workgroup_id_x 1
.end_amdhsa_kernel
'''
def build():
    hdr = open('cdna_kernels/' + NAME + '.s.ref').read().split('; Override launch')[0]
    kn = NAME + '_kernel'
    out = hdr + f'; @launch grid=(256,1,1) block=(256,1,1) lds={LDS_TOTAL}\n'
    a = Asm()
    a.raw('.amdgcn_target "amdgcn-amd-amdhsa--gfx950"'); a.raw('.text')
    a.raw(f'.globl {kn}'); a.raw('.p2align 8'); a.raw(f'.type {kn},@function'); a.raw(f'{kn}:')
    gen_main(a)
    txt = a.text()
    if DIAG:
        lane = lambda x: (STAMPS.index(x.split('@')[0]) + (32 if '@1' in x else 0)) if x != 'end' else None
        A, B, F = lane(DIAG[0]), lane(DIAG[1]), int(DIAG[2])
        rb = f'    v_readlane_b32 s25, v0, {B}\n' if B is not None else '    s_mov_b32 s25, s70\n'
        txt = txt.replace('DIAG_PLACEHOLDER:\n', f'''    s_memrealtime s[70:71]
    s_waitcnt vmcnt(0) lgkmcnt(0)
    v_readlane_b32 s24, v0, {A}
{rb}    s_nop 4
    s_sub_u32 s24, s25, s24
    s_min_u32 s24, s24, 10000
    s_mul_i32 s24, s24, {F}
DIAG_LOOP:
    s_memrealtime s[26:27]
    s_waitcnt lgkmcnt(0)
    s_sub_u32 s25, s26, s70
    s_cmp_lt_u32 s25, s24
    s_cbranch_scc1 DIAG_LOOP
''')
    out += txt
    out += '.section .rodata,"a"\n.p2align 6\n' + KD.format(name=kn, nv=512, acc=256)
    sys.stderr.write(f'instructions: {len(a.ins)}, nop states inserted: {a.nops}\n')
    return out

if __name__ == '__main__':
    dst = sys.argv[1] if len(sys.argv) > 1 else 'cdna_kernels/' + NAME + '.s'
    if len(sys.argv) > 2 and sys.argv[2].startswith('prof'): PROF = True
    if len(sys.argv) > 2 and sys.argv[2] == 'profrt': STAMP_OP = 's_memrealtime'
    open(dst, 'w').write(build())
    if PROF: open(dst + '.stamps', 'w').write(' '.join(STAMPS))
```

```python
import sys, struct, math, os
OPT = lambda k, d=0: int(os.environ.get(k, d))
from dsl import *
from layout import *

def f32(x): return '0x%08x' % struct.unpack('<I', struct.pack('<f', x))[0]
LOG2E = 1.4426950408889634
LN2 = 0.6931471805599453
M16 = 'v_mfma_f32_16x16x32_bf16'
M32 = 'v_mfma_f32_32x32x16_bf16'
NAME = 'interleave_layers__grouped_kv_mqa__dense_activation_silu__prompt'

S_L = 3
SRD_WS = 4
SRD_B = 8
S_G, S_J, S_W = 12, 13, 14
S_GB, S_GBN, S_KV, S_KVN = 15, 16, 17, 18
S_VMASK = 20
S_T = 24
WS = sr(SRD_WS, 4); SB = sr(SRD_B, 4)
V_L16, V_T, V_G = 1, 2, 3

PROF = False
STAMP_OP = 's_memtime'
STAMPS = []
STAMP_SKIP = os.environ.get('STAMP_SKIP', '').split(',')
DIAG = os.environ.get('DIAG', '').split(',') if os.environ.get('DIAG') else None
def stamp(a, name, always=False):
    if not PROF or any(name.startswith(p) for p in STAMP_SKIP if p): return
    if DIAG and name not in [x.split('@')[0] for x in DIAG[:2]]: return
    if name in STAMPS: i = STAMPS.index(name)
    else: i = len(STAMPS); STAMPS.append(name)
    assert i < 31
    a(f'{STAMP_OP} s[70:71]')
    a.wait_all(vm=False)
    if always: a(f'v_writelane_b32 v0, s70, {i}')
    else:
        a(f's_cmp_eq_u32 s{S_L}, 1')
        l = a.label_name('ST'); l2 = a.label_name('ST')
        a(f's_cbranch_scc1 {l}')
        a(f'v_writelane_b32 v0, s70, {i}')
        a(f's_branch {l2}')
        a.raw(f'{l}:')
        a(f'v_writelane_b32 v0, s70, {32+i}')
        a.raw(f'{l2}:')
def stamp_dump(a):
    if not PROF: return
    if DIAG:
        a.raw('DIAG_PLACEHOLDER:')
        return
    a('s_memrealtime s[70:71]')
    a.wait_all()
    a.lines(f'''
    v_writelane_b32 v0, s70, 63
    s_lshl_b32 s24, s2, 2
    s_add_u32 s24, s24, s{S_W}
    s_lshl_b32 s24, s24, 8
    s_add_u32 s24, s24, {PROF_OFF}
    v_lshrrev_b32 v4, 2, v{V_L16}
    buffer_store_dword v0, v4, {WS}, s24 offen
    ''')
    a.wait_all()

V_LANE = 23
def ids(a, end):
    a.lines(f'''
    s_cmp_ge_u32 s2, 256
    s_cbranch_scc1 {end}
    s_load_dwordx2 s[4:5], s[0:1], 80
    v_lshrrev_b32 v4, 6, v0
    s_and_b32 s24, s2, 7
    s_lshr_b32 s25, s2, 3
    v_readfirstlane_b32 s{S_W}, v4
    s_and_b32 s{S_J}, s25, 7
    s_lshr_b32 s25, s25, 3
    s_lshl_b32 s{S_G}, s24, 2
    s_add_u32 s{S_G}, s{S_G}, s25
    v_and_b32 v{V_LANE}, 63, v0
    v_lshlrev_b32 v{V_L16}, 4, v{V_LANE}
    v_and_b32 v{V_T}, 15, v{V_LANE}
    v_lshrrev_b32 v{V_G}, 4, v{V_LANE}
    s_mov_b32 s6, {WS_USED}
    s_mov_b32 s7, 0x20000
    ''')
def layer_bases(a):
    a.lines(f'''
    s_mul_i32 s{S_GB}, s{S_L}, {GB_L}
    s_mul_i32 s24, s{S_G}, {GB_G}
    s_add_u32 s{S_GB}, s{S_GB}, s24
    s_add_u32 s{S_GB}, s{S_GB}, {GB0}
    s_add_u32 s{S_GBN}, s{S_GB}, {GB_L}
    s_mul_i32 s{S_KV}, s{S_L}, {KV_SZ}
    s_add_u32 s{S_KV}, s{S_KV}, {KV0}
    s_add_u32 s{S_KVN}, s{S_KV}, {KV_SZ}
    ''')

def x_publish_addr(a, sx, sst, s_gb, o_x, o_st):
    a.lines(f'''
    s_lshl_b32 s24, s{S_W}, 14
    s_lshl_b32 s25, s{S_J}, 11
    s_add_u32 s24, s24, s25
    s_add_u32 s24, s24, s{s_gb}
    s_add_u32 s{sx}, s24, {o_x}
    s_lshl_b32 s25, s{S_J}, 9
    s_lshl_b32 s26, s{S_W}, 7
    s_add_u32 s25, s25, s26
    s_add_u32 s25, s25, s{s_gb}
    s_add_u32 s{sst}, s25, {o_st}
    ''')
def st_voff(a, v):
    a(f'v_lshrrev_b32 v{v}, 1, v{V_G}')
    a(f'v_lshlrev_b32 v{v}, 2, v{v}')
    a(f'v_lshl_add_u32 v{v}, v{V_T}, 3, v{v}')
def x_publish(a, acc, pk, tmp, sx, sst, vst, have_pk=False, sc='', deferred=None):
    for h in range(2):
        if not have_pk:
            for i in range(4*h, 4*h+4):
                a(f'v_cvt_pk_bf16_f32 v{pk+i}, v{acc+2*i}, v{acc+2*i+1}')
        a(f'buffer_store_dwordx4 {vr(pk+4*h,4)}, v{V_L16}, {WS}, s{sx} offen offset:{1024*h} {sc}')
    s, q = tmp, tmp + 2
    a(f'v_pk_add_f32 {vr(s,2)}, {vr(acc,2)}, {vr(acc+2,2)}')
    a(f'v_pk_mul_f32 {vr(q,2)}, {vr(acc,2)}, {vr(acc,2)}')
    for i in range(1, 8):
        if i > 1: a(f'v_pk_add_f32 {vr(s,2)}, {vr(s,2)}, {vr(acc+2*i,2)}')
        a(f'v_pk_fma_f32 {vr(q,2)}, {vr(acc+2*i,2)}, {vr(acc+2*i,2)}, {vr(q,2)}')
    a(f'v_add_f32 v{s}, v{s}, v{s+1}')
    a(f'v_add_f32 v{q}, v{q}, v{q+1}')
    a(f'v_permlane32_swap_b32 v{s}, v{q}')
    a(f'v_add_f32 v{s}, v{s}, v{q}')
    a(f'v_mov_b32 v{q}, v{s}')
    a(f'v_permlane16_swap_b32 v{s}, v{q}')
    a(f'v_add_f32 v{s}, v{s}, v{q}')
    t = a(f'buffer_store_dword v{s}, v{vst}, {WS}, s{sst} offen {sc}')
    if not sc:
        dup_slow(a, deferred, [f'buffer_store_dwordx4 {vr(pk+4*h,4)}, v{V_L16}, {WS}, s{sx} offen offset:{1024*h}' for h in range(2)]
                 + [f'buffer_store_dword v{s}, v{vst}, {WS}, s{sst} offen'])
    return t

def rstd_from(a, st, out, scale, pk=True):
    L = []
    for i in range(4): L.append(f'v_pk_add_f32 {vr(st+4*i,2)}, {vr(st+4*i,2)}, {vr(st+4*i+2,2)}')
    L.append(f'v_pk_add_f32 {vr(st,2)}, {vr(st,2)}, {vr(st+4,2)}')
    L.append(f'v_pk_add_f32 {vr(st+8,2)}, {vr(st+8,2)}, {vr(st+12,2)}')
    L.append(f'v_pk_add_f32 {vr(st,2)}, {vr(st,2)}, {vr(st+8,2)}')
    if not pk:
        L = []
        for d, s in [(4*i, 4*i+2) for i in range(4)] + [(0, 4), (8, 12), (0, 8)]:
            L += [f'v_add_f32 v{st+d}, v{st+d}, v{st+s}', f'v_add_f32 v{st+d+1}, v{st+d+1}, v{st+s+1}']
    L.append(f'v_mul_f32 v{st}, {f32(1/512)}, v{st}')
    L.append(f'v_mul_f32 v{st+1}, {f32(1/512)}, v{st+1}')
    L.append(f'v_fma_f32 v{st+1}, -v{st}, v{st}, v{st+1}')
    L.append(f'v_max_f32 v{st+1}, 0, v{st+1}')
    L.append(f'v_add_f32 v{st+1}, {f32(1e-5)}, v{st+1}')
    L.append(f'v_rsq_f32 v{out}, v{st+1}')
    if scale != 1.0: L.append(f'v_mul_f32 v{out}, {f32(scale)}, v{out}')
    return L

LDS_WO, LDS_WQ, LDS_SCR, LDS_ST, LDS_Q = 0, 65536, 131072, 147456, 155648
LDS_TOTAL = 163840
VQ, VS0, VS1, VP, VO, VKV = 8, 24, 40, 56, 64, 128
XR = 8
OUT_SC = 'sc1' if OPT('OUT_SC1', 0) else ''
POLL_MAX = 400000
FORCE_SLOW = OPT('FORCE_SLOW', 0)
H_SC = 'sc1' if OPT('H_SC1', 1) else ''
D_SC = 'sc1' if OPT('D_SC1', 0) else ''
NEED_FENCE = False
S_FLAG, S_FLINE, S_SLOW = 19, 22, 23
S_IDX, S_KB = 30, 31
S_KP, S_WP = 32, 34
S_OST = 36
S_C = 40
S_ROT = 44
S_X1O, S_ST1O, S_X2O, S_ST2O = 52, 53, 52, 53
S_HF, S_HH, S_HB, S_XD = 56, 57, 58, 59
S_QO, S_KVO, S_XRES, S_W2L, S_WQL = 60, 62, 52, 64, 65
S_STD, S_STN = 66, 67
S_NONCE, S_XLINE, S_XLW, S_XGL = 43, 39, 68, 69

def w2reg(f):
    if f < 16: return ar(192 + 4*f, 4)
    if f < 42: return vr(152 + 4*(f-16), 4)
    return vr(144 + 4*(f-42), 4)
def w1reg(i, ks): return ar((i*16 + ks)*4, 4)

def flag_set(a, line_off, deferred, sreg=None, vd=7):
    skip = a.label_name('FS'); slow = a.label_name('FSS')
    sreg = sreg or S_FLAG
    a(f's_cmp_lg_u32 s{S_W}, 0')
    a(f's_cbranch_scc1 {skip}')
    a(f's_cmp_lg_u32 s{S_SLOW}, 0')
    a(f's_cbranch_scc1 {slow}')
    a('s_mov_b64 exec, 1')
    a.raw(f'buffer_store_dword v{vd}, off, {WS}, s{sreg} offset:{line_off}')
    a('s_mov_b64 exec, -1')
    a.raw(f'{skip}:')
    def d(b):
        b.raw(f'{slow}:')
        if NEED_FENCE and sreg == S_FLAG:
            b.raw('buffer_wbl2 sc1')
            b('s_waitcnt vmcnt(0)')
        b('s_mov_b64 exec, 1')
        b(f'buffer_store_dword v{vd}, off, {WS}, s{sreg} offset:{line_off} sc1')
        b('s_mov_b64 exec, -1')
        b(f's_branch {skip}')
    deferred.append(d)

S_FLW, S_FA, S_FB = 54, 55, 63
def wflag(a, deferred, line_off, vd=7, sreg=None):
    slow = a.label_name('WS'); back = a.label_name('WB')
    sreg = sreg or S_FLW
    a(f's_cmp_lg_u32 s{S_SLOW}, 0')
    a('s_mov_b64 exec, 1')
    a(f's_cbranch_scc1 {slow}')
    t = a(f'buffer_store_dword v{vd}, off, {WS}, s{sreg} offset:{line_off}')
    a.raw(f'{back}:')
    a('s_mov_b64 exec, -1')
    def d(b):
        b.raw(f'{slow}:')
        b(f'buffer_store_dword v{vd}, off, {WS}, s{sreg} offset:{line_off} sc1')
        b(f's_branch {back}')
    deferred.append(d)
    return t
def wpoll(a, load, vtmp):
    lp = a.label_name('WP'); dn = a.label_name('WD')
    a('s_mov_b32 s25, 0')
    a.raw(f'{lp}:')
    a(load)
    a('s_add_u32 s25, s25, 1')
    a.wait_all(lg=False)
    a(f's_cmp_gt_u32 s25, {POLL_MAX}')
    a(f's_cbranch_scc1 {dn}')
    a(f'v_cmp_ne_u32 vcc, s{S_NONCE}, v{vtmp}')
    a(f's_cbranch_vccnz {lp}')
    a.raw(f'{dn}:')

def dup_slow(a, deferred, stores):
    slow = a.label_name('DS'); back = a.label_name('DB')
    a(f's_cmp_lg_u32 s{S_SLOW}, 0')
    a(f's_cbranch_scc1 {slow}')
    a.raw(f'{back}:')
    def d(b):
        b.raw(f'{slow}:')
        b('s_waitcnt vmcnt(0)')
        for s in stores: b(s + ' sc1')
        b('s_waitcnt vmcnt(0)')
        b(f's_branch {back}')
    deferred.append(d)

def acquire_slow(a, deferred):
    if not NEED_FENCE: return
    slow = a.label_name('AQS'); back = a.label_name('AQB')
    a(f's_cmp_lg_u32 s{S_SLOW}, 0')
    a(f's_cbranch_scc1 {slow}')
    a.raw(f'{back}:')
    def d(b):
        b.raw(f'{slow}:')
        b.raw('buffer_inv sc1')
        b('s_waitcnt vmcnt(0)')
        b(f's_branch {back}')
    deferred.append(d)

def hop(a, line_off, deferred, tag, vtmp):
    lp = a.label_name('POLL'); dn = a.label_name('POLLD'); sk = a.label_name('POLLS')
    a.wait_all(lg=False)
    stamp(a, tag + '_drained')
    a('s_barrier')
    flag_set(a, line_off, deferred)
    a(f's_cmp_lg_u32 s{S_W}, 1')
    a(f's_cbranch_scc1 {sk}')
    a('s_mov_b32 s25, 0')
    a.raw(f'{lp}:')
    a.raw(f'buffer_load_dword v{vtmp}, v6, {WS}, s{S_FLINE} offen offset:{line_off} sc1')
    a(f's_add_u32 s25, s25, 1')
    a('s_waitcnt vmcnt(0)')
    a(f's_cmp_gt_u32 s25, {POLL_MAX}')
    a(f's_cbranch_scc1 {dn}')
    a(f'v_cmp_ne_u32 vcc, s{S_NONCE}, v{vtmp}')
    a(f's_cbranch_vccnz {lp}')
    a.raw(f'{dn}:')
    acquire_slow(a, deferred)
    a.raw(f'{sk}:')
    a('s_barrier')
    stamp(a, tag + '_polled')

def pre_rot(a):
    a(f's_lshl_b32 s26, s{S_W}, 14')
    a(f's_lshl_b32 s27, s{S_J}, 11')
    for pp in range(8):
        a(f's_add_u32 s{S_ROT+pp}, s27, s26')
        if pp < 7:
            a('s_add_u32 s27, s27, 2048')
            a('s_and_b32 s27, s27, 0x3fff')

NBS = 8
def bfrag_load(B, voff, s):
    return f'buffer_load_dwordx4 {vr(B+4*(s % NBS),4)}, v{voff}, {WS}, s{S_ROT+(s>>1)} offen offset:{1024*(s&1)} sc1'

def gemm_w(a, B, voff, AW, nwin, ntile, lds_addr_fn, pre, mfmas, late=(), tag=None, extras=(), hooks={}):
    LA = OPT('GW_LA', 7)
    assert LA < NBS and nwin >= 2*ntile + 1
    btoks = [a(bfrag_load(B, voff, s)) for s in range(LA)]
    late = list(late); ltok = None; extras = list(extras)
    n = 16*ntile
    if 'pre' in hooks: hooks['pre']()
    atoks = list(pre)
    a.wait(atoks[ntile-1], btoks[0])
    for k in range(n):
        s, t = divmod(k, ntile)
        if tag and OPT('P1_STAMPS') and t == 0 and s in (0, 4, 8, 12): stamp(a, f'{tag}_s{s}')
        for m in mfmas(s, t, vr(AW + 4*(k % nwin), 4), vr(B+4*(s % NBS), 4)): a(m)
        if t == ntile - 1 and s < 15: a.wait(atoks[k + ntile], btoks[s+1])
        if t == 0 and s in hooks: hooks[s]()
        if t == 1:
            if len(btoks) < 16: btoks.append(a(bfrag_load(B, voff, len(btoks))))
            elif late: ltok = a(late.pop(0)) or ltok
        if len(atoks) < n:
            kk = len(atoks); v, off = lds_addr_fn(kk)
            atoks.append(a(f'ds_read_b128 {vr(AW + 4*(kk % nwin),4)}, v{v} offset:{off}'))
        if extras and s >= 2 and t != 1: a(extras.pop(0))
    for x in extras: a(x)
    for x in late: ltok = a(x) or ltok
    return ltok

def pre_kvo(a, s_kv=S_KVN):
    a.lines(f'''
    s_lshl_b32 s24, s{S_G}, 1
    s_lshr_b32 s25, s{S_W}, 1
    s_add_u32 s24, s24, s25
    s_lshl_b32 s24, s24, 11
    s_add_u32 s24, s24, s{s_kv}
    s_and_b32 s25, s{S_W}, 1
    s_lshl_b32 s26, s25, 8
    s_lshl_b32 s27, s25, 9
    s_add_u32 s27, s27, 1024
    s_bitcmp1_b32 s{S_J}, 0
    s_cselect_b32 s26, s27, s26
    s_add_u32 s24, s24, s26
    s_lshr_b32 s25, s{S_J}, 1
    s_cmp_eq_u32 s25, s{S_W}
    s_cselect_b32 s{S_KVO}, s24, {WS_USED}
    s_lshr_b32 s24, s{S_W}, 1
    s_lshl_b32 s24, s24, 10
    s_and_b32 s25, s{S_W}, 1
    s_lshl_b32 s25, s25, 8
    s_add_u32 s24, s24, s25
    s_add_u32 s{S_QO}, s24, {LDS_Q}
    ''')
def pre_st_n(a):
    a.lines(f'''
    s_lshl_b32 s24, s{S_W}, 7
    s_add_u32 s24, s24, s{S_GBN}
    s_add_u32 s{S_STN}, s24, {O_STIN}
    ''')
def qkv_voffs(a, vq, vv, vb, t0, t1):
    a.lines(f'''
    v_lshrrev_b32 v{t0}, 1, v{V_G}
    v_and_b32 v{t1}, 1, v{V_G}
    v_lshlrev_b32 v{vq}, 9, v{t0}
    v_lshl_add_u32 v{vq}, v{V_T}, 4, v{vq}
    v_lshl_add_u32 v{vq}, v{t1}, 3, v{vq}
    v_lshlrev_b32 v{vv}, 8, v{t1}
    v_lshl_add_u32 v{vv}, v{V_T}, 4, v{vv}
    v_lshl_add_u32 v{vv}, v{t0}, 3, v{vv}
    v_lshlrev_b32 v{vb}, 4, v{V_G}
    ''')

def cs_addr(a, sd, s_gb):
    a(f's_lshl_b32 s24, s{S_J}, 13')
    a(f's_add_u32 s24, s24, s{s_gb}')
    a(f's_add_u32 s{sd}, s24, {O_Q}')
def kv_epilogue(a, pfx, KA, VA, CS, RS, NM, T, vq, vv, vb):
    a(f's_bitcmp1_b32 s{S_J}, 0')
    a(f's_cbranch_scc1 {pfx}_EV')
    for r in range(4):
        a(f'v_mul_f32 v{KA+r}, v{KA+r}, v{RS}')
        a(f'v_fma_f32 v{KA+r}, -v{CS+r}, v{NM}, v{KA+r}')
    a(f'v_cvt_pk_bf16_f32 v{KA}, v{KA}, v{KA+1}'); a(f'v_cvt_pk_bf16_f32 v{KA+1}, v{KA+2}, v{KA+3}')
    a.raw(f'buffer_store_dwordx2 {vr(KA,2)}, v{vq}, {WS}, s{S_KVO} offen sc1')
    a(f's_branch {pfx}_EJ')
    a.raw(f'{pfx}_EV:')
    for r in range(4):
        a.raw(f'ds_bpermute_b32 v{T+r}, v{vb}, v{RS} offset:{4*r}')
        a.raw(f'ds_bpermute_b32 v{T+4+r}, v{vb}, v{NM} offset:{4*r}')
    a('s_waitcnt lgkmcnt(0)')
    for r in range(4):
        a(f'v_mul_f32 v{VA+r}, v{VA+r}, v{T+r}')
        a(f'v_fma_f32 v{VA+r}, -v{CS}, v{T+4+r}, v{VA+r}')
    a(f'v_cvt_pk_bf16_f32 v{VA}, v{VA}, v{VA+1}'); a(f'v_cvt_pk_bf16_f32 v{VA+1}, v{VA+2}, v{VA+3}')
    t = a(f'buffer_store_dwordx2 {vr(VA,2)}, v{vv}, {WS}, s{S_KVO} offen sc1')
    a.raw(f'{pfx}_EJ:')
    return t

P4_ACC, P4_B, P4_AW, P4_NW, P4_ST, P4_RS = 8, 32, 64, 14, 120, 136
P4_CS = (124, 128, 132, 144, 148)
def p4_addr(k):
    s, t = divmod(k, 5)
    off = s*5120 + t*1024
    return (140, off) if s < 8 else (141, off - 40960)
def gen_p4_pre(a):
    a.lines(f'''
    v_add_u32 v140, {LDS_WQ}, v{V_L16}
    v_add_u32 v141, {LDS_WQ + 40960}, v{V_L16}
    v_lshlrev_b32 v142, 3, v{V_T}
    v_lshl_add_u32 v142, v{V_G}, 10, v142
    v_add_u32 v143, s{S_GBN}, v{V_L16}
    ''')
    pre = []
    for k in range(P4_NW):
        v, off = p4_addr(k)
        pre.append(a(f'ds_read_b128 {vr(P4_AW+4*k,4)}, v{v} offset:{off}'))
    return pre
def allreduce_g(r, t):
    return [f'v_mov_b32 v{t}, v{r}', f'v_permlane32_swap_b32 v{r}, v{t}', f'v_add_f32 v{r}, v{r}, v{t}',
            f'v_mov_b32 v{t}, v{r}', f'v_permlane16_swap_b32 v{r}, v{t}', f'v_add_f32 v{r}, v{r}, v{t}']
def gen_p4(a, pre):
    ACC, B, AW, NW, ST, RS = P4_ACC, P4_B, P4_AW, P4_NW, P4_ST, P4_RS
    KA, VA, NM = 24, 28, P4_RS + 1
    assert O_XIN == 0
    for p in range(2):
        a(f'buffer_load_dwordx2 {vr(ST+2*p,2)}, v142, {WS}, s{S_STN} offen offset:{512*p} sc1')
    ex = [f'v_add_f32 v{ST}, v{ST}, v{ST+2}', f'v_add_f32 v{ST+1}, v{ST+1}, v{ST+3}']
    ex += [x for pr in zip(allreduce_g(ST, ST+2), allreduce_g(ST+1, ST+3)) for x in pr]
    ex += rstd_from(a, ST, RS, 1.0)[7:]
    ex += [f'v_lshrrev_b32 v{ST+2}, 1, v{V_G}', f'v_mul_f32 v{NM}, v{ST}, v{RS}', f'v_and_b32 v{ST+3}, 1, v{V_G}',
           f'v_mul_f32 v{RS+2}, {f32(0.25*LOG2E)}, v{RS}', f'v_mul_f32 v{RS+3}, {f32(0.25*LOG2E)}, v{NM}',
           f'v_lshlrev_b32 v5, 9, v{ST+2}', f'v_lshl_add_u32 v5, v{V_T}, 4, v5', f'v_lshl_add_u32 v5, v{ST+3}, 3, v5',
           f'v_lshlrev_b32 v142, 8, v{ST+3}', f'v_lshl_add_u32 v142, v{V_T}, 4, v142', f'v_lshl_add_u32 v142, v{ST+2}, 3, v142',
           f'v_lshlrev_b32 v4, 4, v{V_G}']
    a(f's_bitcmp1_b32 s{S_J}, 0')
    a('s_cbranch_scc1 P4_GV')
    state = (a.vm, a.vm_done, a.lg, a.lg_done)
    for var in 'KV':
        if var == 'V':
            a('s_branch P4_GJ'); a.raw('P4_GV:')
            a.vm, a.vm_done, a.lg, a.lg_done = state
        def mf(s, t, A, Bq):
            if t < 4: return [f'{M16} {vr(ACC+4*t,4)}, {A}, {Bq}, {"0" if s == 0 else vr(ACC+4*t,4)}']
            if var == 'V': A, Bq = Bq, A
            return [f'{M16} {vr(KA,4)}, {A}, {Bq}, {"0" if s == 0 else vr(KA,4)}']
        gemm_w(a, B, 143, AW, NW, 5, p4_addr, pre, mf, extras=ex)
    a.raw('P4_GJ:')
    stamp(a, 'p4_gemm')
    a('s_nop 5')
    kv_epilogue(a, 'P4', KA, KA, P4_CS[4], RS, NM, AW, 5, 142, 4)
    a(f'v_add_u32 v5, s{S_QO}, v5')
    for mt in range(4):
        r = ACC + 4*mt
        a(f'v_pk_mul_f32 {vr(r,2)}, {vr(r,2)}, {vr(RS+2,2)} op_sel_hi:[1,0]')
        a(f'v_pk_mul_f32 {vr(r+2,2)}, {vr(r+2,2)}, {vr(RS+2,2)} op_sel_hi:[1,0]')
        for h in range(2):
            a(f'v_pk_fma_f32 {vr(r+2*h,2)}, {vr(P4_CS[mt]+2*h,2)}, {vr(RS+2,2)}, {vr(r+2*h,2)} op_sel:[0,1,0] op_sel_hi:[1,1,1] neg_lo:[1,0,0] neg_hi:[1,0,0]')
        a(f'v_cvt_pk_bf16_f32 v{r}, v{r}, v{r+1}')
        a(f'v_cvt_pk_bf16_f32 v{r+1}, v{r+2}, v{r+3}')
        a(f'ds_write_b64 v5, {vr(r,2)} offset:{2048*mt}')

S_XW = 61
JOINT = OPT('JOINT', 0)
S_HWT = 98
S_CSA = 96
S_CLN = 92
SPOLL = OPT('SPOLL', 1)
S_FH, S_N2 = 88, 100
VKV2, PF = 160, 184
S_KVT = 99
def xl_addrs(a):
    a.lines(f'''
    s_and_b32 s24, s2, 7
    s_lshl_b32 s24, s24, 7
    s_lshl_b32 s25, s{S_L}, 11
    s_add_u32 s24, s24, s25
    s_add_u32 s{S_XLINE}, s24, {XFL}
    s_add_u32 s{S_XGL}, s{S_XLINE}, 1024
    s_lshr_b32 s25, s2, 3
    s_lshl_b32 s25, s25, 2
    s_add_u32 s{S_XLW}, s{S_XLINE}, s25
    ''')
def xcc_load(a, vdst, vaddr):
    a('s_and_b32 s24, s2, 7')
    a('s_lshl_b32 s24, s24, 9')
    a(f's_add_u32 s24, s24, {XFL + 4096}')
    return a(f'buffer_load_dword v{vdst}, v{vaddr}, {WS}, s24 offen sc1')
def xcc_eval(a, v):
    a(f'v_cmp_ne_u32 vcc, s{S_XW}, v{v}')
    a('s_cmp_lg_u64 vcc, 0')
    a(f's_cselect_b32 s{S_SLOW}, 1, {FORCE_SLOW}')

def layer_scalars(a):
    a.lines(f'''
    s_lshl_b32 s24, s{S_L}, 15
    s_lshl_b32 s29, s{S_G}, 10
    s_add_u32 s24, s24, s29
    s_add_u32 s{S_FLINE}, s24, {FLAGS}
    s_lshl_b32 s29, s{S_J}, 2
    s_add_u32 s{S_FLAG}, s{S_FLINE}, s29
    ''')
    pre_st_n(a)
    x_publish_addr(a, S_X1O, S_ST1O, S_GB, O_X1, O_ST1)
    a.lines(f'''
    s_lshl_b32 s24, s{S_J}, 4
    s_lshl_b32 s25, s{S_W}, 2
    s_add_u32 s24, s24, s25
    s_add_u32 s{S_FLW}, s24, s{S_FLINE}
    s_lshl_b32 s24, s{S_J}, 1
    s_and_b32 s25, s{S_W}, 1
    s_add_u32 s24, s24, s25
    s_lshl_b32 s24, s24, 10
    s_lshr_b32 s25, s{S_W}, 1
    s_lshl_b32 s25, s25, 9
    s_add_u32 s24, s24, s25
    s_add_u32 s24, s24, s{S_GB}
    s_add_u32 s{S_OST}, s24, {O_O}
    s_add_u32 s{S_OST+1}, s{S_OST}, 32768
    s_lshr_b32 s24, s{S_J}, 1
    s_mul_i32 s24, s24, 11
    s_and_b32 s25, s{S_J}, 1
    s_lshl_b32 s26, s25, 2
    s_add_u32 s26, s26, s{S_W}
    s_add_u32 s26, s26, s24
    s_lshl_b32 s26, s26, 10
    s_add_u32 s27, s{S_GB}, {O_H}
    s_add_u32 s{S_HF}, s26, s27
    s_mul_i32 s25, s25, 3
    s_add_u32 s25, s25, s{S_W}
    s_lshl_b32 s25, s25, 9
    s_add_u32 s24, s24, 8
    s_lshl_b32 s24, s24, 10
    s_add_u32 s24, s24, s25
    s_add_u32 s24, s24, s27
    s_cmp_eq_u32 s{S_W}, 3
    s_cselect_b32 s{S_HH}, {WS_USED}, s24
    s_mul_i32 s24, s{S_W}, {11*1024}
    s_add_u32 s{S_HB}, s24, s27
    s_lshl_b32 s25, s{S_W}, 12
    s_add_u32 s26, s25, s{S_GB}
    s_add_u32 s{S_XD}, s26, {O_X1}
    s_lshl_b32 s25, s{S_W}, 10
    s_add_u32 s26, s25, s{S_GB}
    s_add_u32 s{S_STD}, s26, {O_ST1}
    ''')
S_WO0, S_W10, S_WQ0, S_W20, S_W4K, S_PKL = 72, 73, 74, 75, 76, 77
def const_scalars(a):
    pre_rot(a)
    a.lines(f'''
    s_lshl_b32 s{S_W4K}, s{S_W}, 12
    s_lshl_b32 s24, s{S_J}, 16
    s_lshl_b32 s25, s{S_W}, 14
    s_add_u32 s24, s24, s25
    s_add_u32 s{S_WO0}, s24, {WO_P}
    s_mul_i32 s25, s{S_J}, {11*16384}
    s_mul_i32 s26, s{S_W}, {3*16384}
    s_add_u32 s25, s25, s26
    s_add_u32 s{S_W10}, s25, {W1_P + 4096}
    s_mul_i32 s26, s{S_J}, 81920
    s_add_u32 s26, s26, s{S_W4K}
    s_add_u32 s{S_WQ0}, s26, {WQKV_P}
    s_add_u32 s{S_WQL}, s{S_WQ0}, 65536
    s_mul_i32 s28, s{S_J}, {44*4096}
    s_mul_i32 s29, s{S_W}, {11*4096}
    s_add_u32 s28, s28, s29
    s_add_u32 s{S_W20}, s28, {W2_P + 3072}
    s_add_u32 s{S_W2L}, s{S_W20}, {10*4096 - 3072}
    s_mov_b32 s{S_C}, {f32([2.0**-60, 2.0**59, 4000.0][OPT('FORCE_FB', 0)])}
    s_mov_b32 s{S_C+1}, {f32(2.0**60)}
    s_mov_b32 s{S_C+2}, {f32(2.0**120)}
    s_mov_b32 s{S_VMASK}, 0xffff
    s_mov_b32 s{S_VMASK+1}, 0xffff
    ''')

def all8():
    return ['s_and_b64 s[24:25], s[80:81], s[82:83]', 's_and_b64 s[26:27], s[84:85], s[86:87]', 's_and_b64 s[24:25], s[24:25], s[26:27]',
            's_or_b64 s[80:81], s[80:81], s[82:83]', 's_or_b64 s[84:85], s[84:85], s[86:87]', 's_or_b64 s[80:81], s[80:81], s[84:85]',
            's_and_b32 s24, s24, s25', 's_or_b32 s25, s80, s81', f's_mov_b32 s26, s{S_NONCE}', f's_mov_b32 s27, s{S_NONCE}',
            's_cmp_eq_u64 s[24:25], s[26:27]']

class Att:
    def __init__(self, a, deferred, L):
        self.a, self.deferred, self.L = a, deferred, L
        self.ktok, self.vtok, self.misc = {}, {}, {}
        self.adv = [f's_add_u32 s{S_IDX}, s{S_IDX}, 4096', f's_and_b32 s{S_IDX}, s{S_IDX}, 0x1ffff',
                    f's_add_u32 s{S_KP}, s{S_IDX}, s{S_KB}', f's_addc_u32 s{S_KP+1}, s{S_KB+7}, 0']
    def kvb(self, i): return (VKV2 if self.L == 0 and i in (2, 3) else VKV) + 12*(i & 1)
    def Kr(self, i): return vr(self.kvb(i), 4)
    def Vr(self, i, u): return vr(self.kvb(i) + 4 + 4*u, 4)
    def ldK(self, i): self.ktok[i] = self.a(f'global_load_dwordx4 {self.Kr(i)}, v{V_L16}, {sr(S_KP,2)}')
    def ldV(self, i):
        a = self.a
        a(f's_mov_b64 exec, {sr(S_VMASK,2)}')
        a(f'global_load_dwordx4 {self.Vr(i,0)}, v7, {sr(S_KP,2)} offset:1024')
        self.vtok[i] = a(f'global_load_dwordx4 {self.Vr(i,1)}, v7, {sr(S_KP,2)} offset:1536')
        a('s_mov_b64 exec, -1')
    def ldKV(self, i):
        if i not in self.ktok: self.ldK(i)
        self.ldV(i)
    def init_regs(self):
        a = self.a
        a.lines(f'''
        s_lshr_b32 s26, s{S_W}, 1
        s_lshl_b32 s25, s26, 11
        s_add_u32 s{S_KB}, s25, s{S_KV}
        s_and_b32 s{S_IDX}, s2, 7
        s_lshl_b32 s{S_IDX}, s{S_IDX}, 14
        s_and_b32 s25, s{S_J}, 3
        s_lshl_b32 s25, s25, 2
        s_add_u32 s25, s25, s{S_W}
        s_lshl_b32 s25, s25, 13
        s_add_u32 s{S_KVT}, s25, s{S_KV}
        s_add_u32 s{S_KB}, s{S_KB}, s4
        s_addc_u32 s{S_KB+7}, s5, 0
        v_bfe_u32 v26, v{V_L16}, 2, 7
        v_lshrrev_b32 v4, 1, v{V_G}
        v_lshlrev_b32 v4, 8, v4
        v_lshl_add_u32 v7, v{V_T}, 4, v4
        v_and_b32 v4, {27*16}, v{V_L16}
        v_cmp_eq_u32 vcc, 256, v4
        v_mov_b32 v4, 0x3f803f80
        v_cndmask_b32 v4, 0, v4, vcc
        ''')
        for b in range(2):
            for i in range(8): a(f'v_mov_b32 v{VKV+12*b+4+i}, v4')
        a(self.adv[2]); a(self.adv[3])
    def xl_pass(self, skip=None):
        a = self.a
        own = skip is None
        skip = skip or f'XP{self.L}_SKIP'
        if own:
            a(f's_cmp_lg_u32 s{S_W}, 1'); a(f's_cbranch_scc1 {skip}')
        a.lines(f'''
        s_cmp_ge_u32 s2, 8
        s_cbranch_scc1 {skip}
        s_lshl_b32 s25, s2, 2
        s_add_u32 s24, s25, {XFL + 1024 + 2048*self.L}
        v_lshlrev_b32 v27, 3, v{V_L16}
        v_mov_b32 v5, s{S_NONCE}
        s_mov_b64 exec, 0xff
        ''')
        a.raw(f'buffer_store_dword v5, v27, {WS}, s24 offen sc1')
        a('s_mov_b64 exec, -1')
        a.raw(f'{skip}:')
    def xl_poll(self):
        a, p = self.a, f'XL{self.L}'
        a.lines(f'''
        s_cmp_lg_u32 s{S_W}, 1
        s_cbranch_scc1 {p}_SKIP
        s_mov_b32 s25, 0
        {p}_POLL:
        ''')
        a.raw(f'buffer_load_dword v27, v26, {WS}, s{S_XLINE} offen sc1')
        a.lines(f'''
        s_add_u32 s25, s25, 1
        s_waitcnt vmcnt(0)
        s_cmp_gt_u32 s25, {POLL_MAX}
        s_cbranch_scc1 {p}_DONE
        v_cmp_ne_u32 vcc, s{S_NONCE}, v27
        s_cbranch_vccnz {p}_POLL
        {p}_DONE:
        ''')
        self.xl_pass(f'{p}_SKIP')
    def first_loads(self):
        self.ldK(0); self.ldV(0)
        for x in self.adv: self.a(x)
        self.ldK(1)
    def more_consts(self):
        for b in range(2):
            for i in range(8): self.a(f'v_mov_b32 v{VKV2+12*b+4+i}, v{VKV+16}')
    def more_loads(self):
        def tile(t):
            for x in self.adv: self.a(x)
            self.ldK(t); self.ldV(t)
        for t in (1, 2, 3): self.vtok[t] = None
        for t in (2, 3): self.ktok[t] = None
        return [lambda: self.ldV(1), lambda: tile(2), lambda: tile(3)]
    def q_read(self, lq=LDS_Q):
        a = self.a
        a.lines(f'''
        s_lshr_b32 s26, s{S_W}, 1
        s_and_b32 s27, s{S_W}, 1
        s_lshl_b32 s24, s27, 12
        s_add_u32 s24, s24, {lq}
        s_lshl_b32 s25, s26, 11
        s_xor_b32 s28, s25, 2048
        s_add_u32 s25, s25, s24
        s_add_u32 s28, s28, s24
        v_add_u32 v24, s28, v{V_L16}
        v_add_u32 v25, s25, v{V_L16}
        ''')
        for sl in range(4):
            self.qt = a(f'ds_read_b128 {vr(VQ+4*sl,4)}, v{24 if sl < 2 else 25} offset:{1024*(sl&1)}')
        a.lines(f'''
        s_lshl_b32 s29, s{S_W}, 13
        s_add_u32 s29, s29, {LDS_SCR}
        v_add_u32 v4, s29, v{V_L16}
        v_bfe_u32 v6, v{V_L16}, 2, 5
        ''')
    def check(self, name, load, cmp_fn, sleep=8):
        a, p = self.a, f'{name}{self.L}'
        if name == 'XG' and self.sx:
            a.wait_all(vm=False)
            for x in all8(): a(x)
            a(f's_cbranch_scc0 {p}_SLOW')
        else:
            a.wait(self.misc[name])
            for x in cmp_fn(): a(x)
            a(f's_cbranch_vccnz {p}_SLOW')
        a.raw(f'{p}_OK:')
        def d(b):
            b.raw(f'{p}_SLOW:')
            b('s_mov_b32 s29, 0')
            b(f's_branch {p}_FIRST')
            b.raw(f'{p}_LOOP:')
            b(f's_sleep {sleep}')
            b.raw(f'{p}_FIRST:')
            b(load)
            b('s_add_u32 s29, s29, 1')
            b('s_waitcnt vmcnt(0)')
            b(f's_cmp_gt_u32 s29, {POLL_MAX}')
            b(f's_cbranch_scc1 {p}_OK')
            for x in cmp_fn(): b(x)
            b(f's_cbranch_vccnz {p}_LOOP')
            b(f's_branch {p}_OK')
        self.deferred.append(d)
    def groups(self):
        WP = sr(S_WP, 2)
        start = lambda s: [f's_add_u32 s{S_WP}, s4, s{s}', f's_addc_u32 s{S_WP+1}, s5, 0']
        step = lambda n: [f's_add_u32 s{S_WP}, s{S_WP}, {n}', f's_addc_u32 s{S_WP+1}, s{S_WP+1}, 0']
        dma = lambda n: [f'global_load_lds_dwordx4 v{V_L16}, {WP} offset:{1024*i}' for i in range(n)]
        m0wo = f's_lshl_b32 m0, s{S_W4K}, 2'
        assert LDS_WO == 0
        if self.L == 1:
            G = {1: (start(S_WO0) + [m0wo], dma(3)), 3: (step(2048) + ['s_add_u32 m0, m0, 2048'], []),
                 4: (step(1024) + ['s_add_u32 m0, m0, 1024'], dma(1)), 6: (step(1024), [])}
            return G
        g = []
        for R in range(4): g.append(((start(S_WO0) + [m0wo]) if R == 0 else (step(4096) + ['s_add_u32 m0, m0, 4096']), dma(4)))
        for G in range(7):
            g.append((start(S_W10) if G == 0 else step(7168), [f'global_load_dwordx4 {ar(28*G+4*i,4)}, v{V_L16}, {WP} offset:{1024*i-4096}' for i in range(7) if 7*G+i < 48]))
        for G in range(6):
            g.append((start(S_W20) if G == 0 else step(7168), [f'global_load_dwordx4 {w2reg(7*G+i)}, v{V_L16}, {WP} offset:{1024*i-3072}' for i in range(7)]))
        for R in range(3):
            g.append(((start(S_WQ0) + [f's_add_u32 m0, s{S_W4K}, {LDS_WQ}']) if R == 0 else (step(16384) + ['s_add_u32 m0, m0, 16384']), dma(4)))
        W0 = OPT('W0', 10)
        assert W0 + len(g) <= 30
        return {W0 + k: x for k, x in enumerate(g)}
    def loop(self):
        a, L, misc = self.a, self.L, self.misc
        G = self.groups()
        Sr = lambda n: VS0 if (n & 1) == 0 else VS1
        QK = lambda n: f'{M32} {vr(Sr(n),16)}, {self.Kr(n >> 2)}, {vr(VQ+4*(n & 3),4)}, 0'
        def PV(n, u):
            i, q = n >> 2, n & 3
            c = '0' if (i == 0 and u == 0) else vr(VO+16*q, 16)
            return f'{M32} {vr(VO+16*q,16)}, {self.Vr(i,u)}, {vr(VP+4*u,4)}, {c}'
        pad = lambda l, k: list(l) + [None]*(k - len(l))
        XG = f'buffer_load_dword v5, v6, {WS}, s{S_XGL} offen sc1'
        PKL = f'buffer_load_dwordx4 v[152:155], v156, {WS}, s27 offen sc1'
        pk_cmp = lambda: [f'v_xor_b32 v152, s{S_NONCE}, v152', f'v_xor_b32 v153, s{S_NONCE}, v153', f'v_xor_b32 v154, s{S_NONCE}, v154',
                          f'v_xor_b32 v155, s{S_NONCE}, v155', 'v_or3_b32 v152, v152, v153, v154', 'v_or_b32 v152, v152, v155', 'v_cmp_ne_u32 vcc, 0, v152']
        a.wait(self.ktok[0], self.qt)
        stamp(a, 'att_go')
        a(QK(0))
        a('s_nop 7')
        N = 128
        periods = list(range(30)) if L == 0 else [0, 1, 2, 3, 4, 5]
        for i in periods:
            if L == 1 and i == 4:
                a('s_mov_b32 s28, 13'); a.raw('.p2align 6'); a.raw('ATT1_LOOP:')
            if OPT('ATT_STAMPS') and L == 0 and i in (1, 2, 3, 4, 5, 7, 9, 10, 14, 21): stamp(a, f'a0_p{i}', True)
            if OPT('ATT_STAMPS') and L == 1 and i in (1, 2, 3, 30): stamp(a, f'a1_p{i}', True)
            setup, loads = G.get(i, ([], []))
            setup, loads = pad(setup, 3), pad(loads, 8)
            adv = [None]*4 if (L == 0 and i < 2) else self.adv
            nsetup = pad(G.get(i+1, ([], []))[0], 3)
            for q in range(4):
                n = 4*i + q
                S = Sr(n)
                e = lambda k: a(f'v_exp_f32 v{S+k}, v{S+k}')
                c = lambda k: a(f'v_cvt_pk_bf16_f32 v{VP+k}, v{S+2*k}, v{S+2*k+1}')
                x0, x1, x2 = [], [], []
                if q == 0:
                    x0 += [lambda: a.wait(('vm', a.vm) if (L == 1 and i == 4 and JOINT) else self.vtok[i])]
                    if i + 1 < 32 and i + 1 not in self.vtok: x1.append(lambda: self.ldKV(i+1))
                    x2 += [setup[2]]
                elif q == 1:
                    x0 += [adv[0]]; x1 += loads[:4]; x2 += [adv[1]]
                elif q == 2:
                    x0 += [adv[2]]; x1 += [adv[3]]
                    if i + 1 < 32: x2.append(lambda: a.wait(self.ktok[i+1]))
                else:
                    if i + 2 < 32 and i + 2 not in self.ktok and not JOINT and not (L == 0 and i == 2): x0.append(lambda: self.ldK(i+2))
                    x0 += loads[4:]
                    x1 += [nsetup[0]]; x2 += [nsetup[1]]
                XGC = 11 if (JOINT or L == 0) else 10
                self.sx = (L == 0 or OPT('SX1', 0))
                if n == OPT('XGI', XGC - 3):
                    if self.sx: x2.append(f's_buffer_load_dwordx8 s[80:87], {WS}, s{S_XGL}')
                    else: x0.append(lambda: misc.__setitem__('XG', a(XG)))
                if n == XGC: x2.append(lambda: self.check('XG', XG, lambda: [f'v_cmp_ne_u32 vcc, s{S_NONCE}, v5']))
                if n == XGC + 1 and OPT('KVT', 1):
                    x1 += [f'v_lshlrev_b32 v5, 3, v{V_L16}']
                    x2 += [f'buffer_load_dword v5, v5, {WS}, s{S_KVT} offen']
                if L == 0 and n < 2:
                    for xs in (x0, x1, x2):
                        if self.first: xs.append(self.first.pop(0))
                if L == 0 and q == 2 and 0 <= i - OPT('SIDEP', 10) < len(self.early): x2.append(self.early[i - OPT('SIDEP', 10)])
                if L == 0:
                    PKP = OPT('PKP', 4)
                    if n == 4*PKP - 1:
                        x1 += [lambda: a.wait(misc['pk'])] + [f'ds_read_b64_tr_b16 {vr(PF+2*k,2)}, v{self.VPT+k}' for k in range(4)]
                        x2 += [f'ds_read_b64_tr_b16 {vr(PF+2*k,2)}, v{self.VPT+k}' for k in range(4, 8)]
                    if i == PKP:
                        def pkst():
                            if q == 0: a.wait_all(vm=False)
                            a('s_and_b32 s24, s101, 15'); a('s_mul_i32 s24, s24, s100'); a('s_add_u32 s24, s24, s95'); a('s_add_u32 s101, s101, 1')
                            misc['pack'] = a(f'buffer_store_dwordx4 {vr(PF+4*q,4)}, v{V_L16}, {WS}, s24 offen sc1')
                        x2.append(pkst)
                    if n == 4*OPT('PKF', 6) + 2:
                        def pkflag():
                            a.wait(misc['pack']); a('s_barrier')
                            a(f's_cmp_lg_u32 s{S_W}, 0'); a('s_cbranch_scc1 PKF_SKIP'); a('s_mov_b64 exec, 1')
                            a.raw(f'buffer_store_dword v157, off, {WS}, s{S_PKL} sc1')
                            a('s_mov_b64 exec, -1'); a.raw('PKF_SKIP:')
                        x2.append(pkflag)
                    W0 = OPT('W0', 10)
                    if n == 4*18 + 2: x2.append(lambda: misc.__setitem__('xcc', xcc_load(a, 159, 158)))
                    if n == 4*20 + 2: x2 += [lambda: a.wait(misc['xcc']), lambda: xcc_eval(a, 159)]
                    if n == 4*(W0-2) + 2:
                        x2 += [f's_cmp_eq_u32 s{S_W}, 1', f's_cselect_b32 s27, 0, {WS_USED}', lambda: misc.__setitem__('PK', a(PKL))]
                    if n == 4*(W0-1) + 2:
                        def pkcheck():
                            a(f's_cmp_lg_u32 s{S_W}, 1'); a('s_cbranch_scc1 PK_SKIP')
                            done = (a.vm_done)
                            self.check('PK', PKL, pk_cmp, sleep=24)
                            a.vm_done = done
                            a.raw('PK_SKIP:'); a('s_barrier')
                        x2.append(pkcheck)
                if L == 0 and OPT('CPF2', 1) and n == 4*OPT('CPF2P', 28) + 2:
                    def cpf2():
                        a('s_getpc_b64 s[80:81]'); a.raw('CPF2_HERE:')
                        a.lines(f'''
                        s_mov_b32 s82, CODE_END-CPF2_HERE
                        s_mov_b32 s83, 0x20000
                        s_lshr_b32 s84, s2, 3
                        s_lshl_b32 s84, s84, 2
                        s_add_u32 s84, s84, s{S_W}
                        s_lshl_b32 s84, s84, 8
                        v_lshlrev_b32 v5, 3, v{V_L16}
                        s_mov_b64 exec, 3
                        buffer_load_dword v5, v5, s[80:83], s84 offen
                        s_mov_b64 exec, -1
                        ''')
                    x2.append(cpf2)
                if L == 0 and OPT('OPT_PT', 1) and n == 4*OPT('PT2', 27) + 1:
                    x0 += [f'v_and_b32 v5, 3, v{V_T}', 'v_lshlrev_b32 v5, 7, v5', f'v_lshl_add_u32 v5, v{V_G}, 14, v5']
                    x2 += [f'buffer_load_dword v5, v5, {WS}, s{S_OST} offen', f'buffer_load_dword v5, off, {WS}, s{S_ST1O}']
                if L == 1 and i == 5 and q == 0: x2.append('s_sub_u32 s28, s28, 1')
                def run(xs):
                    for x in xs:
                        if x is None: continue
                        if callable(x): x()
                        else: a(x)
                if n + 1 < N: a(QK(n+1))
                run(x0)
                e(0); e(1); e(2); e(3); c(0); e(4)
                if n > 0: a(PV(n-1, 1))
                run(x1)
                e(5); c(1); e(6); e(7); c(2); e(8); c(3); e(9); e(10)
                a(PV(n, 0))
                run(x2)
                c(4); e(11); e(12); c(5); e(13); e(14); e(15); c(6); c(7)
            if L == 1 and i == 5:
                a('s_cmp_lg_u32 s28, 0'); a('s_cbranch_scc1 ATT1_LOOP')
    def tail(self):
        a, deferred, misc = self.a, self.deferred, {}
        ktok31, vtok30 = ('vm', a.vm), ('vm', a.vm - 1)
        seq = [(30, 0), (30, 2), (31, 0), (31, 2), (30, 1), (31, 1), (30, 3), (31, 3)]
        Sr = lambda t: VS0 if (t & 1) == 0 else VS1
        QK = lambda t: f'{M32} {vr(Sr(t),16)}, {self.Kr(seq[t][0])}, {vr(VQ+4*seq[t][1],4)}, 0'
        def PV(i, q, u): return f'{M32} {vr(VO+16*q,16)}, {self.Vr(i,u)}, {vr(VP+4*u,4)}, {vr(VO+16*q,16)}'
        def scr_w(sl):
            o = VO + 16*sl
            return [f'ds_write_b128 v4, {vr(o,4)} offset:{3072*sl}', f'ds_write_b128 v4, {vr(o+4,4)} offset:{3072*sl+1024}',
                    f'ds_write_b32 v4, v{o+8} offset:{3072*sl+2048}']
        def scr_r(sl, T, va):
            return [f'ds_read_b128 {vr(T,4)}, v{va} offset:{3072*sl}', f'ds_read_b128 {vr(T+4,4)}, v{va} offset:{3072*sl+1024}',
                    f'ds_read_b32 v{T+8}, v{va} offset:{3072*sl+2048}']
        def finish(o, T, sf):
            L = [f'v_add_f32 v{o+k}, v{o+k}, v{T+k}' for k in (8, 0, 1, 2, 3, 4, 5, 6, 7)]
            L += [f'v_rcp_f32 v{o+10}, v{o+8}', f'v_cmp_le_f32 s[24:25], s{S_C}, v{o+8}', f'v_cmp_ge_f32 s[26:27], s{S_C+1}, v{o+8}',
                  f'v_maximum3_f32 v{T}, |v{o}|, |v{o+1}|, |v{o+2}|', f'v_maximum3_f32 v{T+1}, |v{o+3}|, |v{o+4}|, |v{o+5}|',
                  f'v_maximum3_f32 v{T}, |v{o+6}|, |v{o+7}|, v{T}', 's_and_b64 s[24:25], s[24:25], s[26:27]',
                  f'v_maximum3_f32 v{T}, v{T}, v{T+1}, v{T+1}', f'v_cmp_ge_f32 vcc, s{S_C+2}, v{T}']
            post = ['s_and_b64 s[24:25], s[24:25], vcc', 's_cmp_eq_u64 s[24:25], -1', f's_cselect_b32 s{sf}, 0, 1']
            return L, post
        OA, OB, TA, TB = VO + 32, VO + 48, 64, 80
        fa, fa_post = finish(OA, TA, S_FA)
        na = norm_ops(OA, 76, False)
        stA = f'buffer_store_dwordx4 v[76:79], v5, {WS}, s28 offen'
        def pubA():
            for x in fa_post: a(x)
            a(f's_cselect_b32 s28, s{S_OST}, {WS_USED}')
            a(f's_cselect_b32 s29, s{S_FLW}, {WS_USED}')
            misc['oa'] = a(stA + ' ' + D_SC)
            if not D_SC: dup_slow(a, deferred, [stA])
        for t in range(8):
            i, q = seq[t]
            if OPT('TAIL_STAMPS') and t in (0, 2, 4, 5, 6, 7): stamp(a, f'tail{t}')
            S = Sr(t)
            v = []
            x0, x1, x2 = [], [], []
            if t == 0:
                x0 += [lambda: a.wait(vtok30)]; x1 += [lambda: self.ldV(31)]; x2 += [lambda: a.wait(ktok31)]
            if t == 1: x0 += [f's_sub_u32 s28, s{S_WQL}, 16384']; x1 += [f's_add_u32 m0, s{S_W4K}, {LDS_WQ + 49152}']
            if t == 3: x0 += [f'buffer_load_dwordx4 v{V_L16}, {WS}, s28 offen offset:{1024*k} lds' for k in range(4)]
            if t == 1: v = [f'v_and_b32 v5, 1, v{V_G}', 'v_lshlrev_b32 v5, 14, v5', 'v_add_u32 v5, v5, v7']
            if t == 2: x1 += [lambda: a.wait(self.vtok[31])]
            if t == 4: x0 += scr_w(0)[:2]; x1 += scr_w(0)[2:]; x2 += [lambda: a.wait_all(vm=False), 's_barrier']; v = ['v_xor_b32 v75, 16384, v4']
            if t == 5: x0 += scr_r(0, TA, 75); x2 += [lambda: a.wait_all(vm=False)] + fa
            if t == 6:
                x0 += na + [f'v_mov_b32 v74, s{S_NONCE}']; x1 += [pubA]
                x2 += [f'buffer_load_dwordx4 v[96:99], v{V_L16}, {WS}, s{S_XRES} offen sc1',
                       lambda: misc.__setitem__('xt', a(f'buffer_load_dwordx4 v[100:103], v{V_L16}, {WS}, s{S_XRES} offen offset:1024 sc1'))]
            if t == 7: x1 += scr_w(1)[:2]; x2 += scr_w(1)[2:]
            def run(xs):
                for x in xs: (x() if callable(x) else a(x))
            e = lambda k: a(f'v_exp_f32 v{S+k}, v{S+k}')
            c = lambda k: a(f'v_cvt_pk_bf16_f32 v{VP+k}, v{S+2*k}, v{S+2*k+1}')
            if t < 7: a(QK(t+1))
            run(x0)
            e(0); e(1); e(2); e(3); c(0); e(4)
            a(PV(29, 3, 1) if t == 0 else PV(*seq[t-1], 1))
            run(x1)
            e(5); c(1); e(6); e(7); c(2); e(8); c(3); e(9); e(10)
            a(PV(i, q, 0))
            run(x2)
            c(4); e(11); e(12); c(5); e(13); e(14); e(15); c(6); c(7)
            run(v)
        a.wait_all(vm=False)
        a('s_barrier')
        a(PV(31, 3, 1))
        stamp(a, 'att_end')
        for x in scr_r(1, TB, 75): rt = a(x)
        a.wait(misc['oa'])
        wflag(a, deferred, F_OA, vd=74, sreg=29)
        a.wait(rt)
        fb, fb_post = finish(OB, TB, S_FB)
        for x in fb + fb_post: a(x)
        a(f's_or_b32 s24, s{S_FA}, s{S_FB}')
        a('s_cbranch_scc1 FALLBACK')
        a.raw('ATT_NORM:')
        a(f'v_bfe_u32 v137, v{V_L16}, 2, 7')
        a(f's_add_u32 s26, s{S_FLINE}, {F_OB - F_OA}')
        a(f's_cmp_ge_u32 s{S_W}, 2')
        a(f's_cselect_b32 s27, s26, s{S_FLINE}')
        misc['OLD'] = f'buffer_load_dword v4, v137, {WS}, s27 offen offset:{F_OA} sc1'
        misc['old'] = a(misc['OLD'])
        for x in norm_ops(OB, 52, True): a(x)
        stB = f'buffer_store_dwordx4 v[52:55], v5, {WS}, s{S_OST+1} offen'
        misc['ob'] = a(stB + ' ' + D_SC)
        if not D_SC: dup_slow(a, deferred, [stB])
        return misc

def norm_ops(o, dst, pk):
    if pk: L = [f'v_pk_mul_f32 {vr(o+2*k,2)}, {vr(o+2*k,2)}, {vr(o+10,2)} op_sel_hi:[1,0]' for k in range(4)]
    else: L = [f'v_mul_f32 v{o+k}, v{o+k}, v{o+10}' for k in range(8)]
    return L + [f'v_cvt_pk_bf16_f32 v{dst+k}, v{o+2*k}, v{o+2*k+1}' for k in range(4)]

def gen_fallback(a, deferred):
    a.comment('---- fallback: true-max softmax')
    a.raw('FALLBACK:')
    K, V0, V1, NM = 136, 140, 144, 80
    a.wait_all()
    for i in range(8): a(f'v_mov_b32 v{V0+i}, 0x3f803f80')
    for sl, sf in ((2, S_FA), (3, S_FB)):
        o = VO + 16*sl
        l1 = a.label_name('FB1'); l2 = a.label_name('FB2'); sk = a.label_name('FBS')
        a(f's_cmp_eq_u32 s{sf}, 0')
        a(f's_cbranch_scc1 {sk}')
        a(f'v_mov_b32 v56, 0xff800000')
        a(f's_mov_b32 s24, s{S_KV}')
        a(f's_add_u32 s25, s{S_KV}, {KV_SZ}')
        a.raw(f'{l1}:')
        a(f'buffer_load_dwordx4 {vr(K,4)}, v{V_L16}, {WS}, s24 offen')
        a.wait_all()
        a(f'{M32} {vr(VS0,16)}, {vr(K,4)}, {vr(VQ+4*sl,4)}, 0')
        for k in range(8):
            a(f'v_max3_f32 v56, v{VS0+2*k}, v{VS0+2*k+1}, v56')
        a('s_add_u32 s24, s24, 2048')
        a('s_cmp_lt_u32 s24, s25')
        a(f's_cbranch_scc1 {l1}')
        a('v_mov_b32 v57, v56')
        a('v_permlane32_swap_b32 v56, v57')
        a('v_max_f32 v56, v56, v57')
        for k in range(16):
            a(f'v_sub_f32 v{NM+k}, 0, v56')
            a(f'v_mov_b32 v{o+k}, 0')
        a(f's_mov_b32 s24, s{S_KV}')
        a.raw(f'{l2}:')
        a(f'buffer_load_dwordx4 {vr(K,4)}, v{V_L16}, {WS}, s24 offen')
        a(f's_mov_b64 exec, {sr(S_VMASK,2)}')
        a(f'buffer_load_dwordx4 {vr(V0,4)}, v7, {WS}, s24 offen offset:1024')
        a(f'buffer_load_dwordx4 {vr(V1,4)}, v7, {WS}, s24 offen offset:1536')
        a('s_mov_b64 exec, -1')
        a.wait_all()
        a(f'{M32} {vr(VS0,16)}, {vr(K,4)}, {vr(VQ+4*sl,4)}, {vr(NM,16)}')
        for k in range(16): a(f'v_exp_f32 v{VS0+k}, v{VS0+k}')
        for k in range(8): a(f'v_cvt_pk_bf16_f32 v{VP+k}, v{VS0+2*k}, v{VS0+2*k+1}')
        a(f'{M32} {vr(o,16)}, {vr(V0,4)}, {vr(VP,4)}, {vr(o,16)}')
        a(f'{M32} {vr(o,16)}, {vr(V1,4)}, {vr(VP+4,4)}, {vr(o,16)}')
        a('s_add_u32 s24, s24, 2048')
        a('s_cmp_lt_u32 s24, s25')
        a('s_nop 15')
        a(f's_cbranch_scc1 {l2}')
        a('s_nop 15')
        a(f'v_rcp_f32 v{o+10}, v{o+8}')
        if sl == 2:
            for x in norm_ops(o, 76, True): a(x)
            a(f'buffer_store_dwordx4 v[76:79], v5, {WS}, s{S_OST} offen sc1')
            a(f'buffer_load_dwordx4 v[96:99], v{V_L16}, {WS}, s{S_XRES} offen sc1')
            a(f'buffer_load_dwordx4 v[100:103], v{V_L16}, {WS}, s{S_XRES} offen offset:1024 sc1')
            a.wait_all()
            wflag(a, deferred, F_OA, vd=74)
        a.raw(f'{sk}:')
    a('s_nop 3')
    a('s_branch ATT_NORM')

CS1, ONE1 = 56, 128
def colsum(a, k0, k1):
    for ks in range(k0, k1):
        for i in range(3):
            a(f'{M16} {vr(CS1+4*i,4)}, {w1reg(i,ks)}, {vr(ONE1,4)}, {"0" if ks == 0 else vr(CS1+4*i,4)}')
CSA, CSB = OPT('CSA', 5), OPT('CSB', 10)
def p2_setup():
    return [l.strip() for l in f'''
    v_lshrrev_b32 v138, 1, v{V_G}
    v_lshlrev_b32 v138, 2, v138
    v_lshl_add_u32 v138, v{V_T}, 3, v138
    v_lshrrev_b32 v5, 1, v{V_G}
    v_lshlrev_b32 v5, 8, v5
    v_lshl_add_u32 v5, v{V_T}, 4, v5
    v_and_b32 v4, 1, v{V_G}
    v_lshl_add_u32 v5, v4, 3, v5
    v_lshrrev_b32 v139, 1, v{V_L16}
    v_add_u32 v139, {LDS_ST}, v139
    s_lshl_b32 s28, s{S_W}, 12
    s_lshl_b32 s29, s{S_W}, 10
    s_add_u32 s29, s29, {LDS_ST}
    s_lshl_b32 s24, s{S_J}, 2
    s_add_u32 s24, s24, s{S_W}
    s_mul_i32 s24, s24, 1408
    s_add_u32 s24, s24, s{S_GB}
    s_add_u32 s{S_CLN}, s24, {O_H}
    s_lshr_b32 s24, s2, {OPT('WB_SH', 3)}
    s_xor_b32 s25, s{S_W}, 3
    s_or_b32 s24, s24, s25
    s_xor_b32 s25, s{S_L}, 1
    s_or_b32 s{S_CLN+2}, s24, s25
    s_add_u32 s{S_FH}, s{S_FLINE}, {F_H}
    s_add_u32 s{S_FH+1}, s{S_FLINE}, {F_H + 128}
    s_add_u32 s{S_FH+2}, s{S_FLINE}, {F_H + 256}
    s_add_u32 s{S_FH+3}, s{S_FLINE}, {F_H + 384}
    s_mov_b32 s{S_N2}, s{S_NONCE}
    s_mov_b32 s{S_N2+1}, s{S_NONCE}
    s_xor_b32 s{S_HWT}, s{S_L}, 1
    s_or_b32 s{S_HWT}, s{S_HWT}, s{S_SLOW}
    '''.strip().split('\n')]
def gen_p1(a, misc, deferred):
    a.comment('---- P1: output projection + residual')
    B, AW, NW = 24, 68, 15
    assert OPT('GW_LA', 7) == 7
    OLD = misc['OLD']
    a(f'v_mov_b32 v7, s{S_NONCE}')
    addr = lambda k: (V_L16, LDS_WO + 1024*k)
    pre = []
    def prep():
        a.wait(misc['xt'])
        for i in range(8):
            a(f'v_lshlrev_b32 v{XR+2*i}, 16, v{96+i}')
            a(f'v_and_b32 v{XR+2*i+1}, 0xffff0000, v{96+i}')
        for k in range(NW):
            v, off = addr(k)
            pre.append(a(f'ds_read_b128 {vr(AW+4*k,4)}, v{v} offset:{off}'))
    a(f's_add_u32 s24, s{S_GB}, {O_O}')
    a(f'v_add_u32 v136, s24, v{V_L16}')
    a(f's_add_u32 m0, s{S_W4K}, {LDS_WQ + 65536}')
    a.wait(misc['old'])
    a(f'v_cmp_ne_u32 vcc, s{S_NONCE}, v4')
    for k in range(4): a(f'v_mov_b32 v{ONE1+k}, 0x3f803f80')
    a('s_barrier')
    state = (a.vm, a.vm_done)
    a(f's_cmp_lt_u32 s{S_W}, 2')
    a('s_cbranch_scc0 P1_B')
    a('s_cbranch_vccz P1_GO')
    a('s_branch P1_POLL')
    a.raw('P1_B:')
    a.wait_all(lg=False)
    wflag(a, deferred, F_OB)
    colsum(a, 0, CSB)
    a.raw('P1_POLL:')
    wpoll(a, OLD, 4)
    a.vm, a.vm_done = state
    a.raw('P1_GO:')
    stamp(a, 'o_polled')
    late = [f'buffer_load_dwordx4 {w2reg(42)}, v{V_L16}, {WS}, s{S_W2L} offen offset:2048',
            f'buffer_load_dwordx4 {w2reg(43)}, v{V_L16}, {WS}, s{S_W2L} offen offset:3072']
    late += [f'buffer_load_dwordx4 v{V_L16}, {WS}, s{S_WQL} offen offset:{1024*i} lds' for i in range(4)]
    gemm_w(a, B, 136, AW, NW, 4, addr, pre, lambda s, t, A, Bq: [f'{M16} {vr(XR+4*t,4)}, {A}, {Bq}, {vr(XR+4*t,4)}'], late=late, tag='p1',
           hooks={'pre': lambda: (prep(), a.wait(misc['ob']), wflag(a, deferred, F_OB))}, extras=p2_setup())
    stamp(a, 'p1_gemm')
    return x_publish(a, XR, 24, 32, S_X1O, S_ST1O, 138, sc=D_SC, deferred=deferred)

def gen_p23(a, deferred, x1st):
    a.comment('---- P2: LN + FFN1 + silu')
    B0, B1, BW, NBW, ACC, TMP, PK, RS, ST = 24, 68, 68, 6, (92, 104), 116, 128, 138, 24
    a.lines(f'''
    s_add_u32 m0, s28, {LDS_WO}
    s_cmp_ge_u32 s{S_W}, 2
    s_cbranch_scc1 X1_JOIN
    ''')
    NM = (134, 135, 142, 143)
    state = (a.vm, a.vm_done)
    colsum(a, 0, CSA)
    a.wait_all(lg=False)
    wflag(a, deferred, F_X1)
    a('v_and_b32 v44, 0x74, v137')
    colsum(a, CSA, CSB)
    wpoll(a, f'buffer_load_dword v4, v44, {WS}, s{S_FLINE} offen offset:{F_X1} sc1', 4)
    a.vm, a.vm_done = state
    a.raw('X1_JOIN:')
    a('v_mov_b32 v136, v139')
    stamp(a, 'x1_join')
    a('s_barrier')
    stamp(a, 'x1_polled')
    dma = {}
    xd = lambda i: f'buffer_load_dwordx4 v{V_L16}, {WS}, s{S_XD} offen offset:{1024*i} sc1 lds'
    SD = f'buffer_load_dwordx4 v{V_L16}, {WS}, s{S_STD} offen sc1 lds'
    for i in range(4): a(xd(i))
    a('s_mov_b32 m0, s29')
    a(f's_add_u32 s{S_XD}, s{S_XD}, 16384')
    dma[0] = a(SD)
    a(f's_add_u32 m0, s28, {LDS_WO + 16384}')
    if OPT('XD_BAR', 1): a('s_barrier')
    for i in range(4): dma[1] = a(xd(i))
    colsum(a, CSB, 16)
    X1LD = f'buffer_load_dword v4, v137, {WS}, s{S_FLINE} offen offset:{F_X1} sc1'
    dq = [f's_add_u32 s{S_XD}, s{S_XD}, 16384', 's_add_u32 m0, m0, 16384'] + [(2, xd(i)) for i in range(4)] + ['s_mov_b32 m0, s29', (2, SD)]
    dq += [f's_add_u32 s{S_XD}, s{S_XD}, 16384', f's_add_u32 m0, s28, {LDS_WO + 49152}'] + [(3, xd(i)) for i in range(4)]
    cost = lambda s: 8 if s.split()[0] in TRANS else 4
    def epi(nt):
        A = ACC[nt & 1]
        st = [[f'v_mul_f32 v{A+k}, v{A+k}, v{RS+nt}' for k in range(12)],
              [f'v_fma_f32 v{A+k}, -v{CS1+k}, v{NM[nt]}, v{A+k}' for k in range(12)],
              [f'v_exp_f32 v{TMP+k}, -v{A+k}' for k in range(12)],
              [f'v_add_f32 v{TMP+k}, 1.0, v{TMP+k}' for k in range(12)],
              [f'v_rcp_f32 v{TMP+k}, v{TMP+k}' for k in range(12)],
              [f'v_mul_f32 v{A+k}, v{A+k}, v{TMP+k}' for k in range(12)],
              [(f'v_cvt_pk_bf16_f32 v{PK+k//2}, v{A+k-1}, v{A+k}' if k & 1 else None) for k in range(12)]]
        L = []
        for t in range(12 + 2*6):
            for j in (0, 2, 1, 3, 4, 5, 6):
                k = t - 2*j
                if 0 <= k < 12 and st[j][k]: L.append(st[j][k])
        return L
    def epi_pk(nt):
        A = ACC[nt & 1]
        assert nt == 3
        L = [f'v_pk_mul_f32 {vr(A+2*k,2)}, {vr(A+2*k,2)}, {vr(RS+2,2)} op_sel:[0,1] op_sel_hi:[1,1]' for k in range(6)]
        L += [f'v_pk_fma_f32 {vr(A+2*k,2)}, {vr(CS1+2*k,2)}, {vr(NM[2],2)}, {vr(A+2*k,2)} op_sel:[0,1,0] op_sel_hi:[1,1,1] neg_lo:[1,0,0] neg_hi:[1,0,0]' for k in range(6)]
        L += [f'v_exp_f32 v{TMP+k}, -v{A+k}' for k in range(12)]
        L += [f'v_pk_add_f32 {vr(TMP+2*k,2)}, {vr(TMP+2*k,2)}, 1.0 op_sel_hi:[1,0]' for k in range(6)]
        L += [f'v_rcp_f32 v{TMP+k}, v{TMP+k}' for k in range(12)]
        L += [f'v_pk_mul_f32 {vr(A+2*k,2)}, {vr(A+2*k,2)}, {vr(TMP+2*k,2)}' for k in range(6)]
        L += [f'v_cvt_pk_bf16_f32 v{PK+k}, v{A+2*k}, v{A+2*k+1}' for k in range(6)]
        return L
    hst = {}
    def hstore(nt):
        if OPT('X_NOST'): hst[nt] = None; return
        st = [f'buffer_store_dwordx4 {vr(PK,4)}, v{V_L16}, {WS}, s{S_HF} offen', f'buffer_store_dwordx2 {vr(PK+4,2)}, v5, {WS}, s{S_HH} offen']
        if H_SC:
            a(st[0] + ' sc1'); hst[nt] = a(st[1] + ' sc1'); return
        wt = a.label_name('HW'); back = a.label_name('HB')
        a(f's_cmp_lg_u32 s{S_HWT}, 0')
        a(f's_cbranch_scc1 {wt}')
        a(st[0]); hst[nt] = a(st[1])
        a.raw(f'{back}:')
        def d(b):
            b.raw(f'{wt}:')
            for s in st: b(s + ' sc1')
            b(f's_branch {back}')
        deferred.append(d)
    def htouch():
        if not OPT('HTOUCH', 0): return
        a(f'buffer_load_dword v4, v{V_L16}, {WS}, s{S_CLN} offen')
        a(f'buffer_load_dword v4, v5, {WS}, s{S_CLN+1} offen')
        a(f's_add_u32 s{S_CLN}, s{S_CLN}, {44*1024}'); a(f's_add_u32 s{S_CLN+1}, s{S_CLN+1}, {44*1024}')
    def early_wb():
        l = a.label_name('WBL'); l2 = a.label_name('WBL')
        a(f's_cmp_eq_u32 s{S_CLN+2}, 0'); a(f's_cbranch_scc1 {l}')
        a(f'buffer_load_dword v4, off, {WS}, s6')
        a.raw(f'{l2}:')
        def d(b):
            b.raw(f'{l}:'); b.raw('buffer_wbl2 sc1'); b(f's_branch {l2}')
        deferred.append(d)
    hadv = [f's_add_u32 s{S_HF}, s{S_HF}, {44*1024}', f's_add_u32 s{S_HH}, s{S_HH}, {44*1024}']
    ptok = {}
    def hpoll_issue(nt):
        if OPT('X_NOSYNC'): return
        if SPOLL: a(f's_buffer_load_dwordx8 s[80:87], {WS}, s{S_FH + nt}'); return
        ptok[nt] = a(f'buffer_load_dword v4, v6, {WS}, s{S_FLINE} offen offset:{F_H + 128*nt} sc1')
    def hpoll_check(nt):
        if OPT('X_NOSYNC'): return
        slow = a.label_name('HSLOW'); ok = a.label_name('HOK')
        if SPOLL:
            a.wait_all(vm=False)
            a('s_and_b64 s[24:25], s[80:81], s[82:83]'); a('s_and_b64 s[26:27], s[84:85], s[86:87]'); a('s_and_b64 s[24:25], s[24:25], s[26:27]')
            a('s_or_b64 s[80:81], s[80:81], s[82:83]'); a('s_or_b64 s[84:85], s[84:85], s[86:87]'); a('s_or_b64 s[80:81], s[80:81], s[84:85]')
            a('s_and_b32 s24, s24, s25'); a('s_or_b32 s25, s80, s81')
            a(f's_cmp_eq_u64 s[24:25], {sr(S_N2,2)}')
            a(f's_cbranch_scc0 {slow}')
        else:
            a.wait(ptok[nt])
            a(f'v_cmp_ne_u32 vcc, s{S_NONCE}, v4')
            a(f's_cbranch_vccnz {slow}')
        a.raw(f'{ok}:')
        if OPT('CTOUCH', 0):
            a(f'v_lshlrev_b32 v4, 3, v{V_L16}')
            a('s_mov_b64 exec, 0x7ff')
            a(f'buffer_load_dword v4, v4, {WS}, s{S_CLN} offen sc1')
            a('s_mov_b64 exec, -1')
            a(f's_add_u32 s{S_CLN}, s{S_CLN}, {44*1024}')
        def d(b):
            lp = b.label_name('HLP')
            b.raw(f'{slow}:')
            b('s_mov_b32 s24, 0')
            b.raw(f'{lp}:')
            b(f'buffer_load_dword v4, v6, {WS}, s{S_FLINE} offen offset:{F_H + 128*nt} sc1')
            b('s_add_u32 s24, s24, 1')
            b('s_waitcnt vmcnt(0)')
            b(f's_cmp_gt_u32 s24, {POLL_MAX}')
            b(f's_cbranch_scc1 {ok}')
            b(f'v_cmp_ne_u32 vcc, s{S_NONCE}, v4')
            b(f's_cbranch_vccnz {lp}')
            b(f's_branch {ok}')
        deferred.append(d)
    hb = {nt: [None]*11 for nt in range(4)}
    def hload(nt, s):
        Bb = B0 if (nt & 1) == 0 else B1
        if s and s % 4 == 0: a(f's_add_u32 s{S_HB}, s{S_HB}, 4096')
        hb[nt][s] = a(f'buffer_load_dwordx4 {vr(Bb+4*s,4)}, v{V_L16}, {WS}, s{S_HB} offen offset:{1024*(s%4)} sc1')
        if s == 10: a(f's_add_u32 s{S_HB}, s{S_HB}, {44*1024 - 8192}')
    hlist = lambda nt: [(lambda s=s: hload(nt, s)) for s in range(11)]
    def stats(h):
        r, n = 40, 41
        lo = lambda x, t: (x, t) if h == 0 else (t, x)
        L = rstd_from(a, ST, r, LOG2E, pk=False)
        L += [f'v_mul_f32 v{n}, v{ST}, v{r}', f'v_mov_b32 v{RS+2*h}, v{r}', f'v_mov_b32 v{NM[2*h]}, v{n}', 's_nop 0',
              'v_permlane32_swap_b32 v%d, v%d' % lo(RS+2*h, r), 'v_permlane32_swap_b32 v%d, v%d' % lo(NM[2*h], n),
              f'v_mov_b32 v{RS+2*h+1}, v{RS+2*h}', f'v_mov_b32 v{NM[2*h+1]}, v{NM[2*h]}', 's_nop 0',
              f'v_permlane16_swap_b32 v{RS+2*h}, v{RS+2*h+1}', f'v_permlane16_swap_b32 v{NM[2*h]}, v{NM[2*h+1]}']
        return L
    def x1_check():
        slow = a.label_name('XS'); ok = a.label_name('XO')
        a.wait(ptok['x1'])
        a(f'v_cmp_ne_u32 vcc, s{S_NONCE}, v4')
        a(f's_cbranch_vccnz {slow}')
        a.raw(f'{ok}:')
        def d(b):
            b.raw(f'{slow}:')
            wpoll(b, X1LD, 4)
            b(f's_branch {ok}')
        deferred.append(d)
    btok = []
    def bread():
        k = len(btok)
        if k >= 64: return
        btok.append(a(f'ds_read_b128 {vr(BW+4*(k % NBW),4)}, v{V_L16} offset:{LDS_WO + 1024*k}'))
    a.wait(dma[0]); a('s_barrier')
    for _ in range(NBW - 1): bread()
    strd0 = [f'ds_read_b64 {vr(ST+2*p,2)}, v136 offset:{512*p}' for p in range(8)]
    strd = list(strd0)
    X1F, X1I, X1C, X2B = OPT('X1F', 2), OPT('X1I', 7), OPT('X1C', 13), OPT('X2B', 10)
    pend = []
    KB = OPT('KB', 8)
    CR = OPT('CR10', 105) / 10
    a.wait(btok[0])
    for nt in range(4):
        stamp(a, f'f1_nt{nt}')
        A = ACC[nt & 1]
        ex = stats(0) if nt == 0 else epi(nt-1)
        if nt == 2: ex = ex[:20] + stats(1) + ex[20:]
        if OPT('X_NOEPI'): ex = []
        sal = list(hadv) if nt >= 2 else []
        for ks in range(16):
            k = nt*16 + ks
            for i in range(3):
                a(f'{M16} {vr(A+4*i,4)}, {w1reg(i,ks)}, {vr(BW+4*(k % NBW),4)}, {"0" if ks == 0 else vr(A+4*i,4)}')
                fill = 0
                if i == 0: bread(); fill += 4
                if i == 1 and sal and ks > 0: a(sal.pop(0))
                if i == 1 and strd and (nt == 0 or ks > X2B):
                    a(strd.pop(0)); stt = a(strd.pop(0)); fill += 8
                if i == 2 and k == X1F: a.wait(x1st); wflag(a, deferred, F_X1); fill += 8
                if i == 1 and k == X1I: ptok['x1'] = a(X1LD); fill += 8
                if i == 1 and k == X1C: x1_check(); fill += 8
                if i >= 1 and 3*k + i > 3*X1C + 1 and dq:
                    x = dq.pop(0)
                    if not isinstance(x, tuple):
                        a(x)
                        if not isinstance(dq[0], tuple): a(dq.pop(0)); fill += 4
                    else: dma[x[0]] = a(x[1]); fill += 8
                if i == 1 and ks == KB and nt == 0:
                    a.wait(dma[1]); a('s_barrier'); fill += 8
                if i == 1 and ks == X2B and nt == 1:
                    a.wait(dma[2]); a('s_barrier'); fill += 8; strd = list(strd0)
                if i == 1 and ks == KB and nt == 2:
                    a.wait(dma[3]); a('s_barrier'); fill += 8
                if i == 1 and ks == OPT('KBF', 13) and nt >= 2 and not OPT('X_NOSYNC'):
                    a.wait(hst[nt-2]); htouch()
                    a('s_barrier')
                    flag_set(a, F_H + 128*(nt-2), deferred); fill += 8
                if i == 1 and nt == 3:
                    if ks == OPT('H0I', 3): hpoll_issue(0); fill += 8
                    if ks == OPT('H0C', 9): hpoll_check(0); pend = hlist(0)[:8]; fill += 8
                    if ks == OPT('H0C', 9) and OPT('X_NOLD'):
                        late0 = pend; pend = []
                if i == 2 and k + 1 < 64: a.wait(btok[k+1])
                if nt == 3 and pend and i == 2: pend.pop(0)(); fill += 8
                if nt == 3 and pend and i == 1 and ks > 13: pend.pop(0)(); fill += 8
                g = ks*3 + i
                if g == 1 and nt >= 2: hstore(nt-2)
                if OPT('WB1', 1) and nt == 1 and g == OPT('WBG', 13):
                    assert not dq
                    early_wb(); fill += 8
                if (nt == 0 and g == 18) or (nt == 2 and g == 2): a.wait(stt)
                if g < 2 or (nt == 0 and ks < 6): continue
                left = 48 - g
                target = (sum(cost(x) for x in ex) + 4*((47 - g)//3)) / left
                while ex and (fill < 8 or fill + cost(ex[0])/2 <= target):
                    fill += cost(ex[0]); a(ex.pop(0))
        for x in pend: x()
        pend = []
        for x in ex: a(x)
        if nt == 3 and not OPT('H2LATE', 0): hstore(2)
    if not OPT('H2LATE', 0):
        if not SPOLL: hpoll_issue(1)
        for x in hadv: a(x)
    stamp(a, 'f1_main_end')
    if OPT('X_NOLD'):
        for x in late0: x()
    ep = epi_pk(3)
    for x in ep[:12]: a(x)
    for s in range(8, 11): hload(0, s)
    for x in ep[12:24]: a(x)
    if OPT('H2LATE', 0):
        hpoll_issue(1); hstore(2)
        for x in hadv: a(x)
    for k, x in enumerate(ep[24:]):
        if SPOLL and k == OPT('P1I', 8): hpoll_issue(1)
        a(x)
    hstore(3)
    AC2 = (112, 128)
    P1C = OPT('P1C', 3)
    F2, P2I, P2C, F3, P3I, P3C = OPT('F2', 4), OPT('P2I', 9), OPT('P2C', 14), OPT('F3', 10), OPT('P3I', 15), OPT('P3C', 20)
    roll = []
    for nt in range(4):
        if not OPT('P1_STAMPS'): stamp(a, f'f2_nt{nt}')
        A = AC2[nt & 1]; Bb = B0 if (nt & 1) == 0 else B1
        wr = []
        if nt > 0:
            P = AC2[(nt-1) & 1]
            wr = [f'ds_write_b128 v5, {vr(P+4*mt,4)} offset:{16384*(nt-1) + 1024*mt}' for mt in range(4)]
            assert F3 < 13
        for s in range(11):
            pos = nt*11 + s
            a.wait(hb[nt][s])
            for mt in range(4):
                a(f'{M16} {vr(A+4*mt,4)}, {w2reg(4*s+mt)}, {vr(Bb+4*s,4)}, {"0" if s == 0 else vr(A+4*mt,4)}')
                if mt == 0:
                    if pos == P1C: hpoll_check(1); roll += [(1, x) for x in range(11)]
                    if pos == P2C: hpoll_check(2); roll += [(2, x) for x in range(11)]
                    if pos == P3C: hpoll_check(3); roll += [(3, x) for x in range(11)]
                    if pos == F2: a.wait(hst[2]); htouch(); a('s_barrier'); flag_set(a, F_H + 128*2, deferred)
                    if pos == F3: a.wait(hst[3]); htouch(); a('s_barrier'); flag_set(a, F_H + 128*3, deferred); a(f'v_add_u32 v5, s28, v{V_L16}')
                free = lambda: roll and (roll[0][0]-2)*11 + roll[0][1] < pos
                behind = lambda: roll and roll[0][0]*11 + roll[0][1] < pos + 11
                if mt == 1 and free(): hload(*roll.pop(0))
                if mt == 3 and free() and behind(): hload(*roll.pop(0))
                if OPT('WB2', 0) and pos == 34 and mt == 1:
                    assert not roll
                    early_wb()
                if mt == 2:
                    if pos == P2I: hpoll_issue(2)
                    elif pos == P3I: hpoll_issue(3)
                    elif s >= 3 and wr: a(wr.pop(0))
        assert not wr
    assert not roll
    stamp(a, 'f2_mfma_end')
    P = AC2[1]
    a(f's_lshl_b32 s24, s{S_W}, 14')
    a(f'v_add_u32 v4, s24, v{V_L16}')
    a(f's_mov_b32 s24, {f32(LN2)}')
    a(f's_mov_b32 s25, {f32(LN2)}')
    for mt in range(4):
        a(f'ds_write_b128 v5, {vr(P+4*mt,4)} offset:{16384*3 + 1024*mt}')
    a.wait_all(vm=False)
    a('s_barrier')
    for t in range(5):
        a(f'buffer_load_dwordx4 {vr(P4_CS[t],4)}, v{V_L16}, {WS}, s{S_CSA + (t>>2)} offen offset:{1024*(t&3)} sc1')
    rt = []
    order = [(sl, mt) for mt in range(4) for sl in range(4)]
    for sl, mt in order:
        rt.append(a(f'ds_read_b128 {vr(24+16*sl+4*mt,4)}, v4 offset:{4096*sl + 1024*mt}'))
    for mt in range(4):
        a.wait(rt[4*mt+3])
        for h in range(2):
            r = lambda sl: vr(24+16*sl+4*mt+2*h, 2)
            a(f'v_pk_add_f32 {r(0)}, {r(0)}, {r(1)}')
            a(f'v_pk_add_f32 {r(2)}, {r(2)}, {r(3)}')
        for h in range(2):
            r = lambda sl: vr(24+16*sl+4*mt+2*h, 2)
            a(f'v_pk_add_f32 {r(0)}, {r(0)}, {r(2)}')
        for h in range(2):
            r = lambda sl: vr(24+16*sl+4*mt+2*h, 2)
            a(f'v_pk_fma_f32 {vr(XR+4*mt+2*h,2)}, {r(0)}, s[24:25], {vr(XR+4*mt+2*h,2)}')

def gen_out(a):
    a.comment('---- final output')
    a.lines(f'''
    s_lshl_b32 s24, s{S_G}, 16
    s_lshl_b32 s25, s{S_W}, 14
    s_add_u32 s24, s24, s25
    s_lshl_b32 s25, s{S_J}, 7
    s_add_u32 s24, s24, s25
    v_lshlrev_b32 v4, 10, v{V_T}
    v_lshrrev_b32 v5, 1, v{V_G}
    v_lshl_add_u32 v4, v5, 4, v4
    v_and_b32 v5, 1, v{V_G}
    v_lshl_add_u32 v4, v5, 5, v4
    ''')
    for p in range(2):
        for i in range(4):
            a(f'v_cvt_pk_bf16_f32 v{24+4*p+i}, v{XR+8*p+2*i}, v{XR+8*p+2*i+1}')
        a(f'v_permlane16_swap_b32 v{24+4*p}, v{24+4*p+2}')
        a(f'v_permlane16_swap_b32 v{24+4*p+1}, v{24+4*p+3}')
        a(f'buffer_store_dwordx4 {vr(24+4*p,4)}, v4, {SB}, s24 offen offset:{64*p} {OUT_SC}')

def gen_phase0(a, deferred, att):
    a.comment('---- phase 0')
    L_WQ, L_X, L_KV, L_CS, L_PK = 0, 65536, 131072, 131072, 147456
    SX, SWQ, SDBG, SKV = sr(80, 4), sr(84, 4), sr(88, 4), sr(92, 4)
    RHO, XB, QB, W1K, XL = 78, 79, 96, 97, 98
    ONES, B, KA, CS, SXR, GR, AW, QA, CQ, AQ, VQT, VPT, XRES, WIN = 28, 32, 112, 116, 120, 124, 184, 208, 224, 104, 228, 233, 244, 160
    RS, NM = 252, 253
    LQ0 = L_KV + 4096
    Ln = V_LANE
    a('s_getpc_b64 s[24:25]')
    a.raw('CPF_HERE:')
    a.lines(f"""
    s_load_dwordx2 s[80:81], s[0:1], 0
    s_load_dwordx4 s[44:47], s[0:1], 16
    s_load_dwordx2 s[84:85], s[0:1], 8
    s_load_dwordx2 s[48:49], s[0:1], 32
    s_load_dwordx4 s[52:55], s[0:1], 48
    s_load_dwordx2 s[88:89], s[0:1], 72
    s_memrealtime s[60:61]
    s_mov_b32 s26, CODE_END-CPF_HERE
    s_mov_b32 s27, 0x20000
    s_lshr_b32 s28, s2, 3
    s_lshl_b32 s28, s28, 2
    s_add_u32 s28, s28, s{S_W}
    s_lshl_b32 s28, s28, 9
    v_lshlrev_b32 v9, 3, v{V_L16}
    s_mov_b64 exec, 15
    buffer_load_dword v159, v9, s[24:27], s28 offen
    s_mov_b64 exec, -1
    s_and_b32 s24, s{S_G}, 3
    s_lshl_b32 s24, s24, 1
    s_add_u32 s24, s24, s{S_J}
    s_lshl_b32 s24, s24, 1
    s_and_b32 s{RHO}, s24, 15
    s_lshl_b32 s{XB}, s{S_G}, 16
    s_lshl_b32 s25, s{S_W}, 14
    s_add_u32 s{XB}, s{XB}, s25
    s_add_u32 s{XL}, s25, {L_X}
    v_lshrrev_b32 v11, 3, v{Ln}
    v_lshlrev_b32 v10, 10, v11
    v_and_b32 v20, 7, v{Ln}
    v_xor_b32 v8, v20, v11
    v_lshl_add_u32 v8, v8, 4, v10
    v_add_u32 v8, s{XB}, v8
    v_add_u32 v242, 7168, v8
    s_lshl_b32 s{XB}, s{RHO}, 6
    s_mov_b32 s82, {2048*1024}
    s_mov_b32 s83, 0x20000
    s_mov_b32 s94, {512*32}
    s_mov_b32 s95, 0x20000
    s_lshl_b32 s{S_W4K}, s{S_W}, 12
    v_bfe_u32 v11, v{Ln}, 1, 2
    v_and_b32 v9, 1, v{V_G}
    s_and_b32 s25, s{S_W}, 1
    s_lshl_b32 s25, s25, 1
    v_or_b32 v9, s25, v9
    v_xor_b32 v11, v11, v9
    v_lshl_add_u32 v9, v11, 5, v10
    v_and_b32 v11, 1, v{Ln}
    v_lshl_add_u32 v9, v11, 4, v9
    s_lshl_b32 s{QB}, s{S_W}, 13
    s_lshl_b32 s25, s{S_J}, 7
    s_add_u32 s{QB}, s{QB}, s25
    v_add_u32 v9, s{QB}, v9
    s_sub_u32 s{QB}, s{RHO}, 1
    s_lshl_b32 s{QB}, s{QB}, 15
    s_lshl_b32 s{W1K}, s{S_W}, 10
    s_mov_b32 s86, {512*1024}
    s_mov_b32 s87, 0x20000
    s_waitcnt lgkmcnt(0)
    """)
    xtok = []
    def xload():
        p = len(xtok)
        a(f's_add_u32 m0, s{XL}, {2048*p}')
        if p: a(f's_add_u32 s{XB}, s{XB}, 128'); a(f's_and_b32 s{XB}, s{XB}, 1023')
        a(f'buffer_load_dwordx4 v8, {SX}, s{XB} offen lds')
        xtok.append(a(f'buffer_load_dwordx4 v242, {SX}, s{XB} offen offset:1024 lds'))
    qtok = []
    def qparts():
        s = len(qtok)
        return [f's_add_u32 m0, s{W1K}, {L_WQ + 4096*s}', f's_add_u32 s{QB}, s{QB}, 32768', f's_and_b32 s{QB}, s{QB}, 0x7ffff',
                lambda: qtok.append(a(f'buffer_load_dwordx4 v9, {SWQ}, s{QB} offen lds'))]
    def qload():
        for x in qparts(): (x() if callable(x) else a(x))
    a.lines(f"""
    s_lshl_b32 s60, s60, 4
    s_or_b32 s60, s60, 8
    s_mov_b32 s90, 256
    s_mov_b32 s91, 0x20000
    s_or_b32 s24, s2, s{S_W}
    s_cmp_lg_u32 s24, 0
    s_cbranch_scc1 P0_NOTAG
    v_mov_b32 v12, s60
    s_mov_b64 exec, 1
    """)
    a.raw(f'buffer_store_dword v12, off, {SDBG}, 0 sc1')
    a('s_mov_b64 exec, -1')
    a.raw('P0_NOTAG:')
    xload()
    for _ in range(OPT('Q_SHARE', 0)): qload()
    a.lines(f"""
    s_bitcmp1_b32 s{S_J}, 0
    s_cselect_b32 s92, s46, s44
    s_cselect_b32 s93, s47, s45
    s_lshl_b32 s24, s{S_W}, 2
    s_add_u32 s24, s24, s{RHO}
    s_add_u32 m0, s{S_W4K}, {L_KV}
    """)
    for i in range(4):
        a('s_and_b32 s25, s24, 15'); a('s_lshl_b32 s25, s25, 10')
        kv = a(f'buffer_load_dwordx4 v{V_L16}, {SKV}, s25 offen lds')
        if i < 3: a('s_add_u32 s24, s24, 1'); a('s_add_u32 m0, m0, 1024')
    for _ in range(OPT('X_FIRST', 2)): xload()
    def touch():
        a(f's_and_b32 s71, s{S_G}, 3'); a('s_lshl_b32 s71, s71, 2'); a(f's_add_u32 s71, s71, s{S_W}'); a('s_lshl_b32 s71, s71, 8')
        a(f's_add_u32 s71, s71, s{S_J}'); a('s_lshl_b32 s71, s71, 7')
        a(f'v_and_b32 v255, 31, v{Ln}'); a('v_lshlrev_b32 v255, 10, v255')
        a(f'buffer_load_dword v255, v255, {SWQ}, s71 offen')
    a(f's_mov_b32 s86, {512*1024}'); a('s_mov_b32 s87, 0x20000')
    a.lines(f"""
    s_lshl_b32 s27, s{S_W}, 15
    s_lshl_b32 s26, s{S_G}, 10
    s_add_u32 s27, s27, s26
    s_add_u32 s27, s27, {FLAGS}
    s_and_b32 s26, s2, 7
    s_lshl_b32 s26, s26, 7
    s_add_u32 s26, s26, {XFL}
    s_cmp_ge_u32 s{S_W}, 2
    s_cselect_b32 s27, s26, s27
    s_cselect_b32 s26, 6, 3
    v_lshlrev_b32 v241, s26, v{V_L16}
    s_mov_b64 exec, 0xff
    s_cselect_b32 exec_lo, 15, exec_lo
    buffer_load_dword v241, v241, {WS}, s27 offen sc1
    s_mov_b64 exec, -1
    """)
    stamp(a, 'p0_issued', True)
    a.lines(f"""
    s_lshl_b32 s56, s2, 2
    s_add_u32 s56, s56, s{S_W}
    s_mov_b32 s58, 3
    s_mov_b32 s57, 1024
    s_mov_b32 s100, 1024
    s_mov_b32 s101, 0
    s_mov_b32 s59, 0x100408
    s_mov_b32 s11, 0x20000
    s_cmp_ge_u32 s56, 352
    s_cbranch_scc1 P0_J1
    s_mov_b32 s8, s54
    s_mov_b32 s9, s55
    s_mov_b32 s10, {1376*1024}
    s_mul_i32 s24, s56, 5958
    s_lshr_b32 s24, s24, 16
    s_mul_i32 s25, s24, 11
    s_sub_u32 s25, s56, s25
    s_lshr_b32 s28, s24, 2
    s_and_b32 s27, s24, 3
    s_lshl_b32 s95, s56, 12
    s_add_u32 s95, s95, {W2_P}
    s_mul_i32 s27, s27, 22
    s_lshr_b32 s26, s25, 2
    s_mul_i32 s26, s26, 11
    s_and_b32 s24, s25, 3
    s_mul_i32 s24, s24, 3
    s_add_u32 s92, s26, s24
    s_add_u32 s93, s92, 1
    s_cmp_eq_u32 s25, 8
    s_cselect_b32 s92, 2, s92
    s_cselect_b32 s93, 5, s93
    s_cmp_eq_u32 s25, 9
    s_cselect_b32 s92, 8, s92
    s_cselect_b32 s93, 13, s93
    s_cmp_eq_u32 s25, 10
    s_cselect_b32 s92, 16, s92
    s_cselect_b32 s93, 19, s93
    s_add_u32 s92, s92, s27
    s_add_u32 s93, s93, s27
    s_cmp_ge_u32 s25, 8
    s_cselect_b32 s59, 0x040810, s59
    s_branch P0_JGO
    P0_J1:
    s_cmp_ge_u32 s56, 704
    s_cbranch_scc1 P0_J2
    s_mov_b32 s8, s52
    s_mov_b32 s9, s53
    s_mov_b32 s10, {512*2752}
    s_mov_b32 s57, 2752
    s_sub_u32 s24, s56, 352
    s_lshr_b32 s28, s24, 4
    s_and_b32 s26, s24, 15
    s_lshl_b32 s95, s28, 16
    s_lshl_b32 s25, s26, 10
    s_add_u32 s95, s95, s25
    s_add_u32 s95, s95, {W1_P}
    s_mov_b32 s100, 16384
    s_lshl_b32 s92, s26, 1
    s_add_u32 s93, s92, 1
    s_branch P0_JGO
    P0_J2:
    s_cmp_ge_u32 s56, 960
    s_cbranch_scc1 P0_J3
    s_sub_u32 s24, s56, 704
    s_and_b32 s27, s24, 127
    s_lshr_b32 s28, s27, 4
    s_lshl_b32 s26, s28, 1
    s_add_u32 s26, s26, s27
    s_and_b32 s26, s26, 15
    s_lshl_b32 s92, s26, 1
    s_add_u32 s93, s92, 1
    s_mov_b32 s10, {512*1024}
    s_lshl_b32 s95, s27, 12
    s_add_u32 s95, s95, {WO_P}
    s_mul_i32 s25, s27, 5120
    s_add_u32 s25, s25, {WQKV_P}
    s_cmp_ge_u32 s24, 128
    s_cselect_b32 s8, s84, s48
    s_cselect_b32 s9, s85, s49
    s_cselect_b32 s95, s25, s95
    s_cselect_b32 s59, s59, 0x080410
    s_branch P0_JGO
    P0_J3:
    s_sub_u32 s24, s2, 240
    s_bitcmp1_b32 s24, 0
    s_cselect_b32 s8, s46, s44
    s_cselect_b32 s9, s47, s45
    s_mul_i32 s95, s24, 81920
    s_add_u32 s95, s95, {WQKV_P + 4096}
    s_cmp_lt_u32 s24, 8
    s_cselect_b32 s10, {512*32}, 0
    s_cselect_b32 s95, s95, {WS_USED}
    s_mov_b32 s58, 1
    s_mov_b32 s57, 32
    s_mov_b32 s100, 5120
    s_lshl_b32 s24, s24, 1
    s_lshl_b32 s101, s{S_W}, 2
    s_sub_u32 s101, s101, s24
    s_lshl_b32 s92, s{S_W}, 3
    s_add_u32 s93, s92, 4
    s_mov_b32 s28, 0
    P0_JGO:
    s_lshl_b32 s24, s57, 4
    s_lshl_b32 s28, s28, 7
    s_mul_i32 s92, s92, s24
    s_add_u32 s92, s92, s28
    s_mul_i32 s93, s93, s24
    s_add_u32 s93, s93, s28
    s_sub_u32 s24, 6, s58
    s_lshl_b32 s94, s57, s24
    v_lshrrev_b32 v10, s58, v{V_LANE}
    v_mul_lo_u32 v10, v10, s57
    s_lshl_b32 s24, 1, s58
    s_sub_u32 s24, s24, 1
    v_and_b32 v11, s24, v{V_LANE}
    v_lshl_add_u32 v10, v11, 4, v10
    s_and_b32 s24, s59, 0xff
    s_bfe_u32 s25, s59, 0x80008
    s_lshr_b32 s59, s59, 16
    v_lshrrev_b32 v12, 1, v{V_G}
    v_mul_lo_u32 v12, v12, s24
    v_and_b32 v13, 1, v{V_G}
    v_mul_lo_u32 v13, v13, s25
    v_add_u32 v12, v12, v13
    v_lshrrev_b32 v13, 2, v{V_T}
    v_add_u32 v12, v12, v13
    s_add_u32 s24, s58, 4
    v_lshlrev_b32 v12, s24, v12
    v_and_b32 v13, 3, v{Ln}
    v_lshl_add_u32 v12, v13, 3, v12
    s_add_u32 s25, s{S_W4K}, {L_PK}
    v_add_u32 v{VPT}, s25, v12
    s_lshl_b32 s59, s59, s24
    v_add_u32 v{VPT+1}, s59, v{VPT}
    s_cmp_eq_u32 s58, 1
    s_cselect_b32 s24, 1024, 32
    """)
    if OPT('TLBW', 0):
        a('s_mov_b64 exec, 1'); a(f'buffer_load_dword v255, off, {SB}, s92'); a('s_mov_b64 exec, -1')
    tk = {}
    def pkload(i):
        def f():
            s = 92 + (i >> 1)
            a(f's_add_u32 m0, s{S_W4K}, {L_PK + 1024*i}')
            if i in (1, 3): a(f's_add_u32 s{s}, s{s}, s94')
            att.misc['pk'] = a(f'buffer_load_dwordx4 v243, {SB}, s{s} offen lds')
        return f
    for i in range(2, 8): a(f'v_add_u32 v{VPT+i}, s24, v{VPT+i-2}')
    for i in range(4): a(f'v_mov_b32 v{ONES+i}, 0x3f803f80')
    a.lines(f"""
    v_lshlrev_b32 v22, 8, v{V_G}
    v_lshl_add_u32 v22, v{V_T}, 3, v22
    v_add_u32 v22, {L_KV}, v22
    v_lshlrev_b32 v21, 7, v{V_T}
    v_add_u32 v21, s{XL}, v21
    v_xor_b32 v24, v{V_G}, v20
    v_xor_b32 v25, 4, v24
    v_lshl_add_u32 v24, v24, 4, v21
    v_lshl_add_u32 v25, v25, 4, v21
    s_lshr_b32 s24, s{RHO}, 1
    s_sub_u32 s24, s{S_J}, s24
    s_and_b32 s24, s24, 7
    s_lshl_b32 s24, s24, 11
    v_add_u32 v21, s24, v21
    v_and_b32 v18, 1, v{V_G}
    v_lshl_add_u32 v21, v18, 3, v21
    v_lshrrev_b32 v18, 1, v{V_G}
    v_xor_b32 v18, v18, v20
    """)
    for mt in range(4):
        a(f'v_xor_b32 v19, {2*mt}, v18'); a(f'v_lshl_add_u32 v{14+mt}, v19, 4, v21')
    a.lines(f"""
    v_lshrrev_b32 v12, 2, v{V_T}
    v_lshl_add_u32 v12, v{V_G}, 3, v12
    v_lshlrev_b32 v12, 7, v12
    v_and_b32 v13, 3, v{Ln}
    v_lshl_add_u32 v12, v13, 3, v12
    v_bfe_u32 v13, v{Ln}, 3, 1
    v_and_b32 v18, 1, v{V_G}
    v_lshl_add_u32 v13, v18, 1, v13
    """)
    a(f'v_xor_b32 v18, s{S_W}, v13'); a(f'v_lshl_add_u32 v{VQT}, v18, 5, v12')
    for k in range(1, 4):
        a(f's_add_u32 s24, s{S_W}, {k}'); a('s_and_b32 s24, s24, 3'); a(f's_sub_u32 s24, s24, s{S_W}'); a('s_lshl_b32 s24, s24, 14')
        a(f'v_add_u32 v{94+2*k}, s24, v24'); a(f'v_add_u32 v{95+2*k}, s24, v25')
    qkv_voffs(a, 12, 13, 18, 19, 21)
    a('s_mov_b32 s3, 0')
    layer_bases(a); const_scalars(a); layer_scalars(a); xl_addrs(a); pre_kvo(a, S_KV)
    a(f's_load_dword s{S_NONCE}, s[88:89], 0')
    att.init_regs()
    a.lines(f"""
    s_mov_b32 s{S_SLOW}, 1
    s_add_u32 s{S_PKL}, s{S_FLAG}, {F_PK}
    v_lshrrev_b32 v156, 1, v{Ln}
    v_lshlrev_b32 v156, 10, v156
    v_and_b32 v19, 1, v{Ln}
    v_lshl_add_u32 v156, v19, 4, v156
    v_add_u32 v156, {FLAGS + F_PK}, v156
    v_bfe_u32 v158, v{Ln}, 3, 2
    v_lshlrev_b32 v158, 7, v158
    v_lshl_add_u32 v158, v20, 2, v158
    v_lshlrev_b32 v{VQT+3}, 3, v{V_T}
    v_add_u32 v{VQT+3}, {L_KV}, v{VQT+3}
    s_lshl_b32 s24, s{S_W}, 7
    v_add_u32 v{VQT+4}, s24, v{VQT+3}
    s_lshl_b32 s24, s{S_W}, 11
    s_add_u32 s24, s24, {LQ0}
    v_add_u32 v243, s24, v12
    v_and_b32 v19, 3, v{V_T}
    """)
    QW = (102, 103, VQT+1, VQT+2)
    for k in range(4):
        a(f's_add_u32 s24, s{S_W}, {k}'); a('s_and_b32 s25, s24, 1'); a('s_lshl_b32 s25, s25, 8'); a('s_and_b32 s24, s24, 2'); a('s_lshl_b32 s24, s24, 9')
        a('s_add_u32 s24, s24, s25'); a(f'v_add_u32 v{QW[k]}, s24, v243')
    a('v_mov_b32 v243, v10')
    stamp(a, 'p0_setup', True)
    rest = [xload]*(8 - len(xtok)) + ([touch] if not OPT('Q_SHARE', 0) else [])
    a('s_waitcnt lgkmcnt(0)')
    a(f's_cmp_eq_u32 s{S_NONCE}, 0')
    a('s_cbranch_scc1 TAG_SLOW')
    a.raw('TAG_OK:')
    def d(b):
        b.raw('TAG_SLOW:')
        b('s_mov_b32 s24, 0')
        b.raw('TAG_LOOP:')
        b(f'buffer_load_dword v254, off, {SDBG}, 0 sc1')
        b('s_add_u32 s24, s24, 1')
        b('s_waitcnt vmcnt(0)')
        b(f'v_readfirstlane_b32 s{S_NONCE}, v254')
        b(f's_cmp_gt_u32 s24, {POLL_MAX}')
        b('s_cbranch_scc1 TAG_OK')
        b(f's_cmp_eq_u32 s{S_NONCE}, 0')
        b('s_cbranch_scc1 TAG_LOOP')
        b('s_branch TAG_OK')
    deferred.append(d)
    a.lines(f"""
    s_getreg_b32 s24, hwreg(HW_REG_XCC_ID, 0, 3)
    s_add_u32 s{S_XW}, s{S_NONCE}, s24
    s_lshl_b32 s24, s{S_G}, 7
    s_lshl_b32 s25, s{S_J}, 2
    s_add_u32 s24, s24, s25
    s_add_u32 s90, s24, {XFL + 4096}
    v_mov_b32 v254, s{S_XW}
    v_mov_b32 v157, s{S_NONCE}
    """)
    for x in rest: x()
    a.wait(kv)
    a('s_barrier')
    stamp(a, 'p0_kv', True)
    a(f's_bitcmp1_b32 s{S_J}, 0')
    a('s_cbranch_scc1 P0_S1V')
    state = (a.vm, a.vm_done, a.lg, a.lg_done, list(qtok))
    for var in 'KV':
        if var == 'V':
            a('s_branch P0_S1J'); a.raw('P0_S1V:')
            a.vm, a.vm_done, a.lg, a.lg_done = state[:4]; qtok[:] = state[4]
        at = []
        def kvread():
            s = len(at)
            if s >= 16: return
            a.wait(xtok[s >> 1])
            a(f'ds_read_b128 {vr(B+4*s,4)}, v{24+(s&1)} offset:{2048*(s>>1)}')
            a(f'ds_read_b64_tr_b16 {vr(AW+4*(s&3),2)}, v22 offset:{1024*s}')
            at.append(a(f'ds_read_b64_tr_b16 {vr(AW+4*(s&3)+2,2)}, v22 offset:{1024*s+128}'))
        for _ in range(3): kvread()
        for s in range(16):
            W, X = vr(AW+4*(s&3), 4), vr(B+4*s, 4)
            c = lambda r: '0' if s == 0 else vr(r, 4)
            qp = qparts() if s >= OPT('Q_FROM', 8) and len(qtok) < 16 else None
            if s == 0: a.wait(at[0])
            a(f'{M16} {vr(KA,4)}, {W}, {X}, {c(KA)}' if var == 'K' else f'{M16} {vr(KA,4)}, {X}, {W}, {c(KA)}')
            if qp: a(qp[0])
            kvread()
            a(f'{M16} {vr(CS,4)}, {W}, {vr(ONES,4)}, {c(CS)}' if var == 'K' else f'{M16} {vr(CS,4)}, {vr(ONES,4)}, {W}, {c(CS)}')
            if qp: a(qp[1]); a(qp[2])
            a(f'{M16} {vr(SXR,4)}, {vr(ONES,4)}, {X}, {c(SXR)}')
            if qp: qp[3]()
            a(f'{M16} {vr(GR,4)}, {X}, {X}, {c(GR)}')
            if s < 15: a.wait(at[s+1])
    a.raw('P0_S1J:')
    for mt in range(4): xr = a(f'ds_read_b64 {vr(XRES+2*mt,2)}, v{14+mt}')
    a.lines(f"""
    v_lshrrev_b32 v21, 2, v{V_T}
    v_cmp_eq_u32 s[24:25], v21, v{V_G}
    v_cmp_eq_u32 s[26:27], 1, v19
    v_cmp_eq_u32 s[28:29], 2, v19
    v_cmp_eq_u32 vcc, 3, v19
    v_mul_f32 v{SXR}, {f32(1/512)}, v{SXR}
    v_cndmask_b32 v{GR}, v{GR}, v{GR+1}, s[26:27]
    v_cndmask_b32 v{GR}, v{GR}, v{GR+2}, s[28:29]
    v_cndmask_b32 v{GR}, v{GR}, v{GR+3}, vcc
    v_cndmask_b32 v{GR}, 0, v{GR}, s[24:25]
    """)
    for x in allreduce_g(GR, GR+1): a(x)
    a.lines(f"""
    v_mul_f32 v{GR}, {f32(1/512)}, v{GR}
    v_fma_f32 v{GR}, -v{SXR}, v{SXR}, v{GR}
    v_max_f32 v{GR}, 0, v{GR}
    v_add_f32 v{GR}, {f32(1e-5)}, v{GR}
    v_rsq_f32 v{RS}, v{GR}
    v_mul_f32 v{NM}, v{SXR}, v{RS}
    """)
    last = kv_epilogue(a, 'P0', KA, KA, CS, RS, NM, AW, 12, 13, 18)
    stamp(a, 'p0_s1', True)
    while len(qtok) < OPT('Q_PRE', 10): qload()
    a.wait(xr)
    cs_addr(a, 79, S_GB)
    side = []
    side += [f'buffer_store_dwordx4 {vr(XRES,4)}, v{V_L16}, {WS}, s{S_XRES} offen sc1',
             f'buffer_store_dwordx4 {vr(XRES+4,4)}, v{V_L16}, {WS}, s{S_XRES} offen offset:1024 sc1',
             's_add_u32 s27, s79, 4096', f'buffer_store_dwordx4 v[204:207], v{V_L16}, {WS}, s27 offen sc1',
             f'v_and_b32 v255, 1, v{V_G}', 'v_lshlrev_b32 v255, 14, v255', 'v_add_u32 v255, v255, v7',
             f'buffer_store_dwordx4 {vr(XRES,4)}, v255, {WS}, s{S_OST} offen sc1', f'buffer_store_dwordx4 {vr(XRES,4)}, v255, {WS}, s{S_OST+1} offen sc1',
             f'buffer_store_dword v{XRES}, v242, {WS}, s{S_ST1O} offen sc1']
    a(f'v_mul_f32 v{RS}, {f32(0.25*LOG2E)}, v{RS}')
    a(f'v_mul_f32 v{NM}, {f32(0.25*LOG2E)}, v{NM}')
    FLAG_AT = OPT('FLAG_AT', 8)
    SN = AQ
    rd = []
    XLD = f'buffer_load_dword v27, v26, {WS}, s{S_XLINE} offen sc1'
    def sreads(s):
        if s >= 16: return []
        R = WIN + 16*(s % 3)
        L = []
        if s % 4 == 0:
            def sync():
                a.wait(qtok[s+3], last if s == FLAG_AT else None)
                a('s_barrier')
                if s == 0: a(f'ds_write_b64 v{VQT+4}, {vr(RS,2)}'); a(f'ds_write_b64 v{VQT+4}, {vr(RS,2)} offset:512')
                if s == 8:
                    for nt in range(4): a(f'ds_read_b64 {vr(SN+2*nt,2)}, v{VQT+4} offset:{128*nt}')
                if s == FLAG_AT:
                    a.lines(f"""
                    s_cmp_eq_u32 s{S_W}, 0
                    s_cselect_b32 s24, s{S_XLW}, {WS_USED}
                    s_cmp_eq_u32 s{S_W}, 2
                    s_cselect_b32 s90, s90, {WS_USED}
                    s_mov_b64 exec, 1
                    buffer_store_dword v157, off, {WS}, s24
                    s_mov_b64 exec, -1
                    """)
            L.append(sync)
        def ar_():
            a(f'ds_read_b64_tr_b16 {vr(R,2)}, v{VQT} offset:{L_WQ + 4096*s}')
            a(f'ds_read_b64_tr_b16 {vr(R+2,2)}, v{VQT} offset:{L_WQ + 4096*s + 512}')
        if L: f0 = L.pop(); L.append(lambda: (f0(), ar_()))
        else: L.append(ar_)
        for nt in range(1, 4):
            def br_(nt=nt):
                t = a(f'ds_read_b128 {vr(R+4*nt,4)}, v{94+2*nt+(s&1)} offset:{2048*(s>>1)}')
                if nt == 3: rd.append(t)
            L.append(br_)
        return L
    for s in range(2):
        for x in sreads(s): x()
    a.wait(rd[0])
    for s in range(16):
        R = WIN + 16*(s % 3)
        nx = sreads(s+2)
        for t in range(5):
            if t < 4: a(f'{M16} {vr(QA+4*t,4)}, {vr(R,4)}, {vr(R+4*t,4) if t else vr(B+4*s,4)}, {"0" if s == 0 else vr(QA+4*t,4)}')
            else: a(f'{M16} {vr(CQ,4)}, {vr(R,4)}, {vr(ONES,4)}, {"0" if s == 0 else vr(CQ,4)}')
            if t == 4 and s < 15: a.wait(rd[s+1])
            if nx: nx.pop(0)()
            if t == 1 and len(qtok) < 16: qload()
            if s == OPT('XLI', 13) and t == 1: xlt = a(XLD)
    stamp(a, 'p0_q', True)
    a.wait(xlt)
    a(f'v_cmp_ne_u32 vcc, s{S_NONCE}, v27')
    a('s_cbranch_vccnz XL0_SLOW')
    a.raw('XL0_OK:')
    def d(b):
        b.raw('XL0_SLOW:')
        b('s_mov_b32 s25, 0')
        b.raw('XL0_POLL:')
        b(XLD)
        b('s_add_u32 s25, s25, 1')
        b('s_waitcnt vmcnt(0)')
        b(f's_cmp_gt_u32 s25, {POLL_MAX}')
        b('s_cbranch_scc1 XL0_OK')
        b(f'v_cmp_ne_u32 vcc, s{S_NONCE}, v27')
        b('s_cbranch_vccz XL0_OK')
        b('s_cmp_lt_u32 s25, 16')
        b('s_cbranch_scc1 XL0_POLL')
        b('s_cmp_lg_u32 s25, 16')
        b('s_cbranch_scc1 XL0_NOST')
        b('s_mov_b64 exec, 1')
        b(f'buffer_store_dword v254, off, {WS}, s90 sc1')
        b('s_mov_b64 exec, -1')
        b.raw('XL0_NOST:')
        b('s_sleep 8')
        xcc_load(b, 27, 158)
        b('s_waitcnt vmcnt(0)')
        b('v_and_b32 v27, -8, v27')
        b(f'v_cmp_ne_u32 vcc, s{S_NONCE}, v27')
        b('s_cbranch_vccnz XL0_POLL')
        b('s_branch XL0_OK')
    deferred.append(d)
    stamp(a, 'xl_polled')
    att.first_loads()
    att.xl_pass()
    att.more_consts()
    a('s_load_dwordx2 s[80:81], s[0:1], 64')
    for nt in range(4):
        for h in range(2):
            r = vr(QA+4*nt+2*h, 2)
            a(f'v_pk_mul_f32 {r}, {r}, {vr(SN+2*nt,2)} op_sel_hi:[1,0]')
        for h in range(2):
            r = vr(QA+4*nt+2*h, 2)
            a(f'v_pk_fma_f32 {r}, {vr(CQ+2*h,2)}, {vr(SN+2*nt,2)}, {r} op_sel:[0,1,0] op_sel_hi:[1,1,1] neg_lo:[1,0,0] neg_hi:[1,0,0]')
        a(f'v_cvt_pk_bf16_f32 v{QA+4*nt}, v{QA+4*nt}, v{QA+4*nt+1}'); a(f'v_cvt_pk_bf16_f32 v{QA+4*nt+1}, v{QA+4*nt+2}, v{QA+4*nt+3}')
        a(f'ds_write_b64 v{QW[nt]}, {vr(QA+4*nt,2)}')
    a.wait_all(vm=False)
    a('s_barrier')
    att.q_read(LQ0)
    att.VPT = VPT
    for k in range(4): a(f'v_mov_b32 v{204+k}, v{CS+k}')
    a('v_mov_b32 v242, v26')
    def st0():
        a('s_mov_b64 exec, 1')
        a(f'buffer_store_dword v254, off, {WS}, s90 sc1')
        a('s_mov_b64 exec, -1')
    def fin():
        a.lines(f"""
        s_mov_b32 s{S_CSA}, s79
        s_add_u32 s{S_CSA+1}, s79, 4096
        s_add_u32 s{S_KVO}, s{S_KVO}, {KV_SZ}
        s_mov_b32 s8, s80
        s_mov_b32 s9, s81
        s_mov_b32 s10, {2048*1024}
        s_mov_b32 s11, 0x20000
        """)
    a(f's_add_u32 s91, s79, s{W1K}')
    att.first = att.more_loads() + [lambda: (pkload(0)(), pkload(1)()), lambda: (pkload(2)(), pkload(3)()), fin]
    em = lambda xs: (lambda: [a(x) for x in xs])
    att.early = [st0, em([f'buffer_store_dwordx4 {vr(CQ,4)}, v{V_L16}, {WS}, s91 offen sc1']), em(side[0:1]), em(side[1:2]),
                 em([side[2], f's_cmp_eq_u32 s{S_W}, 0', f's_cselect_b32 s27, s27, {WS_USED}', side[3]]), em(side[4:8]), em(side[8:9]), em(side[9:10])]

def gen_main(a):
    deferred = []
    ids(a, 'MAIN_END')
    if PROF:
        a('s_memrealtime s[70:71]'); a.wait_all(vm=False); a('v_writelane_b32 v0, s70, 31')
    stamp(a, 'start', True)
    att0 = Att(a, deferred, 0)
    gen_phase0(a, deferred, att0)
    att0.loop()
    a.raw('ATT_TAIL:')
    misc = att0.tail()
    stamp(a, 'o_stored')
    x1st = gen_p1(a, misc, deferred)
    gen_p23(a, deferred, x1st)
    stamp(a, 'f2_end')
    a.lines(f"""
    s_cmp_eq_u32 s{S_L}, 0
    s_cbranch_scc1 NEXT_LAYER
    """)
    gen_out(a)
    stamp_dump(a)
    a.raw('MAIN_END:')
    a('s_endpgm')
    a.raw('NEXT_LAYER:')
    st_voff(a, 137)
    x_publish(a, XR, 24, 120, S_X2O, S_ST2O, 137, sc=D_SC, deferred=deferred)
    pre = gen_p4_pre(a)
    hop(a, F_X2, deferred, 'x2', 5)
    gen_p4(a, pre)
    stamp(a, 'p4_end')
    a(f's_mov_b32 s{S_L}, 1')
    a(f'v_mov_b32 v28, s{S_NONCE}')
    layer_bases(a); xl_addrs(a)
    att1 = Att(a, deferred, 1)
    att1.init_regs()
    a.wait_all()
    a('s_barrier')
    flag_set(a, 0, deferred, sreg=S_XLW, vd=28)
    att1.q_read()
    att1.xl_poll()
    a('s_barrier')
    stamp(a, 'xl_polled')
    att1.first_loads()
    layer_scalars(a)
    att1.loop()
    a('s_branch ATT_TAIL')
    gen_fallback(a, deferred)
    for d in deferred: d(a)
    a.raw('CODE_END:')

KD = '''.amdhsa_kernel {name}
  .amdhsa_next_free_vgpr {nv}
  .amdhsa_next_free_sgpr 102
  .amdhsa_accum_offset {acc}
  .amdhsa_group_segment_fixed_size 0
  .amdhsa_kernarg_size 88
  .amdhsa_user_sgpr_count 2
  .amdhsa_user_sgpr_kernarg_segment_ptr 1
  .amdhsa_system_sgpr_workgroup_id_x 1
.end_amdhsa_kernel
'''
def build():
    hdr = open('cdna_kernels/' + NAME + '.s.ref').read().split('; Override launch')[0]
    kn = NAME + '_kernel'
    out = hdr + f'; @launch grid=(256,1,1) block=(256,1,1) lds={LDS_TOTAL}\n'
    a = Asm()
    a.raw('.amdgcn_target "amdgcn-amd-amdhsa--gfx950"'); a.raw('.text')
    a.raw(f'.globl {kn}'); a.raw('.p2align 8'); a.raw(f'.type {kn},@function'); a.raw(f'{kn}:')
    gen_main(a)
    txt = a.text()
    if DIAG:
        lane = lambda x: (STAMPS.index(x.split('@')[0]) + (32 if '@1' in x else 0)) if x != 'end' else None
        A, B, F = lane(DIAG[0]), lane(DIAG[1]), int(DIAG[2])
        rb = f'    v_readlane_b32 s25, v0, {B}\n' if B is not None else '    s_mov_b32 s25, s70\n'
        txt = txt.replace('DIAG_PLACEHOLDER:\n', f'''    s_memrealtime s[70:71]
    s_waitcnt vmcnt(0) lgkmcnt(0)
    v_readlane_b32 s24, v0, {A}
{rb}    s_nop 4
    s_sub_u32 s24, s25, s24
    s_min_u32 s24, s24, 10000
    s_mul_i32 s24, s24, {F}
DIAG_LOOP:
    s_memrealtime s[26:27]
    s_waitcnt lgkmcnt(0)
    s_sub_u32 s25, s26, s70
    s_cmp_lt_u32 s25, s24
    s_cbranch_scc1 DIAG_LOOP
''')
    out += txt
    out += '.section .rodata,"a"\n.p2align 6\n' + KD.format(name=kn, nv=512, acc=256)
    sys.stderr.write(f'instructions: {len(a.ins)}, nop states inserted: {a.nops}\n')
    return out

if __name__ == '__main__':
    dst = sys.argv[1] if len(sys.argv) > 1 else 'cdna_kernels/' + NAME + '.s'
    if len(sys.argv) > 2 and sys.argv[2].startswith('prof'): PROF = True
    if len(sys.argv) > 2 and sys.argv[2] == 'profrt': STAMP_OP = 's_memrealtime'
    open(dst, 'w').write(build())
    if PROF: open(dst + '.stamps', 'w').write(' '.join(STAMPS))
```
